```python
import torch

def _softmax(x, axis=-1):
    return torch.softmax(x, dim=axis)
def _gelu(x):
    return torch.nn.functional.gelu(x, approximate="tanh")
def _silu(x):
    return torch.nn.functional.silu(x)
def _sigmoid(x):
    return torch.sigmoid(x)
def _layernorm(x, axis=-1, eps=1e-5):
    m = x.mean(dim=axis, keepdim=True)
    v = x.var(dim=axis, keepdim=True, unbiased=False)
    return (x - m) / torch.sqrt(v + eps)
def _scatter_add(tgt, idx, src, axis=0):
    return tgt.clone().index_add_(axis, idx, src)
def _segment_sum(src, seg, n):
    out = torch.zeros((n,) + src.shape[1:], dtype=src.dtype)
    return out.index_add_(0, seg, src)
def _pad(x, pw):
    flat = tuple(v for pair in reversed(pw) for v in pair)
    return torch.nn.functional.pad(x, flat)

kernel_name = 'gated_mix__mha_block__spectral_fnet__prompt'

def setup_inputs():

    _w = (lambda a: (lambda t: t.to(torch.bfloat16) if t.is_floating_point() else t)(torch.as_tensor(a)))
    def _A_setup():
        B, S, D, H = 1, 2048, 640, 32
        return {
            "x": _w((lambda *s: torch.randn(*s, dtype=torch.bfloat16) * 0.05)(B, S, D)),
            "wqkv": _w((lambda *s: torch.randn(*s, dtype=torch.bfloat16) * 1.6)(D, 3 * D)),
            "wo": _w((lambda *s: torch.randn(*s, dtype=torch.bfloat16) * 1.6)(D, D)),
        }
    _A_in = _A_setup()

    def _B_setup():
        B, S, D = 1, 2048, 640
        ns = torch.arange(S)[:, None] * torch.arange(S)[None, :]
        nd = torch.arange(D)[:, None] * torch.arange(D)[None, :]
        Ws_re = torch.cos(-2.0 * torch.pi * ns / S).to(float)
        Ws_im = torch.sin(-2.0 * torch.pi * ns / S).to(float)
        Wd_re = torch.cos(-2.0 * torch.pi * nd / D).to(float)
        Wd_im = torch.sin(-2.0 * torch.pi * nd / D).to(float)
        return {
            "x": _w((lambda *s: torch.randn(*s, dtype=torch.bfloat16) * 0.05)(B, S, D)),
            "dft_seq_re": _w(Ws_re),
            "dft_seq_im": _w(Ws_im),
            "dft_hid_re": _w(Wd_re),
            "dft_hid_im": _w(Wd_im),
        }
    _B_in = _B_setup()

    return {
        "A_x": _A_in["x"],
        "A_wqkv": _A_in["wqkv"],
        "A_wo": _A_in["wo"],
        "B_x": _B_in["x"],
        "B_dft_seq_re": _B_in["dft_seq_re"],
        "B_dft_seq_im": _B_in["dft_seq_im"],
        "B_dft_hid_re": _B_in["dft_hid_re"],
        "B_dft_hid_im": _B_in["dft_hid_im"],
        "gate_w": _w((lambda *s: torch.randn(*s, dtype=torch.bfloat16) * 0.05)(640) * 16.0),
    }

def reference(A_x, A_wqkv, A_wo, B_x, B_dft_seq_re, B_dft_seq_im, B_dft_hid_re, B_dft_hid_im, gate_w):
    def _A_ref(x, wqkv, wo):
        B, S, D = x.shape
        H = 32
        Dh = D // H
        qkv = (lambda x, *d: x.permute(*d))((x @ wqkv).reshape(B, S, 3, H, Dh), 2, 0, 3, 1, 4)
        q, k, v = qkv[0], qkv[1], qkv[2]
        scores = torch.einsum("bhqd,bhkd->bhqk", q, k) * (Dh ** -0.5)
        p = _softmax(scores, axis=-1)
        o = torch.einsum("bhqk,bhkd->bhqd", p, v)
        return (lambda x, *d: x.permute(*d))(o, 0, 2, 1, 3).reshape(B, S, D) @ wo

    def _B_ref(x, dft_seq_re, dft_seq_im, dft_hid_re, dft_hid_im):
        a = torch.einsum("bsd,ed->bse", x, dft_hid_re)
        b = torch.einsum("bsd,ed->bse", x, dft_hid_im)
        y = torch.einsum("ts,bse->bte", dft_seq_re, a) - torch.einsum("ts,bse->bte", dft_seq_im, b)
        return y

    x = A_x
    g = _sigmoid((x * gate_w).sum(-1, keepdims=True))
    a = _A_ref(x, A_wqkv, A_wo)
    b = _B_ref(x, B_dft_seq_re, B_dft_seq_im, B_dft_hid_re, B_dft_hid_im)
    return g * a + (1 - g) * b
```

```python
S = 2048; D = 640; H = 32; DH = 20

WS_Q   = 0x000000
WS_KV  = 0x280000
WS_AET = 0x780000
WS_BOT = 0x840000
WS_Y   = 0x900000
WS_O   = 0xB80000
WS_G   = 0xE00000
WS_WOT = 0xE10000
AET_STRIDE = 2112
Q_HEAD_BYTES = 16 * 5120
KV_HEAD_BYTES = 16 * 10240

class Asm:
    def __init__(self):
        self.lines = []
        self.uid = 0
    def __call__(self, s):
        for l in s.strip("\n").split("\n"):
            self.lines.append("    " + l.strip() if not l.strip().endswith(":") else l.strip())
    def label(self, name):
        self.lines.append(name + ":")
    def newlabel(self, base):
        self.uid += 1
        return f"L_{base}_{self.uid}"
    def comment(self, s):
        self.lines.append("    ; " + s)
    def text(self):
        return "\n".join(self.lines) + "\n"

def vr(a, n=1):
    return f"v{a}" if n == 1 else f"v[{a}:{a+n-1}]"
def sr(a, n=1):
    return f"s{a}" if n == 1 else f"s[{a}:{a+n-1}]"

def kernel_header(a, name):
    a.lines.append(f".globl {name}")
    a.lines.append(".p2align 8")
    a.lines.append(f".type {name},@function")
    a.lines.append(f"{name}:")

def kernel_desc(name, nvgpr, nsgpr=102):
    acc = (nvgpr + 3) // 4 * 4
    return f""".p2align 6
.amdhsa_kernel {name}
  .amdhsa_next_free_vgpr {nvgpr}
  .amdhsa_next_free_sgpr {nsgpr}
  .amdhsa_accum_offset {acc}
  .amdhsa_group_segment_fixed_size 0
  .amdhsa_kernarg_size 96
  .amdhsa_user_sgpr_count 2
  .amdhsa_user_sgpr_kernarg_segment_ptr 1
  .amdhsa_system_sgpr_workgroup_id_x 1
.end_amdhsa_kernel
"""

def make_srd(a, d, base_lo, base_hi, off, size):
    if off == 0:
        a(f"s_mov_b32 s{d}, s{base_lo}")
        a(f"s_mov_b32 s{d+1}, s{base_hi}")
    else:
        a(f"s_add_u32 s{d}, s{base_lo}, {off}")
        a(f"s_addc_u32 s{d+1}, s{base_hi}, 0")
    a(f"s_mov_b32 s{d+2}, {size}")
    a(f"s_mov_b32 s{d+3}, 0x00020000")
```

```python
from common import *
import math, struct

STAGE = 36864; WOFF = 16384; NSLOT = 4; NST = 10
S_X = 24; S_W = 26; S_DRE = 28; S_DIM = 30; S_WS = 32
SRD_X = 8; SRD_W = 12; SRD_WS = 20
S_WAVE = 36; S_B = 37; S_CG = 38; S_I = 39; S_J = 40; S_WSTR = 41; S_WCOL = 42
S_T = 44
S_SX = 61; S_SW = 62; S_WSTEP = 63; S_DELTA = 64; S_CNT = 65; S_SLOT = 66
V_LANE = 1
QSCALE = math.log2(math.e) / math.sqrt(20.0)
def f32bits(x): return struct.unpack("<I", struct.pack("<f", x))[0]
OOB = 0x40000000
STAMP = False
def stamp(a, idx):
    if STAMP: a(f"s_memtime s[{70+2*idx}:{71+2*idx}]")
def stamp_store(a, n=12):
    if not STAMP: return
    a("s_waitcnt vmcnt(0)")
    stamp(a, n - 1)
    a("s_waitcnt lgkmcnt(0)")
    a("s_mov_b64 exec, -1")
    a(f"s_lshl_b32 s{S_T}, s2, 4")
    a(f"s_add_u32 s{S_T}, s{S_T}, s{S_WAVE}")
    a(f"s_lshl_b32 s{S_T}, s{S_T}, 6")
    a(f"v_mov_b32 v2, 0")
    for i in range(n):
        a(f"v_mov_b32 v3, s{70+2*i}")
        a(f"buffer_store_dword v3, v2, s[96:99], s{S_T} offen offset:{4*i}")

NDMA = 9
def loader(a):
    VX, VW = 20, 24
    L = V_LANE
    a(f"s_sub_u32 s{S_J}, s{S_WAVE}, 4")
    a(f"v_lshrrev_b32 v2, 3, v{L}")
    a(f"v_and_b32 v3, 7, v{L}")
    a(f"v_lshrrev_b32 v4, 4, v{L}")
    a(f"v_xor_b32 v3, v3, v4")
    a(f"s_lshl_b32 s{S_T}, s{S_B}, 6")
    a(f"s_and_b32 s{S_T+1}, s{S_J}, 1")
    a(f"s_lshl_b32 s{S_T+1}, s{S_T+1}, 5")
    a(f"s_add_u32 s{S_T}, s{S_T}, s{S_T+1}")
    a(f"v_add_u32 v5, s{S_T}, v2")
    a(f"s_cmp_ge_u32 s{S_J}, 2")
    a(f"s_movk_i32 s{S_T+2}, 1280")
    a(f"s_cselect_b32 s{S_T+2}, {(-1280) & 0xffffffff}, s{S_T+2}")
    a(f"s_cselect_b32 s{S_T+3}, {2048*1280}, 0")
    a(f"v_mul_lo_u32 v6, v5, s{S_T+2}")
    a(f"v_add_u32 v6, s{S_T+3}, v6")
    a(f"s_lshl_b32 s{S_T+2}, s{S_T+2}, 3")
    a(f"v_lshl_add_u32 v{VX}, v3, 4, v6")
    a(f"v_xor_b32 v3, 4, v3")
    a(f"v_add_u32 v6, s{S_T+2}, v6")
    a(f"v_lshl_add_u32 v{VX+1}, v3, 4, v6")
    a(f"s_lshl_b32 s{S_T+2}, s{S_T+2}, 1")
    a(f"v_add_u32 v{VX+2}, s{S_T+2}, v{VX}")
    a(f"v_add_u32 v{VX+3}, s{S_T+2}, v{VX+1}")
    a(f"v_subrev_u32 v7, {1024*1280}, v{VX}")
    a(f"v_cmp_le_u32 vcc, {2048*1280}, v{VX}")
    a(f"s_lshl_b32 s{S_T+4}, s{S_J}, 12")
    a(f"s_mul_i32 s{S_T+5}, s{S_J}, 5120")
    a(f"v_cndmask_b32 v{VX}, v{VX}, v7, vcc")
    a(f"s_add_u32 s{S_T+5}, s{S_T+5}, {WOFF}")
    def issue_x(stage):
        slot = (stage % NSLOT) * STAGE
        a(f"s_movk_i32 s{S_SX}, {stage*128}")
        for t in range(4):
            a(f"s_add_u32 m0, s{S_T+4}, {slot + t*1024}")
            a("s_nop 0")
            a(f"buffer_load_dwordx4 v{VX+t}, {sr(SRD_X,4)}, s{S_SX} offen lds")
    def issue_w(stage):
        slot = (stage % NSLOT) * STAGE
        a(f"s_mul_i32 s{S_SW}, s{S_WSTEP}, {stage}")
        for t in range(5):
            a(f"s_add_u32 m0, s{S_T+5}, {slot + t*1024}")
            a("s_nop 0")
            a(f"buffer_load_dwordx4 v{VW+t}, {sr(SRD_W,4)}, s{S_SW} offen lds")
    stamp(a, 1)
    issue_x(0)
    a(f"s_mul_i32 s{S_T+6}, s{S_J}, 320")
    a(f"s_movk_i32 s{S_T+7}, 3277")
    for t in range(5):
        a(f"v_add_u32 v2, s{S_T+6}, v{L}")
        if t: a(f"v_add_u32 v2, {64*t}, v2")
        a(f"v_mul_u32_u24 v3, s{S_T+7}, v2")
        a(f"v_lshrrev_b32 v3, 16, v3")
        a(f"v_mul_u32_u24 v4, 20, v3")
        a(f"v_sub_u32 v4, v2, v4")
        a(f"v_bfe_u32 v5, v3, 3, 1")
        a(f"v_lshlrev_b32 v5, 1, v5")
        a(f"v_xor_b32 v4, v4, v5")
        a(f"v_mul_lo_u32 v6, v3, s{S_WSTR}")
        a(f"v_lshl_add_u32 v6, v4, 4, v6")
        a(f"v_add_u32 v{VW+t}, s{S_WCOL}, v6")
    issue_w(0)
    issue_x(1); issue_w(1)
    a(f"v_and_b32 v2, 15, v{L}")
    a(f"s_lshl_b32 s{S_T+6}, s{S_J}, 4")
    a(f"v_add_u32 v4, s{S_T+6}, v2")
    a(f"v_bfe_u32 v5, v4, 3, 1")
    a(f"v_mul_u32_u24 v30, 320, v4")
    a(f"v_lshl_add_u32 v30, v5, 5, v30")
    a(f"v_add_u32 v30, {WOFF}, v30")
    a(f"v_and_b32 v6, 1, v4")
    a(f"v_lshlrev_b32 v6, 15, v6")
    a(f"v_or_b32 v31, 0x3f80, v6")
    def patch(stage):
        lab = a.newlabel("nopatch")
        a(f"s_cmp_lg_u32 s{S_CG}, 14")
        a(f"s_cbranch_scc1 {lab}")
        a("s_mov_b64 exec, 0xffff")
        slot = (stage % NSLOT) * STAGE
        a(f"v_add_u32 v2, {slot}, v30")
        a(f"ds_write_b16 v2, v31")
        a("s_mov_b64 exec, -1")
        a("s_waitcnt lgkmcnt(0)")
        a.label(lab)
    stamp(a, 2)
    issued = 2
    for n in range(NST):
        a(f"s_waitcnt vmcnt({NDMA*(issued-1-n)})")
        patch(n)
        if n in (0, 1, 2, 5, 9): stamp(a, {0:3, 1:4, 2:5, 5:6, 9:7}[n])
        a("s_barrier")
        k = 2 if n == 0 else 1
        for _ in range(k):
            if issued < NST:
                issue_x(issued); issue_w(issued); issued += 1
    stamp_store(a)
    a("s_endpgm")

ACC = 96
FS = [20, 56]
V_XA = [2, 3]
V_WA = [4, 5]
VE = 8

def acc(a_, ct): return ACC + (a_ * 5 + ct) * 4

def frag_reads(ks, fs):
    r = []
    xs = []
    for a_ in range(4):
        rt_rel = (a_ & 1) + 4 * (a_ >> 1)
        xs.append(f"ds_read_b128 {vr(fs+4*a_,4)}, v{V_XA[ks]} offset:{rt_rel*2048}")
    ws = []
    for ct in range(5):
        for h2 in range(2):
            krow = 4 * h2 + 32 * ks
            ws.append(f"ds_read_b64_tr_b16 {vr(fs+16+4*ct+2*h2,2)}, v{V_WA[ct%2]} offset:{krow*320 + ct*32}")
    return ws[:2] + xs + ws[2:]

def mfmas(tr, fs):
    r = []
    for ct in range(5):
        for a_ in range(4):
            X = vr(fs + 4 * a_, 4); W = vr(fs + 16 + 4 * ct, 4)
            A, B = (W, X) if tr else (X, W)
            r.append(f"v_mfma_f32_16x16x32_bf16 {vr(acc(a_,ct),4)}, {A}, {B}, {vr(acc(a_,ct),4)}")
    return r

def interleave(a, ms, rs):
    k = 0
    for m in ms:
        a(m)
        if k < len(rs):
            a(rs[k]); k += 1
    while k < len(rs):
        a(rs[k]); k += 1

def compute_setup(a):
    L = V_LANE
    t = VE
    a(f"v_and_b32 v{t}, 15, v{L}")
    a(f"v_lshrrev_b32 v{t+1}, 4, v{L}")
    a(f"v_lshrrev_b32 v{t+2}, 1, v{t}")
    a(f"v_xor_b32 v{t+3}, v{t+1}, v{t+2}")
    a(f"s_lshl_b32 s{S_T}, s{S_I}, 12")
    a(f"v_lshlrev_b32 v{t+4}, 7, v{t}")
    a(f"v_add_u32 v{t+4}, s{S_T}, v{t+4}")
    a(f"v_lshl_add_u32 v{V_XA[0]}, v{t+3}, 4, v{t+4}")
    a(f"v_xor_b32 v{V_XA[1]}, 64, v{V_XA[0]}")
    a(f"v_lshrrev_b32 v{t+2}, 2, v{t}")
    a(f"v_and_b32 v{t+3}, 3, v{t}")
    a(f"v_lshl_add_u32 v{t+4}, v{t+1}, 3, v{t+2}")
    a(f"v_mul_u32_u24 v{t+4}, 320, v{t+4}")
    a(f"v_lshl_add_u32 v{t+4}, v{t+3}, 3, v{t+4}")
    a(f"s_mul_i32 s{S_T}, s{S_J}, 160")
    a(f"s_add_u32 s{S_T}, s{S_T}, {WOFF}")
    a(f"v_add_u32 v{t+4}, s{S_T}, v{t+4}")
    a(f"v_and_b32 v{t+5}, 1, v{t+1}")
    a(f"v_lshlrev_b32 v{t+5}, 5, v{t+5}")
    a(f"v_add_u32 v{t+6}, v{t+4}, v{t+5}")
    a(f"v_sub_u32 v{t+7}, v{t+4}, v{t+5}")
    a(f"s_cmp_eq_u32 s{S_J}, 0")
    a(f"s_cselect_b64 vcc, -1, 0")
    a(f"v_cndmask_b32 v{V_WA[0]}, v{t+7}, v{t+6}, vcc")
    a(f"v_cndmask_b32 v{V_WA[1]}, v{t+6}, v{t+7}, vcc")
    for r in range(80):
        a(f"v_mov_b32 v{ACC+r}, 0")
    a(f"s_mov_b32 s{S_CNT}, 0")
    a(f"s_mov_b32 s{S_SLOT}, 0")

def compute_loop(a, tr):
    regs = V_XA + V_WA
    lab = f"L_k1_loop{int(tr)}"
    stamp(a, 1)
    a("s_barrier")
    stamp(a, 2)
    for r in frag_reads(0, FS[0]): a(r)
    a.label(lab)
    a("s_waitcnt lgkmcnt(0)")
    interleave(a, mfmas(tr, FS[0]), frag_reads(1, FS[1]))
    a(f"s_add_u32 s{S_CNT}, s{S_CNT}, 1")
    a(f"s_cmp_eq_u32 s{S_CNT}, {NST}")
    a(f"s_cbranch_scc1 {lab}_last")
    a(f"s_add_u32 s{S_SLOT}, s{S_SLOT}, 1")
    a(f"s_mov_b32 s{S_DELTA}, {STAGE}")
    a(f"s_cmp_eq_u32 s{S_SLOT}, {NSLOT}")
    a(f"s_cselect_b32 s{S_DELTA}, {(-(NSLOT-1)*STAGE) & 0xffffffff}, s{S_DELTA}")
    a(f"s_cselect_b32 s{S_SLOT}, 0, s{S_SLOT}")
    for r in regs:
        a(f"v_add_u32 v{r}, s{S_DELTA}, v{r}")
    a("s_waitcnt lgkmcnt(0)")
    a("s_barrier")
    interleave(a, mfmas(tr, FS[1]), frag_reads(0, FS[0]))
    a(f"s_branch {lab}")
    a.label(f"{lab}_last")
    a("s_waitcnt lgkmcnt(0)")
    for m in mfmas(tr, FS[1]): a(m)
    stamp(a, 3)

def end(a):
    stamp(a, 4)
    stamp_store(a)
    a("s_endpgm")

def epilogue_qk(a):
    L = V_LANE
    t = 2
    a(f"v_and_b32 v{t}, 15, v{L}")
    a(f"v_lshrrev_b32 v{t+1}, 4, v{L}")
    a(f"s_lshr_b32 s{S_T+8}, s{S_CG}, 2")
    a(f"s_mul_i32 s{S_T}, s{S_B}, 5120")
    a(f"s_lshl_b32 s{S_T}, s{S_T}, s{S_T+8}")
    a(f"s_mul_i32 s{S_T+1}, s{S_T+8}, {WS_KV}")
    a(f"s_add_u32 s{S_T}, s{S_T}, s{S_T+1}")
    a(f"s_lshl_b32 s{S_T+1}, {Q_HEAD_BYTES}, s{S_T+8}")
    a(f"s_lshl_b32 s{S_T+2}, s{S_I}, 10")
    a(f"s_lshl_b32 s{S_T+3}, s{S_I}, 3")
    a(f"s_add_u32 s{S_T+3}, s{S_T+3}, 4096")
    a(f"s_cmp_eq_u32 s{S_T+8}, 0")
    a(f"s_cselect_b32 s{S_T+4}, {f32bits(QSCALE)}, 1.0")
    a(f"s_and_b32 s{S_T+5}, s{S_CG}, 3")
    a(f"s_mul_i32 s{S_T+5}, s{S_T+5}, 40")
    a(f"s_mul_i32 s{S_T+6}, s{S_J}, 20")
    a(f"s_add_u32 s{S_T+5}, s{S_T+5}, s{S_T+6}")
    a(f"v_lshl_add_u32 v{t+13}, v{t}, 4, s{S_T}")
    a(f"v_add_u32 v{t+1}, s{S_T+5}, v{t+1}")
    a(f"v_mov_b32 v{t+10}, s{S_T+3}")
    a(f"v_mov_b32 v{t+12}, 512")
    for ct in range(5):
        A0, A1 = 20 + 2 * ct, 21 + 2 * ct
        if ct: a(f"v_add_u32 v{t+1}, 4, v{t+1}")
        a(f"v_mul_u32_u24 v{t+3}, 205, v{t+1}")
        a(f"v_lshrrev_b32 v{t+3}, 10, v{t+3}")
        a(f"v_mul_u32_u24 v{t+4}, 5, v{t+3}")
        a(f"v_sub_u32 v{t+6}, v{t+1}, v{t+4}")
        a(f"v_mul_lo_u32 v{t+8}, v{t+3}, s{S_T+1}")
        a(f"v_add_u32 v{t+8}, v{t+8}, v{t+13}")
        a(f"v_lshrrev_b32 v{t+9}, 1, v{t+6}")
        a(f"v_lshlrev_b32 v{t+9}, 9, v{t+9}")
        a(f"v_and_b32 v{t+5}, 1, v{t+6}")
        a(f"v_lshl_add_u32 v{t+9}, v{t+5}, 3, v{t+9}")
        a(f"v_cmp_eq_u32 vcc, 4, v{t+6}")
        a(f"v_add_u32 v{t+9}, s{S_T+2}, v{t+9}")
        a(f"v_mov_b32 v{t+11}, 2048")
        a(f"v_cndmask_b32 v{t+9}, v{t+9}, v{t+10}, vcc")
        a(f"v_cndmask_b32 v{t+11}, v{t+11}, v{t+12}, vcc")
        a(f"v_add_u32 v{A0}, v{t+8}, v{t+9}")
        a(f"v_add_u32 v{A1}, v{A0}, v{t+11}")
    pk = 40
    for ct in range(5):
        A0, A1 = 20 + 2 * ct, 21 + 2 * ct
        for a_ in range(4):
            c = acc(a_, ct)
            for r in range(4): a(f"v_mul_f32 v{c+r}, s{S_T+4}, v{c+r}")
            p = pk + 2 * ((ct * 4 + a_) % 16)
            a(f"v_cvt_pk_bf16_f32 v{p}, v{c}, v{c+1}")
            a(f"v_cvt_pk_bf16_f32 v{p+1}, v{c+2}, v{c+3}")
            ad = A1 if a_ >> 1 else A0
            a(f"buffer_store_dwordx2 {vr(p,2)}, v{ad}, {sr(SRD_WS,4)}, 0 offen offset:{(a_&1)*256}")
    end(a)

def epilogue_v(a):
    L = V_LANE
    t = 2
    a(f"v_and_b32 v{t}, 15, v{L}")
    a(f"v_lshrrev_b32 v{t+1}, 4, v{L}")
    a(f"s_mul_i32 s{S_T}, s{S_B}, 10240")
    a(f"s_mul_i32 s{S_T+1}, s{S_I}, 1280")
    a(f"s_add_u32 s{S_T}, s{S_T}, s{S_T+1}")
    a(f"s_add_u32 s{S_T}, s{S_T}, {WS_KV + 5120}")
    a(f"v_and_b32 v{t+2}, 1, v{t+1}")
    a(f"v_mul_u32_u24 v{t+2}, 320, v{t+2}")
    a(f"v_lshrrev_b32 v{t+3}, 1, v{t+1}")
    a(f"v_lshl_add_u32 v{t+2}, v{t+3}, 3, v{t+2}")
    a(f"v_add_u32 v{t+2}, s{S_T}, v{t+2}")
    a(f"s_and_b32 s{S_T+5}, s{S_CG}, 3")
    a(f"s_mul_i32 s{S_T+5}, s{S_T+5}, 160")
    a(f"s_mul_i32 s{S_T+6}, s{S_J}, 80")
    a(f"s_add_u32 s{S_T+5}, s{S_T+5}, s{S_T+6}")
    a(f"v_add_u32 v{t}, s{S_T+5}, v{t}")
    a(f"s_movk_i32 s{S_T+7}, 3277")
    a(f"s_mov_b32 s{S_T+8}, {KV_HEAD_BYTES}")
    for ct in range(5):
        if ct: a(f"v_add_u32 v{t}, 16, v{t}")
        a(f"v_mul_u32_u24 v{t+3}, s{S_T+7}, v{t}")
        a(f"v_lshrrev_b32 v{t+3}, 16, v{t+3}")
        a(f"v_mul_u32_u24 v{t+4}, 20, v{t+3}")
        a(f"v_sub_u32 v{t+4}, v{t}, v{t+4}")
        a(f"v_mul_lo_u32 v{t+3}, v{t+3}, s{S_T+8}")
        a(f"v_lshl_add_u32 v{t+4}, v{t+4}, 4, v{t+2}")
        a(f"v_add_u32 v{20+ct}, v{t+4}, v{t+3}")
    pk = 40; n = 0
    for ct in range(5):
        for a_ in range(4):
            c = acc(a_, ct)
            p = pk + 2 * (n % 16); n += 1
            a(f"v_cvt_pk_bf16_f32 v{p}, v{c}, v{c+1}")
            a(f"v_cvt_pk_bf16_f32 v{p+1}, v{c+2}, v{c+3}")
            off = (a_ >> 1) * 2560 + (a_ & 1) * 640
            a(f"buffer_store_dwordx2 {vr(p,2)}, v{20+ct}, {sr(SRD_WS,4)}, 0 offen offset:{off}")
    end(a)

def epilogue_d(a):
    L = V_LANE
    t = 2
    a(f"v_and_b32 v{t}, 15, v{L}")
    a(f"v_lshrrev_b32 v{t+1}, 4, v{L}")
    a(f"s_and_b32 s{S_T+2}, s{S_CG}, 1")
    a(f"s_lshl_b32 s{S_T+2}, s{S_T+2}, 1")
    a(f"s_add_u32 s{S_T+2}, s{S_T+2}, s{S_J}")
    a(f"s_mul_i32 s{S_T+2}, s{S_T+2}, {80*AET_STRIDE}")
    a(f"s_cmp_lt_u32 s{S_CG}, 14")
    a(f"s_mov_b32 s{S_T+3}, {WS_BOT}")
    a(f"s_cselect_b32 s{S_T+3}, {WS_AET}, s{S_T+3}")
    a(f"s_cselect_b32 s{S_T+5}, 1.0, -1.0")
    a(f"s_add_u32 s{S_T+2}, s{S_T+2}, s{S_T+3}")
    a(f"s_lshl_b32 s{S_T+3}, s{S_B}, 7")
    a(f"s_lshl_b32 s{S_T+4}, s{S_I}, 6")
    a(f"s_add_u32 s{S_T+3}, s{S_T+3}, s{S_T+4}")
    DR = [20 + c for c in range(5)]; DA = [25 + c for c in range(5)]; SG0 = 30; SG = 31
    a(f"v_mul_u32_u24 v{t+3}, {AET_STRIDE}, v{t}")
    a(f"v_add_u32 v{DR[0]}, s{S_T+2}, v{t+3}")
    for ct in range(1, 5):
        a(f"v_add_u32 v{DR[ct]}, {16*AET_STRIDE*ct}, v{DR[0]}")
    a(f"v_mov_b32 v{SG}, s{S_T+5}")
    a(f"v_mov_b32 v{SG0}, s{S_T+5}")
    lab = a.newlabel("nospec")
    a(f"s_lshl_b32 s{S_T+6}, s{S_J}, 4")
    a(f"s_add_u32 s{S_T+6}, s{S_T+6}, s{S_CG}")
    a(f"s_cmp_lg_u32 s{S_T+6}, 14")
    a(f"s_cbranch_scc1 {lab}")
    a(f"v_cmp_eq_u32 vcc, 0, v{t}")
    a(f"v_mov_b32 v{t+4}, {WS_AET + 320*AET_STRIDE}")
    a("s_nop 0")
    a(f"v_cndmask_b32 v{DR[0]}, v{DR[0]}, v{t+4}, vcc")
    a(f"v_cndmask_b32 v{SG0}, v{SG0}, 1.0, vcc")
    a.label(lab)
    a(f"v_lshl_add_u32 v{t+4}, v{t+1}, 3, s{S_T+3}")
    for ct in range(5):
        a(f"v_add_u32 v{DA[ct]}, v{t+4}, v{DR[ct]}")
    lab = a.newlabel("nos0")
    a(f"s_or_b32 s{S_T+6}, s{S_B}, s{S_I}")
    a(f"s_cmp_lg_u32 s{S_T+6}, 0")
    a(f"s_cbranch_scc1 {lab}")
    a("s_mov_b64 exec, 0xffff")
    for k in range(1, 4): a(f"v_mov_b32 v{80+k}, 0")
    for k in range(4): a(f"v_mov_b32 v{84+k}, 0")
    for ct in range(5):
        cm = acc(2, ct)
        a(f"v_cvt_pk_bf16_f32 v80, v{cm}, 0")
        a(f"v_mov_b32 v{cm}, 0")
        a(f"buffer_store_dwordx4 v[80:83], v{DR[ct]}, {sr(SRD_WS,4)}, 0 offen offset:2048")
        a(f"buffer_store_dwordx4 v[84:87], v{DR[ct]}, {sr(SRD_WS,4)}, 0 offen offset:2064")
        a("s_nop 1")
    a("s_mov_b64 exec, -1")
    a.label(lab)
    pk = 40; n = 0
    for ct in range(5):
        for a_ in range(2):
            cs, cm = acc(a_, ct), acc(a_ + 2, ct)
            for r in range(4):
                a(f"v_fma_f32 v{cs+r}, v{cm+r}, v{SG0 if ct == 0 else SG}, v{cs+r}")
            p = pk + 2 * (n % 16); n += 1
            a(f"v_cvt_pk_bf16_f32 v{p}, v{cs}, v{cs+1}")
            a(f"v_cvt_pk_bf16_f32 v{p+1}, v{cs+2}, v{cs+3}")
            a(f"buffer_store_dwordx2 {vr(p,2)}, v{DA[ct]}, {sr(SRD_WS,4)}, 0 offen offset:{a_*32}")
    end(a)

def gen_k1(a, name):
    kernel_header(a, name)
    a("s_cmp_ge_u32 s2, 256")
    a("s_cbranch_scc1 L_k1_exit")
    a(f"s_load_dwordx4 {sr(S_X,4)}, s[0:1], 0")
    a(f"s_load_dwordx4 {sr(S_DRE,4)}, s[0:1], 48")
    a(f"s_load_dwordx2 {sr(S_WS,2)}, s[0:1], 88")
    stamp(a, 0)
    a(f"v_and_b32 v{V_LANE}, 63, v0")
    a(f"v_lshrrev_b32 v2, 6, v0")
    a("s_nop 0")
    a(f"v_readfirstlane_b32 s{S_WAVE}, v2")
    a(f"s_and_b32 s{S_T}, s2, 1")
    a(f"s_lshl_b32 s{S_T}, s{S_T}, 3")
    a(f"s_bfe_u32 s{S_T+1}, s2, 0x30003")
    a(f"s_add_u32 s{S_B}, s{S_T}, s{S_T+1}")
    a(f"s_bfe_u32 s{S_T}, s2, 0x20001")
    a(f"s_lshl_b32 s{S_T}, s{S_T}, 2")
    a(f"s_lshr_b32 s{S_T+1}, s2, 6")
    a(f"s_add_u32 s{S_CG}, s{S_T}, s{S_T+1}")
    a(f"s_bfe_u32 s{S_I}, s{S_WAVE}, 0x10001")
    a(f"s_and_b32 s{S_J}, s{S_WAVE}, 1")
    a(f"s_and_b32 s{S_T}, s{S_CG}, 1")
    a(f"s_cmp_lt_u32 s{S_CG}, 12")
    a(f"s_cselect_b32 s{S_T}, s{S_CG}, s{S_T}")
    a(f"s_cselect_b32 s{S_WSTR}, 3840, 64")
    a(f"s_mul_i32 s{S_WCOL}, s{S_T}, 320")
    a(f"s_cselect_b32 s{S_T+1}, 0, 1216")
    a(f"s_add_u32 s{S_WSTR}, s{S_WSTR}, s{S_T+1}")
    a(f"s_lshl_b32 s{S_WSTEP}, s{S_WSTR}, 6")
    a(f"s_mul_i32 s{S_T+2}, s{S_WSTR}, 640")
    a("s_waitcnt lgkmcnt(0)")
    make_srd(a, SRD_X, S_X, S_X + 1, 0, S * D * 2)
    a(f"s_cmp_lt_u32 s{S_CG}, 14")
    a(f"s_cselect_b32 s{SRD_W}, s{S_DRE}, s{S_DIM}")
    a(f"s_cselect_b32 s{SRD_W+1}, s{S_DRE+1}, s{S_DIM+1}")
    a(f"s_cmp_lt_u32 s{S_CG}, 12")
    a(f"s_cselect_b32 s{SRD_W}, s{S_W}, s{SRD_W}")
    a(f"s_cselect_b32 s{SRD_W+1}, s{S_W+1}, s{SRD_W+1}")
    a(f"s_mov_b32 s{SRD_W+2}, s{S_T+2}")
    a(f"s_mov_b32 s{SRD_W+3}, 0x00020000")
    make_srd(a, SRD_WS, S_WS, S_WS + 1, 0, WS_Y)
    if STAMP: make_srd(a, 96, S_WS, S_WS + 1, 0x2000000, 0x100000)
    a(f"s_cmp_ge_u32 s{S_WAVE}, 4")
    a("s_cbranch_scc1 L_k1_loader")
    compute_setup(a)
    a(f"s_cmp_ge_u32 s{S_CG}, 8")
    a("s_cbranch_scc1 L_k1_c1")
    compute_loop(a, True)
    epilogue_qk(a)
    a.label("L_k1_c1")
    compute_loop(a, False)
    a(f"s_cmp_ge_u32 s{S_CG}, 12")
    a("s_cbranch_scc1 L_k1_c2")
    epilogue_v(a)
    a.label("L_k1_c2")
    epilogue_d(a)
    a.label("L_k1_loader")
    loader(a)
    a.label("L_k1_exit")
    a("s_endpgm")
```

```python
from common import *

V_LANE = 1; V_KA = 2; V_VA = 3
V_T0 = 4
Q1 = 10
Q2W = 14
Q2 = {1: 14, 0: 16, 3: 18, 2: 20}
CM = 24
SB = [40, 56]
OA = 72
PR = 88
KB = [96, 100]
K2B = [104, 108]
V0B = [112, 116]
V1B = [120, 124]
V_M = 128
V_KA0 = 129; V_VA0 = 130

S_WS = 4
SRD_Q = 8; SRD_KV = 12; SRD_O = 16
S_WAVE = 52; S_HEAD = 53; S_QB = 54; S_IT = 55; S_BARM = 56; S_FB = 57
S_VMASK = 58
S_T = 60

def mfma32(a, d, A, B, C):
    c = "0" if C is None else vr(C, 16)
    a(f"v_mfma_f32_32x32x16_bf16 {vr(d,16)}, {vr(A,4)}, {vr(B,4)}, {c}")

def k_off(u):  return (u // 4) * 10240 + (u % 4) * 1024
def k2_off(cc): return cc * 10240 + 4096
def v_off(u, i): return (u // 4) * 10240 + (u % 4) * 1280 + i * 640

def exps(a, s, lo, n=4):
    for i in range(lo, lo + n):
        a(f"v_exp_f32 v{s+i}, v{s+i}")
def cvts(a, s, lo):
    for i in (lo, lo + 2):
        a(f"v_cvt_pk_bf16_f32 v{PR+i//2}, v{s+i}, v{s+i+1}")

NOEXEC = 0; NOLDS = 0; NOWAIT = 0; NOBARCHK = 0; ORDER = 0
def tile_body(a, u, bar_points):
    s_cur = SB[u % 2]; s_nxt = SB[(u + 1) % 2]
    nread = 1
    if u % 4 == 2 and not NOBARCHK:
        lab = a.newlabel("nobar")
        a(f"s_bitcmp1_b32 s{S_BARM}, s{S_IT}" if u == 2 else f"s_bitcmp1_b32 s{S_BARM+0}, s{S_T}")
        a(f"s_cbranch_scc0 {lab}")
        a("s_barrier")
        a.label(lab)
    if not NOLDS: a(f"ds_read_b128 {vr(KB[u%2],4)}, v{V_KA} offset:{k_off(u+2)}")
    else: a("s_nop 0")
    if u % 4 == 2:
        cc = u // 4 + 1
        if not NOLDS: a(f"ds_read_b128 {vr(K2B[cc%2],4)}, v{V_KA} offset:{k2_off(cc)}")
        nread = 2
    if not NOWAIT: a(f"s_waitcnt lgkmcnt({nread})")
    else: a("s_nop 0")
    mfma32(a, OA, V1B[(u - 1) % 2], PR + 4, OA)
    def vreads():
        if not NOEXEC: a(f"s_mov_b64 exec, {sr(S_VMASK,2)}")
        if not NOLDS:
            a(f"ds_read_b128 {vr(V0B[(u+1)%2],4)}, v{V_VA} offset:{v_off(u+1,0)}")
            a(f"ds_read_b128 {vr(V1B[(u+1)%2],4)}, v{V_VA} offset:{v_off(u+1,1)}")
        if not NOEXEC: a("s_mov_b64 exec, -1")
    if ORDER == 0:
        vreads()
        exps(a, s_cur, 0); cvts(a, s_cur, 0)
        mfma32(a, s_nxt, KB[(u + 1) % 2], Q1, CM)
        exps(a, s_cur, 4); cvts(a, s_cur, 4)
        mfma32(a, s_nxt, K2B[((u + 1) // 4) % 2], Q2[(u + 1) % 4], s_nxt)
        exps(a, s_cur, 8); cvts(a, s_cur, 8)
        mfma32(a, OA, V0B[u % 2], PR, OA)
        exps(a, s_cur, 12); cvts(a, s_cur, 12)
    elif ORDER == 1:
        def ee_c(lo):
            exps(a, s_cur, lo, 2)
        def c1(i): a(f"v_cvt_pk_bf16_f32 v{PR+i//2}, v{s_cur+i}, v{s_cur+i+1}")
        vreads()
        exps(a, s_cur, 0, 3); c1(0); exps(a, s_cur, 3, 2); c1(2)
        mfma32(a, s_nxt, KB[(u + 1) % 2], Q1, CM)
        exps(a, s_cur, 5, 2); c1(4); exps(a, s_cur, 7, 2); c1(6)
        mfma32(a, s_nxt, K2B[((u + 1) // 4) % 2], Q2[(u + 1) % 4], s_nxt)
        exps(a, s_cur, 9, 2); c1(8); exps(a, s_cur, 11, 2); c1(10)
        mfma32(a, OA, V0B[u % 2], PR, OA)
        exps(a, s_cur, 13, 2); c1(12); exps(a, s_cur, 15, 1); a("s_nop 0"); c1(14)

def max16(a, dst, s, first):
    t = V_T0
    if first:
        a(f"v_max3_f32 v{dst}, v{s}, v{s+1}, v{s+2}")
        rest = list(range(3, 16))
    else:
        rest = list(range(0, 16))
    while len(rest) >= 2:
        x, y = rest.pop(0), rest.pop(0)
        a(f"v_max3_f32 v{dst}, v{dst}, v{s+x}, v{s+y}")
    if rest:
        a(f"v_max_f32 v{dst}, v{dst}, v{s+rest[0]}")

def cross_half_max(a, m):
    t0, t1 = V_T0, V_T0 + 1
    a(f"v_mov_b32 v{t0}, v{m}")
    a(f"v_mov_b32 v{t1}, v{m}")
    a("s_nop 1")
    a(f"v_permlane32_swap_b32 v{t0}, v{t1}")
    a("s_nop 1")
    a(f"v_max_f32 v{m}, v{t0}, v{t1}")

BAR_POINTS = {0: 1, 1: 4, 3: 15}

STAMP = False
AHEAD = 2
PRIO = 0
def stamp(a, idx):
    if STAMP:
        a(f"s_memtime s[{78+2*idx}:{79+2*idx}]")
def stamp_rt(a, idx):
    if STAMP:
        a(f"s_memrealtime s[{78+2*idx}:{79+2*idx}]")
def stamp_store(a, n):
    if not STAMP: return
    a("s_waitcnt lgkmcnt(0)")
    a("s_mov_b64 exec, -1")
    a(f"s_lshl_b32 s{S_T}, s2, 4")
    a(f"s_add_u32 s{S_T}, s{S_T}, s{S_WAVE}")
    a(f"s_lshl_b32 s{S_T}, s{S_T}, 6")
    a(f"s_add_u32 s{S_T}, s{S_T}, 0x400000")
    a(f"v_mov_b32 v2, 0")
    for i in range(n):
        a(f"v_mov_b32 v3, s{78+2*i}")
        a(f"buffer_store_dword v3, v2, s[96:99], s{S_T} offen offset:{4*i}")
def attention_wave(a):
    lab_run = "L_att_run"; lab_loop = "L_att_loop"; lab_epi = "L_att_epi"
    a(f"s_lshr_b32 s{S_T}, s{S_WAVE}, 2")
    a(f"s_lshl_b32 s{S_T+1}, s{S_QB}, 1")
    a(f"s_add_u32 s{S_T}, s{S_T}, s{S_T+1}")
    a(f"s_mul_i32 s{S_T}, s{S_T}, 5120")
    a(f"s_and_b32 s{S_T+1}, s{S_WAVE}, 3")
    a(f"s_lshl_b32 s{S_T+2}, s{S_T+1}, 10")
    a(f"s_add_u32 s{S_T+2}, s{S_T+2}, s{S_T}")
    a(f"v_lshlrev_b32 v{V_KA}, 4, v{V_LANE}")
    a(f"buffer_load_dwordx4 {vr(Q1,4)}, v{V_KA}, {sr(SRD_Q,4)}, s{S_T+2} offen")
    a(f"s_lshr_b32 s{S_T+3}, s{S_T+1}, 1")
    a(f"s_lshl_b32 s{S_T+3}, s{S_T+3}, 9")
    a(f"s_and_b32 s{S_T+4}, s{S_T+1}, 1")
    a(f"s_lshl_b32 s{S_T+4}, s{S_T+4}, 3")
    a(f"s_add_u32 s{S_T+3}, s{S_T+3}, s{S_T+4}")
    a(f"s_add_u32 s{S_T+3}, s{S_T+3}, s{S_T}")
    a(f"s_add_u32 s{S_T+3}, s{S_T+3}, 4096")
    a(f"v_and_b32 v{V_T0}, 31, v{V_LANE}")
    a(f"v_lshlrev_b32 v{V_T0+1}, 4, v{V_T0}")
    a(f"buffer_load_dwordx2 {vr(V_T0+2,2)}, v{V_T0+1}, {sr(SRD_Q,4)}, s{S_T+3} offen")
    a(f"v_lshrrev_b32 v{V_T0+4}, 5, v{V_LANE}")
    a(f"v_mad_u32_u24 v{V_VA}, v{V_T0+4}, 20, v{V_T0}")
    a(f"v_lshlrev_b32 v{V_VA}, 4, v{V_VA}")
    a(f"v_add_u32 v{V_VA0}, 5120, v{V_VA}")
    a(f"v_mov_b32 v{V_KA0}, v{V_KA}")
    a(f"v_mov_b32 v{V_T0+5}, 0x3f803f80")
    a(f"v_cmp_eq_u32 vcc, 20, v{V_T0}")
    a("s_nop 1")
    a(f"v_cndmask_b32 v{V_T0+5}, 0, v{V_T0+5}, vcc")
    for r in range(V0B[0], V0B[0] + 16):
        a(f"v_mov_b32 v{r}, v{V_T0+5}")
    a(f"v_cmp_gt_u32 {sr(S_VMASK,2)}, 20, v{V_T0}")
    for r in (0, 1, 4, 5, 8, 9):
        a(f"v_mov_b32 v{Q2W+r}, 0")
    a(f"v_cmp_gt_u32 vcc, 32, v{V_LANE}")
    a("s_waitcnt vmcnt(0)")
    a(f"v_cndmask_b32 v{Q2W+2}, 0, v{V_T0+2}, vcc")
    a(f"v_cndmask_b32 v{Q2W+3}, 0, v{V_T0+3}, vcc")
    a(f"v_cndmask_b32 v{Q2W+6}, v{V_T0+2}, 0, vcc")
    a(f"v_cndmask_b32 v{Q2W+7}, v{V_T0+3}, 0, vcc")
    m = 0
    for p in BAR_POINTS:
        if p % 2 == 0: m |= 1 << (p // 2)
        else: m |= 1 << (16 + p // 2)
    a(f"s_mov_b32 s{S_BARM}, {m}")
    a(f"s_mov_b32 s{S_FB}, 0")
    stamp(a, 1)
    a("s_barrier")
    stamp(a, 2)
    a(f"ds_read_b128 {vr(KB[0],4)}, v{V_KA} offset:{k_off(0)}")
    a(f"ds_read_b128 {vr(K2B[0],4)}, v{V_KA} offset:{k2_off(0)}")
    a("s_waitcnt lgkmcnt(0)")
    mfma32(a, SB[0], KB[0], Q1, None)
    mfma32(a, SB[0], K2B[0], Q2[0], SB[0])
    a("s_nop 15")
    max16(a, V_M, SB[0], True)
    cross_half_max(a, V_M)
    a.label(lab_run)
    a(f"v_mov_b32 v{V_KA}, v{V_KA0}")
    a(f"v_mov_b32 v{V_VA}, v{V_VA0}")
    a(f"ds_read_b128 {vr(KB[0],4)}, v{V_KA} offset:{k_off(0)}")
    a(f"ds_read_b128 {vr(K2B[0],4)}, v{V_KA} offset:{k2_off(0)}")
    a(f"ds_read_b128 {vr(KB[1],4)}, v{V_KA} offset:{k_off(1)}")
    a(f"s_mov_b64 exec, {sr(S_VMASK,2)}")
    a(f"ds_read_b128 {vr(V0B[0],4)}, v{V_VA} offset:{v_off(0,0)}")
    a(f"ds_read_b128 {vr(V1B[0],4)}, v{V_VA} offset:{v_off(0,1)}")
    a("s_mov_b64 exec, -1")
    for i in range(16):
        a(f"v_sub_f32 v{CM+i}, 0, v{V_M}")
    for i in range(16):
        a(f"v_mov_b32 v{OA+i}, 0")
    for i in range(8):
        a(f"v_mov_b32 v{PR+i}, 0")
    a(f"s_mov_b32 s{S_IT}, 0")
    a(f"s_mov_b32 s{S_T}, 16")
    a("s_waitcnt lgkmcnt(0)")
    mfma32(a, SB[0], KB[0], Q1, CM)
    mfma32(a, SB[0], K2B[0], Q2[0], SB[0])
    a("s_nop 7")
    stamp(a, 3)
    a(".p2align 3")
    a.label(lab_loop)
    for u in range(8):
        if PRIO == 1 and u in (0, 4):
            lab = a.newlabel("prio")
            a(f"s_setprio {0 if u == 0 else 1}")
            a(f"s_bitcmp1_b32 s{S_WAVE}, 2")
            a(f"s_cbranch_scc0 {lab}")
            a(f"s_setprio {1 if u == 0 else 0}")
            a.label(lab)
        if PRIO == 2 and u % 2 == 0:
            lab = a.newlabel("prio")
            a(f"s_setprio {(u//2)%2}")
            a(f"s_bitcmp1_b32 s{S_WAVE}, 2")
            a(f"s_cbranch_scc0 {lab}")
            a(f"s_setprio {1-(u//2)%2}")
            a.label(lab)
        tile_body(a, u, None)
    a(f"v_add_u32 v{V_KA}, 20480, v{V_KA}")
    a(f"v_add_u32 v{V_VA}, 20480, v{V_VA}")
    a(f"s_add_u32 s{S_IT}, s{S_IT}, 1")
    a(f"s_add_u32 s{S_T}, s{S_T}, 1")
    a(f"s_cmp_lt_u32 s{S_IT}, 8")
    a(f"s_cbranch_scc1 {lab_loop}")
    stamp(a, 4)
    stamp_rt(a, 6)
    a("s_waitcnt lgkmcnt(0)")
    mfma32(a, OA, V1B[1], PR + 4, OA)
    a("s_nop 15")
    a("s_nop 3")
    t = V_T0
    a(f"v_add_f32 v{t}, |v{OA}|, |v{OA+1}|")
    for i in range(2, 12):
        a(f"v_add_f32 v{t}, v{t}, |v{OA+i}|")
    a(f"s_mov_b32 s{S_T+1}, 0x7b800000")
    a(f"v_cmp_gt_f32 vcc, s{S_T+1}, v{t}")
    a("s_nop 3")
    a("s_cmp_eq_u64 vcc, exec")
    a(f"s_cbranch_scc1 {lab_epi}")
    a(f"s_cmp_lg_u32 s{S_FB}, 0")
    a(f"s_cbranch_scc1 {lab_epi}")
    a(f"s_mov_b32 s{S_FB}, 1")
    a(f"s_mov_b32 s{S_BARM}, 0")
    a(f"v_mov_b32 v{V_KA}, v{V_KA0}")
    a(f"v_mov_b32 v{V_M}, 0xff800000")
    a(f"s_mov_b32 s{S_IT}, 0")
    a.label("L_att_fbmax")
    a(f"ds_read_b128 {vr(K2B[0],4)}, v{V_KA} offset:{k2_off(0)}")
    for tt in range(4):
        a(f"ds_read_b128 {vr(KB[0],4)}, v{V_KA} offset:{k_off(tt)}")
        a("s_waitcnt lgkmcnt(0)")
        mfma32(a, SB[0], KB[0], Q1, None)
        mfma32(a, SB[0], K2B[0], Q2[tt], SB[0])
        a("s_nop 15")
        a("s_nop 3")
        max16(a, V_M, SB[0], False)
    a(f"v_add_u32 v{V_KA}, 10240, v{V_KA}")
    a(f"s_add_u32 s{S_IT}, s{S_IT}, 1")
    a(f"s_cmp_lt_u32 s{S_IT}, 16")
    a("s_cbranch_scc1 L_att_fbmax")
    cross_half_max(a, V_M)
    a(f"s_branch {lab_run}")
    a.label(lab_epi)
    t0, t1, t2, t3 = V_T0, V_T0 + 1, V_T0 + 2, V_T0 + 3
    a(f"v_mov_b32 v{t0}, v{OA+8}")
    a(f"v_mov_b32 v{t1}, v{OA+8}")
    a("s_nop 1")
    a(f"v_permlane32_swap_b32 v{t0}, v{t1}")
    a("s_nop 1")
    a(f"v_rcp_f32 v{t1}, v{t1}")
    a(f"s_lshr_b32 s{S_T}, s{S_WAVE}, 2")
    a(f"s_lshl_b32 s{S_T+1}, s{S_QB}, 1")
    a(f"s_add_u32 s{S_T}, s{S_T}, s{S_T+1}")
    a(f"s_lshl_b32 s{S_T}, s{S_T}, 6")
    a(f"s_and_b32 s{S_T+1}, s{S_WAVE}, 1")
    a(f"s_lshl_b32 s{S_T+1}, s{S_T+1}, 5")
    a(f"s_add_u32 s{S_T}, s{S_T}, s{S_T+1}")
    a(f"v_and_b32 v{t2}, 31, v{V_LANE}")
    a(f"v_add_u32 v{t2}, s{S_T}, v{t2}")
    a(f"s_bitcmp1_b32 s{S_WAVE}, 1")
    a("s_cbranch_scc0 L_att_direct")
    a(f"v_sub_u32 v{t3}, 2048, v{t2}")
    a(f"v_cmp_eq_u32 vcc, 0, v{t2}")
    a(f"v_mov_b32 v{t2}, 1024")
    a("s_nop 0")
    a(f"v_cndmask_b32 v{t2}, v{t3}, v{t2}, vcc")
    a.label("L_att_direct")
    a(f"s_movk_i32 s{S_T+2}, 1280")
    a(f"v_mul_lo_u32 v{t2}, v{t2}, s{S_T+2}")
    a(f"v_lshrrev_b32 v{t3}, 5, v{V_LANE}")
    a(f"v_lshl_add_u32 v{t2}, v{t3}, 3, v{t2}")
    a(f"s_mul_i32 s{S_T+3}, s{S_HEAD}, 40")
    for i in range(12):
        a(f"v_mul_f32 v{OA+i}, v{OA+i}, v{t1}")
    for i in range(6):
        a(f"v_cvt_pk_bf16_f32 v{PR+i}, v{OA+2*i}, v{OA+2*i+1}")
    a(f"buffer_store_dwordx2 {vr(PR,2)}, v{t2}, {sr(SRD_O,4)}, s{S_T+3} offen")
    a(f"buffer_store_dwordx2 {vr(PR+2,2)}, v{t2}, {sr(SRD_O,4)}, s{S_T+3} offen offset:16")
    a("s_mov_b64 exec, 0xffffffff")
    a(f"buffer_store_dwordx2 {vr(PR+4,2)}, v{t2}, {sr(SRD_O,4)}, s{S_T+3} offen offset:32")
    a("s_waitcnt vmcnt(0)")
    stamp(a, 5)
    stamp_store(a, 8)
    a("s_endpgm")

def helper_dma(a):
    sA, sB = S_T, S_T + 1
    a(f"s_sub_u32 s{sA}, s{S_WAVE}, 8")
    a(f"s_lshl_b32 s{sA}, s{sA}, 10")
    a(f"v_lshlrev_b32 v2, 4, v{V_LANE}")
    def cnt(c): return (10 * (c + 1) + 3) // 4
    needs = [cnt(0)] + [cnt(BAR_POINTS[p]) for p in sorted(BAR_POINTS)]
    issue_upto = [min(40, n + AHEAD) for n in needs]
    issue_upto[-1] = 40
    n = 0
    for need, upto in zip(needs, issue_upto):
        while n < upto:
            x, y = (sA, sB) if n % 2 == 0 else (sB, sA)
            a(f"s_mov_b32 m0, s{x}")
            a(f"s_add_u32 s{y}, s{x}, 4096")
            a(f"buffer_load_dwordx4 v2, {sr(SRD_KV,4)}, s{x} offen lds")
            n += 1
        a(f"s_waitcnt vmcnt({n - need})")
        a("s_barrier")

def gen_k2(a, name, helper_extra=None):
    kernel_header(a, name)
    a("s_cmp_ge_u32 s2, 256")
    a("s_cbranch_scc1 L_k2_exit")
    a(f"s_load_dwordx2 {sr(S_WS,2)}, s[0:1], 88")
    a(f"s_load_dwordx2 s[68:69], s[0:1], 0")
    a(f"s_load_dwordx2 s[70:71], s[0:1], 16")
    a(f"s_load_dwordx4 s[72:75], s[0:1], 32")
    a(f"s_load_dwordx2 s[76:77], s[0:1], 64")
    stamp(a, 0)
    stamp_rt(a, 7)
    a(f"v_and_b32 v{V_LANE}, 63, v0")
    a(f"v_lshrrev_b32 v2, 6, v0")
    a("s_nop 0")
    a(f"v_readfirstlane_b32 s{S_WAVE}, v2")
    a(f"s_and_b32 s{S_T}, s2, 7")
    a(f"s_lshl_b32 s{S_T}, s{S_T}, 2")
    a(f"s_lshr_b32 s{S_T+1}, s2, 3")
    a(f"s_and_b32 s{S_T+1}, s{S_T+1}, 3")
    a(f"s_add_u32 s{S_HEAD}, s{S_T}, s{S_T+1}")
    a(f"s_lshr_b32 s{S_QB}, s2, 5")
    a(f"s_mul_i32 s{S_T}, s{S_HEAD}, {Q_HEAD_BYTES}")
    a(f"s_mul_i32 s{S_T+1}, s{S_HEAD}, {KV_HEAD_BYTES}")
    a(f"s_add_u32 s{S_T+1}, s{S_T+1}, {WS_KV}")
    a("s_waitcnt lgkmcnt(0)")
    make_srd(a, SRD_Q, S_WS, S_WS + 1, f"s{S_T}", Q_HEAD_BYTES)
    make_srd(a, SRD_KV, S_WS, S_WS + 1, f"s{S_T+1}", KV_HEAD_BYTES)
    make_srd(a, SRD_O, S_WS, S_WS + 1, WS_O, S * D * 2)
    if STAMP: make_srd(a, 96, S_WS, S_WS + 1, WS_O, 0x1000000)
    if helper_extra: helper_extra.setup(a)
    a(f"s_cmp_ge_u32 s{S_WAVE}, 8")
    a("s_cbranch_scc1 L_k2_helper")
    attention_wave(a)
    a.label("L_k2_helper")
    helper_dma(a)
    if helper_extra: helper_extra.body(a)
    a.label("L_k2_exit")
    a("s_endpgm")
```

```python
from common import *
import k2
from k2 import S_WAVE, S_T, S_WS, V_LANE, mfma32
import math, struct
def f32bits(x): return struct.unpack("<I", struct.pack("<f", x))[0]
OOB = 0x40000000
SRD_CS = 20; SRD_SS = 24; SRD_AE = 28; SRD_BO = 32; SRD_Y = 36; SRD_A = 40; SRD_B = 44; SRD_G = 48
ACCP = 8; ACCQ = 24; BUF = 40; DEPTH = 8

def setup(a):
    make_srd(a, SRD_CS, 72, 73, 0, S * S * 2)
    make_srd(a, SRD_SS, 74, 75, 0, S * S * 2)
    make_srd(a, SRD_AE, S_WS, S_WS + 1, WS_AET, 352 * AET_STRIDE)
    make_srd(a, SRD_BO, S_WS, S_WS + 1, WS_BOT, 352 * AET_STRIDE)
    make_srd(a, SRD_Y, S_WS, S_WS + 1, WS_Y, S * D * 2)

def dft2(a):
    L = V_LANE
    sTT, sET, sN = S_T + 2, S_T + 3, S_T + 4
    a(f"s_lshr_b32 s{sN}, s2, 3")
    a(f"s_sub_u32 s{S_T}, s{S_WAVE}, 8")
    a(f"s_lshl_b32 s{S_T}, s{S_T}, 5")
    a(f"s_add_u32 s{sN}, s{sN}, s{S_T}")
    a(f"s_and_b32 s{S_T+1}, s2, 7")
    a(f"s_mul_i32 s{S_T}, s{sN}, 187")
    a(f"s_lshr_b32 s{S_T}, s{S_T}, 11")
    a(f"s_mul_i32 s{sET}, s{S_T}, 11")
    a(f"s_sub_u32 s{sET}, s{sN}, s{sET}")
    a(f"s_lshl_b32 s{sTT}, s{S_T+1}, 2")
    a(f"s_add_u32 s{sTT}, s{sTT}, s{S_T}")
    a(f"s_cmp_lt_u32 s{sN}, 44")
    a("s_cbranch_scc1 L_dft_go")
    a(f"s_mov_b32 s{sTT}, 32")
    a(f"s_mov_b32 s{sET}, s{S_T+1}")
    a(f"s_cmp_eq_u32 s{sN}, 44")
    a("s_cbranch_scc1 L_dft_go")
    a(f"s_add_u32 s{sET}, s{S_T+1}, 8")
    a(f"s_cmp_lg_u32 s{sN}, 45")
    a("s_cbranch_scc1 L_k2_exit")
    a(f"s_cmp_ge_u32 s{S_T+1}, 3")
    a("s_cbranch_scc1 L_k2_exit")
    a.label("L_dft_go")
    vA, vB, vE, vH, vt = 2, 3, 4, 5, 6
    a(f"v_and_b32 v{vt}, 31, v{L}")
    a(f"v_lshrrev_b32 v{vH}, 5, v{L}")
    a(f"s_lshl_b32 s{S_T}, s{sTT}, 5")
    a(f"v_add_u32 v{vA}, s{S_T}, v{vt}")
    a(f"v_lshlrev_b32 v{vA}, 12, v{vA}")
    a(f"v_lshl_add_u32 v{vA}, v{vH}, 4, v{vA}")
    a(f"s_lshl_b32 s{S_T+1}, s{sET}, 5")
    a(f"v_add_u32 v{vE}, s{S_T+1}, v{vt}")
    a(f"v_mul_u32_u24 v{vB}, {AET_STRIDE}, v{vE}")
    a(f"v_lshl_add_u32 v{vB}, v{vH}, 4, v{vB}")
    steps = [(SRD_CS, SRD_AE, ks, ACCP) for ks in range(65)] + [(SRD_SS, SRD_BO, ks, ACCQ) for ks in range(64)]
    def loads(i):
        sa, sb, ks, _ = steps[i]
        b = BUF + 8 * (i % DEPTH)
        a(f"buffer_load_dwordx4 {vr(b,4)}, v{vA}, {sr(sa,4)}, 0 offen offset:{ks*32}")
        a(f"buffer_load_dwordx4 {vr(b+4,4)}, v{vB}, {sr(sb,4)}, 0 offen offset:{ks*32}")
    for i in range(DEPTH): loads(i)
    n = len(steps)
    for i in range(n):
        out = min(n, i + DEPTH) - (i + 1)
        a(f"s_waitcnt vmcnt({2*out})")
        b = BUF + 8 * (i % DEPTH)
        acc = steps[i][3]
        mfma32(a, acc, b, b + 4, None if steps[i][2] == 0 else acc)
        if i + DEPTH < n: loads(i + DEPTH)
    aDD, aDM, aMD, aMM = 40, 41, 42, 43
    t0, t1, t2 = 44, 45, 46
    a(f"v_lshlrev_b32 v{t0}, 1, v{vE}")
    a(f"v_sub_u32 v{t1}, 1280, v{t0}")
    a(f"v_mov_b32 v{t2}, {OOB}")
    a(f"v_cmp_lt_u32 vcc, 320, v{vE}")
    a(f"v_add_u32 v47, -1, v{vE}")
    a("s_nop 0")
    a(f"v_cndmask_b32 v{t0}, v{t0}, v{t2}, vcc")
    a(f"v_cmp_lt_u32 vcc, 318, v47")
    a(f"v_lshl_add_u32 v48, v{vH}, 2, s{S_T}")
    a("s_nop 0")
    a(f"v_cndmask_b32 v{t1}, v{t1}, v{t2}, vcc")
    for r in range(16):
        a(f"v_cndmask_b32 v{ACCQ+r}, v{ACCQ+r}, 0, vcc")
    a(f"v_mul_u32_u24 v49, 1280, v48")
    a(f"v_sub_u32 v50, {(2048-27)*1280}, v49")
    a(f"v_add_u32 v{aDD}, v49, v{t0}")
    a(f"v_add_u32 v{aDM}, v49, v{t1}")
    a(f"v_add_u32 v{aMD}, v50, v{t0}")
    a(f"v_add_u32 v{aMM}, v50, v{t1}")
    a(f"s_cmp_eq_u32 s{sTT}, 32")
    a("s_cbranch_scc1 L_dft_edge")
    for r in range(16):
        c = 8 * (r // 4) + r % 4
        p = 52 + (r % 8)
        a(f"v_sub_f32 v60, v{ACCP+r}, v{ACCQ+r}")
        a(f"v_add_f32 v61, v{ACCP+r}, v{ACCQ+r}")
        a(f"s_movk_i32 s{S_T+5}, {c*1280 if c*1280 < 32768 else 0}" if c * 1280 < 32768 else f"s_mov_b32 s{S_T+5}, {c*1280}")
        a(f"v_cvt_pk_bf16_f32 v{p}, v60, v61")
        a(f"s_mov_b32 s{S_T+6}, {(27-c)*1280}")
        a(f"buffer_store_short v{p}, v{aDD}, {sr(SRD_Y,4)}, s{S_T+5} offen")
        a(f"buffer_store_short_d16_hi v{p}, v{aDM}, {sr(SRD_Y,4)}, s{S_T+5} offen")
        a(f"buffer_store_short_d16_hi v{p}, v{aMD}, {sr(SRD_Y,4)}, s{S_T+6} offen")
        a(f"buffer_store_short v{p}, v{aMM}, {sr(SRD_Y,4)}, s{S_T+6} offen")
    a("s_endpgm")
    a.label("L_dft_edge")
    a("s_mov_b64 exec, 0xffffffff")
    a(f"v_sub_f32 v60, v{ACCP}, v{ACCQ}")
    a(f"v_add_f32 v61, v{ACCP}, v{ACCQ}")
    a("s_nop 0")
    a(f"v_cvt_pk_bf16_f32 v52, v60, v61")
    a(f"buffer_store_short v52, v{aDD}, {sr(SRD_Y,4)}, 0 offen")
    a(f"buffer_store_short_d16_hi v52, v{aDM}, {sr(SRD_Y,4)}, 0 offen")
    a("s_endpgm")

def gate(a):
    L = V_LANE
    make_srd(a, SRD_A, 68, 69, 0, S * D * 2)
    make_srd(a, SRD_B, 76, 77, 0, D * 2)
    make_srd(a, SRD_G, S_WS, S_WS + 1, WS_G, S * 4)
    a(f"v_lshrrev_b32 v2, 3, v{L}")
    a(f"v_and_b32 v3, 7, v{L}")
    a(f"s_lshl_b32 s{S_T}, s2, 3")
    a(f"v_add_u32 v2, s{S_T}, v2")
    a(f"v_mul_u32_u24 v4, 160, v3")
    a(f"v_mul_u32_u24 v5, 1280, v2")
    a(f"v_add_u32 v5, v5, v4")
    for i in range(10):
        a(f"buffer_load_dwordx4 {vr(8+4*i,4)}, v5, {sr(SRD_A,4)}, 0 offen offset:{16*i}")
        a(f"buffer_load_dwordx4 {vr(48+4*i,4)}, v4, {sr(SRD_B,4)}, 0 offen offset:{16*i}")
    a("v_mov_b32 v6, 0")
    a("v_mov_b32 v7, 0")
    a("s_waitcnt vmcnt(0)")
    for i in range(40):
        d = 6 + (i % 2)
        a(f"v_dot2_f32_bf16 v{d}, v{8+i}, v{48+i}, v{d}")
    a("s_nop 3")
    a("v_add_f32 v6, v6, v7")
    a("s_nop 1")
    a("v_add_f32_dpp v6, v6, v6 quad_perm:[1,0,3,2] row_mask:0xf bank_mask:0xf")
    a("s_nop 1")
    a("v_add_f32_dpp v6, v6, v6 quad_perm:[2,3,0,1] row_mask:0xf bank_mask:0xf")
    a("s_nop 1")
    a("v_add_f32_dpp v6, v6, v6 row_half_mirror row_mask:0xf bank_mask:0xf")
    a(f"v_mul_f32 v6, {f32bits(-math.log2(math.e))}, v6")
    a("v_exp_f32 v6, v6")
    a("s_nop 0")
    a("v_add_f32 v6, 1.0, v6")
    a("v_rcp_f32 v6, v6")
    a("v_lshlrev_b32 v2, 2, v2")
    a("v_cmp_eq_u32 vcc, 0, v3")
    a("s_and_saveexec_b64 s[66:67], vcc")
    a(f"buffer_store_dword v6, v2, {sr(SRD_G,4)}, 0 offen")
    a("s_endpgm")

def wopack(a):
    L = V_LANE
    make_srd(a, SRD_A, 70, 71, 0, D * D * 2)
    make_srd(a, SRD_B, S_WS, S_WS + 1, WS_WOT, 800 * 1024)
    a(f"v_and_b32 v2, 15, v{L}")
    a(f"v_lshrrev_b32 v3, 4, v{L}")
    a(f"v_mul_u32_u24 v3, {8*1280}, v3")
    a(f"v_lshl_add_u32 v3, v2, 1, v3")
    a(f"v_add_u32 v4, 5120, v3")
    a(f"v_lshlrev_b32 v5, 4, v{L}")
    for m in range(4):
        a(f"s_add_u32 s{S_T}, s2, {256*m}")
        a(f"s_mul_i32 s{S_T+1}, s{S_T}, 3277")
        a(f"s_lshr_b32 s{S_T+1}, s{S_T+1}, 16")
        a(f"s_mul_i32 s{S_T+2}, s{S_T+1}, 20")
        a(f"s_sub_u32 s{S_T+2}, s{S_T}, s{S_T+2}")
        a(f"s_mul_i32 s{S_T+2}, s{S_T+2}, {32*1280}")
        a(f"s_lshl_b32 s{S_T+1}, s{S_T+1}, 5")
        a(f"s_add_u32 s{S_T+2}, s{S_T+2}, s{S_T+1}")
        a(f"s_lshl_b32 s{S_T+3+m}, s{S_T}, 10")
        for jj in range(8):
            r = 24 + 8 * m + jj
            a(f"buffer_load_ushort v{r}, v{3 if jj < 4 else 4}, {sr(SRD_A,4)}, s{S_T+2} offen offset:{(jj%4)*1280}")
    a("s_waitcnt vmcnt(0)")
    for m in range(4):
        for q in range(4):
            a(f"v_lshl_or_b32 v{8+4*m+q}, v{24+8*m+2*q+1}, 16, v{24+8*m+2*q}")
        a(f"buffer_store_dwordx4 {vr(8+4*m,4)}, v5, {sr(SRD_B,4)}, s{S_T+3+m} offen")
    a("s_endpgm")

def body(a):
    a(f"s_cmp_eq_u32 s{S_WAVE}, 10")
    a("s_cbranch_scc1 L_k2_gate")
    a(f"s_cmp_eq_u32 s{S_WAVE}, 11")
    a("s_cbranch_scc1 L_k2_wopack")
    dft2(a)
    a.label("L_k2_gate")
    gate(a)
    a.label("L_k2_wopack")
    wopack(a)
```

```python
from common import *
S_WS = 4; S_OUT = 6
SRD_O = 8; SRD_W = 12; SRD_Y = 16; SRD_G = 20; SRD_OUT = 24
S_WAVE = 36; S_RB = 37; S_CB = 38; S_T = 44
V_LANE = 1
ACC = 160
BUF = 16
def acc(a_, ct): return ACC + (a_ * 5 + ct) * 4

def gen_k3(a, name):
    L = V_LANE
    kernel_header(a, name)
    a("s_cmp_ge_u32 s2, 256")
    a("s_cbranch_scc1 L_k3_exit")
    a(f"s_load_dwordx2 {sr(S_WS,2)}, s[0:1], 88")
    a(f"s_load_dwordx2 {sr(S_OUT,2)}, s[0:1], 72")
    a(f"v_and_b32 v{L}, 63, v0")
    a(f"v_lshrrev_b32 v2, 6, v0")
    a("s_nop 0")
    a(f"v_readfirstlane_b32 s{S_WAVE}, v2")
    a(f"s_and_b32 s{S_T}, s2, 3")
    a(f"s_lshl_b32 s{S_T}, s{S_T}, 3")
    a(f"s_bfe_u32 s{S_T+1}, s2, 0x30003")
    a(f"s_add_u32 s{S_RB}, s{S_T}, s{S_T+1}")
    a(f"s_and_b32 s{S_T}, s2, 4")
    a(f"s_lshr_b32 s{S_T+1}, s2, 6")
    a(f"s_add_u32 s{S_CB}, s{S_T}, s{S_T+1}")
    a(f"v_and_b32 v2, 15, v{L}")
    a(f"v_lshrrev_b32 v3, 4, v{L}")
    a(f"s_lshl_b32 s{S_T}, s{S_RB}, 6")
    a(f"v_add_u32 v4, s{S_T}, v2")
    a(f"v_mul_u32_u24 v4, 1280, v4")
    a(f"v_lshl_add_u32 v5, v3, 4, v4")
    for i in range(1, 4): a(f"v_add_u32 v{5+i}, {16*1280*i}, v5")
    a(f"s_mul_i32 s{S_T+2}, s{S_WAVE}, 320")
    a(f"v_lshlrev_b32 v9, 4, v{L}")
    a(f"s_mul_i32 s{S_T+3}, s{S_CB}, {100*1024}")
    a(f"s_mul_i32 s{S_T+4}, s{S_WAVE}, {5*1024}")
    a(f"s_add_u32 s{S_T+3}, s{S_T+3}, s{S_T+4}")
    a(f"s_mul_i32 s{S_T+5}, s{S_WAVE}, {16*1280}")
    a(f"s_mul_i32 s{S_T+6}, s{S_CB}, 160")
    a(f"s_add_u32 s{S_T+5}, s{S_T+5}, s{S_T+6}")
    a(f"v_lshl_add_u32 v10, v3, 3, v4")
    a(f"v_add_u32 v10, s{S_T+5}, v10")
    a(f"s_lshl_b32 s{S_T+6}, s{S_WAVE}, 4")
    a(f"s_add_u32 s{S_T+6}, s{S_T+6}, s{S_T}")
    a(f"v_add_u32 v11, s{S_T+6}, v2")
    a(f"v_lshlrev_b32 v11, 2, v11")
    a("s_waitcnt lgkmcnt(0)")
    make_srd(a, SRD_O, S_WS, S_WS + 1, WS_O, S * D * 2)
    make_srd(a, SRD_W, S_WS, S_WS + 1, WS_WOT, 800 * 1024)
    make_srd(a, SRD_Y, S_WS, S_WS + 1, WS_Y, S * D * 2)
    make_srd(a, SRD_G, S_WS, S_WS + 1, WS_G, S * 4)
    make_srd(a, SRD_OUT, S_OUT, S_OUT + 1, 0, S * D * 2)
    def loads(ks):
        b = BUF + 36 * (ks % 4)
        for a_ in range(4):
            a(f"buffer_load_dwordx4 {vr(b+4*a_,4)}, v{5+a_}, {sr(SRD_O,4)}, s{S_T+2} offen offset:{64*ks}")
        for ct in range(5):
            a(f"s_add_u32 s{S_T+7}, s{S_T+3}, {ct*20*1024 + ks*1024}")
            a(f"buffer_load_dwordx4 {vr(b+16+4*ct,4)}, v9, {sr(SRD_W,4)}, s{S_T+7} offen")
    for ks in range(4): loads(ks)
    def mm(ks):
        b = BUF + 36 * (ks % 4)
        for ct in range(5):
            for a_ in range(4):
                c = "0" if ks == 0 else vr(acc(a_, ct), 4)
                a(f"v_mfma_f32_16x16x32_bf16 {vr(acc(a_,ct),4)}, {vr(b+16+4*ct,4)}, {vr(b+4*a_,4)}, {c}")
    a("s_waitcnt vmcnt(27)")
    mm(0)
    loads(4)
    a("s_waitcnt vmcnt(27)")
    mm(1)
    YR = 52
    for ct in range(5):
        a(f"buffer_load_dwordx2 {vr(YR+2*ct,2)}, v10, {sr(SRD_Y,4)}, 0 offen offset:{32*ct}")
    a(f"buffer_load_dword v{YR+10}, v11, {sr(SRD_G,4)}, 0 offen")
    a("s_waitcnt vmcnt(24)")
    mm(2)
    a("s_waitcnt vmcnt(15)")
    mm(3)
    a("s_waitcnt vmcnt(6)")
    mm(4)
    a(f"s_mul_i32 s{S_T+8}, s{S_WAVE}, 20480")
    a(f"v_add_u32 v12, s{S_T+8}, v9")
    a(f"s_mul_i32 s{S_T+9}, s{S_WAVE}, 5120")
    a(f"v_add_u32 v13, s{S_T+9}, v9")
    a(f"v_add_u32 v14, 40960, v13")
    a("s_nop 4")
    for a_ in range(4):
        for ct in range(5):
            a(f"ds_write_b128 v12, {vr(acc(a_,ct),4)} offset:{a_*5120 + ct*1024}")
    a("s_waitcnt lgkmcnt(0)")
    a("s_barrier")
    RB_ = 88
    for src in range(4):
        for ct in range(5):
            dst = (RB_ + (src * 5 + ct) * 4) if src < 3 else (ACC + ct * 4)
            a(f"ds_read_b128 {vr(dst,4)}, v{13 + src//2} offset:{(src%2)*20480 + ct*1024}")
    a("s_waitcnt vmcnt(0) lgkmcnt(0)")
    for ct in range(5):
        for r in range(4):
            d = ACC + ct * 4 + r
            a(f"v_add_f32 v{d}, v{d}, v{RB_+ct*4+r}")
            a(f"v_add_f32 v{RB_+20+ct*4+r}, v{RB_+20+ct*4+r}, v{RB_+40+ct*4+r}")
        for r in range(4):
            d = ACC + ct * 4 + r
            a(f"v_add_f32 v{d}, v{d}, v{RB_+20+ct*4+r}")
        y0, y1 = YR + 2 * ct, YR + 2 * ct + 1
        t = 16 + 4 * ct
        a(f"v_lshlrev_b32 v{t}, 16, v{y0}")
        a(f"v_and_b32 v{t+1}, 0xffff0000, v{y0}")
        a(f"v_lshlrev_b32 v{t+2}, 16, v{y1}")
        a(f"v_and_b32 v{t+3}, 0xffff0000, v{y1}")
        for r in range(4):
            d = ACC + ct * 4 + r
            a(f"v_sub_f32 v{d}, v{d}, v{t+r}")
            a(f"v_fma_f32 v{d}, v{d}, v{YR+10}, v{t+r}")
        d = ACC + ct * 4
        a(f"v_cvt_pk_bf16_f32 v{40+2*ct}, v{d}, v{d+1}")
        a(f"v_cvt_pk_bf16_f32 v{41+2*ct}, v{d+2}, v{d+3}")
        a(f"buffer_store_dwordx2 {vr(40+2*ct,2)}, v10, {sr(SRD_OUT,4)}, 0 offen offset:{32*ct}")
    a.label("L_k3_exit")
    a("s_endpgm")
```

```python
import sys
from common import *
import k1, k2, k2h, k3
mods = {"k1": k1, "k2": k2, "k2h": k2h, "k3": k3}
for arg in sys.argv[2:]:
    k_, v_ = arg.split("=")
    m, n = k_.split(".")
    setattr(mods[m], n, eval(v_))
ref = open("gated_mix__mha_block__spectral_fnet__prompt.s.ref").read().split("\n")
hdr = [l for l in ref if l.startswith(";") and "@launch" not in l and "Override" not in l and "grid=ceil" not in l]
hdr.append("; @launch kernel=qkv_dft1_kernel grid=(256,1,1) block=(512,1,1) lds=147456")
hdr.append("; @launch kernel=attn_dft2_kernel grid=(256,1,1) block=(768,1,1) lds=163840")
hdr.append("; @launch kernel=outproj_mix_kernel grid=(256,1,1) block=(256,1,1) lds=81920")
a = Asm()
k1.gen_k1(a, "qkv_dft1_kernel")
k2.gen_k2(a, "attn_dft2_kernel", k2h)
k3.gen_k3(a, "outproj_mix_kernel")
out = "\n".join(hdr) + '\n.amdgcn_target "amdgcn-amd-amdhsa--gfx950"\n.text\n' + a.text() + '.section .rodata,"a"\n'
out += kernel_desc("qkv_dft1_kernel", 192) + kernel_desc("attn_dft2_kernel", 168) + kernel_desc("outproj_mix_kernel", 252)
open(sys.argv[1], "w").write(out)
```

```python
S = 2048; D = 640; H = 32; DH = 20

WS_Q   = 0x000000
WS_KV  = 0x280000
WS_AET = 0x780000
WS_BOT = 0x840000
WS_Y   = 0x900000
WS_O   = 0xB80000
WS_G   = 0xE00000
WS_WOT = 0xE10000
WS_CP  = 0x1000000
WS_SP  = 0x1200000
WS_END = 0x1400000
AET_STRIDE = 2112
AEP_ET = 66 * 1024
Q_HEAD_BYTES = 16 * 5120
KV_HEAD_BYTES = 16 * 10240

class Asm:
    def __init__(self):
        self.lines = []
        self.uid = 0
    def __call__(self, s):
        for l in s.strip("\n").split("\n"):
            self.lines.append("    " + l.strip() if not l.strip().endswith(":") else l.strip())
    def label(self, name):
        self.lines.append(name + ":")
    def newlabel(self, base):
        self.uid += 1
        return f"L_{base}_{self.uid}"
    def comment(self, s):
        self.lines.append("    ; " + s)
    def text(self):
        return "\n".join(self.lines) + "\n"

def vr(a, n=1):
    return f"v{a}" if n == 1 else f"v[{a}:{a+n-1}]"
def sr(a, n=1):
    return f"s{a}" if n == 1 else f"s[{a}:{a+n-1}]"

def kernel_header(a, name):
    a.lines.append(f".globl {name}")
    a.lines.append(".p2align 8")
    a.lines.append(f".type {name},@function")
    a.lines.append(f"{name}:")

def kernel_desc(name, nvgpr, nsgpr=102):
    acc = (nvgpr + 3) // 4 * 4
    return f""".p2align 6
.amdhsa_kernel {name}
  .amdhsa_next_free_vgpr {nvgpr}
  .amdhsa_next_free_sgpr {nsgpr}
  .amdhsa_accum_offset {acc}
  .amdhsa_group_segment_fixed_size 0
  .amdhsa_kernarg_size 96
  .amdhsa_user_sgpr_count 2
  .amdhsa_user_sgpr_kernarg_segment_ptr 1
  .amdhsa_system_sgpr_workgroup_id_x 1
.end_amdhsa_kernel
"""

def make_srd(a, d, base_lo, base_hi, off, size):
    if off == 0:
        a(f"s_mov_b32 s{d}, s{base_lo}")
        a(f"s_mov_b32 s{d+1}, s{base_hi}")
    else:
        a(f"s_add_u32 s{d}, s{base_lo}, {off}")
        a(f"s_addc_u32 s{d+1}, s{base_hi}, 0")
    a(f"s_mov_b32 s{d+2}, {size}")
    a(f"s_mov_b32 s{d+3}, 0x00020000")
```

```python
from common import *
import math, struct

STAGE = 36864; WOFF = 16384; NSLOT = 4; NST = 10
S_X = 24; S_W = 26; S_DRE = 28; S_DIM = 30; S_WS = 32
SRD_X = 8; SRD_W = 12; SRD_SQ = 16; SRD_WS = 20
S_WAVE = 36; S_B = 37; S_CG = 38; S_I = 39; S_J = 40; S_WSTR = 41; S_WCOL = 42
S_T = 44
S_SX = 61; S_SW = 62; S_WSTEP = 63; S_DELTA = 64; S_CNT = 65; S_SLOT = 66
V_LANE = 1
QSCALE = math.log2(math.e) / math.sqrt(20.0)
def f32bits(x): return struct.unpack("<I", struct.pack("<f", x))[0]
OOB = 0x40000000
STAMP = False
def stamp(a, idx):
    if STAMP: a(f"s_memtime s[{70+2*idx}:{71+2*idx}]")
def stamp_store(a, n=12):
    if not STAMP: return
    a("s_waitcnt vmcnt(0)")
    stamp(a, n - 1)
    a("s_waitcnt lgkmcnt(0)")
    a("s_mov_b64 exec, -1")
    a(f"s_lshl_b32 s{S_T}, s2, 4")
    a(f"s_add_u32 s{S_T}, s{S_T}, s{S_WAVE}")
    a(f"s_lshl_b32 s{S_T}, s{S_T}, 6")
    a(f"v_mov_b32 v2, 0")
    for i in range(n):
        a(f"v_mov_b32 v3, s{70+2*i}")
        a(f"buffer_store_dword v3, v2, s[96:99], s{S_T} offen offset:{4*i}")

STF = ' sc1'
NDMA = 9
def loader(a):
    VX, VW = 20, 24
    L = V_LANE
    a(f"s_sub_u32 s{S_J}, s{S_WAVE}, 4")
    a(f"v_lshrrev_b32 v2, 3, v{L}")
    a(f"v_and_b32 v3, 7, v{L}")
    a(f"v_lshrrev_b32 v4, 4, v{L}")
    a(f"v_xor_b32 v3, v3, v4")
    a(f"s_lshl_b32 s{S_T}, s{S_B}, 6")
    a(f"s_and_b32 s{S_T+1}, s{S_J}, 1")
    a(f"s_lshl_b32 s{S_T+1}, s{S_T+1}, 5")
    a(f"s_add_u32 s{S_T}, s{S_T}, s{S_T+1}")
    a(f"v_add_u32 v5, s{S_T}, v2")
    a(f"s_cmp_ge_u32 s{S_J}, 2")
    a(f"s_movk_i32 s{S_T+2}, 1280")
    a(f"s_cselect_b32 s{S_T+2}, {(-1280) & 0xffffffff}, s{S_T+2}")
    a(f"s_cselect_b32 s{S_T+3}, {2048*1280}, 0")
    a(f"v_mul_lo_u32 v6, v5, s{S_T+2}")
    a(f"v_add_u32 v6, s{S_T+3}, v6")
    a(f"s_lshl_b32 s{S_T+2}, s{S_T+2}, 3")
    a(f"v_lshl_add_u32 v{VX}, v3, 4, v6")
    a(f"v_xor_b32 v3, 4, v3")
    a(f"v_add_u32 v6, s{S_T+2}, v6")
    a(f"v_lshl_add_u32 v{VX+1}, v3, 4, v6")
    a(f"s_lshl_b32 s{S_T+2}, s{S_T+2}, 1")
    a(f"v_add_u32 v{VX+2}, s{S_T+2}, v{VX}")
    a(f"v_add_u32 v{VX+3}, s{S_T+2}, v{VX+1}")
    a(f"v_subrev_u32 v7, {1024*1280}, v{VX}")
    a(f"v_cmp_le_u32 vcc, {2048*1280}, v{VX}")
    a(f"s_lshl_b32 s{S_T+4}, s{S_J}, 12")
    a(f"s_mul_i32 s{S_T+5}, s{S_J}, 5120")
    a(f"v_cndmask_b32 v{VX}, v{VX}, v7, vcc")
    a(f"s_add_u32 s{S_T+5}, s{S_T+5}, {WOFF}")
    def issue_x(stage):
        slot = (stage % NSLOT) * STAGE
        a(f"s_movk_i32 s{S_SX}, {stage*128}")
        for t in range(4):
            a(f"s_add_u32 m0, s{S_T+4}, {slot + t*1024}")
            a("s_nop 0")
            a(f"buffer_load_dwordx4 v{VX+t}, {sr(SRD_X,4)}, s{S_SX} offen lds")
    def issue_w(stage):
        slot = (stage % NSLOT) * STAGE
        a(f"s_mul_i32 s{S_SW}, s{S_WSTEP}, {stage}")
        for t in range(5):
            a(f"s_add_u32 m0, s{S_T+5}, {slot + t*1024}")
            a("s_nop 0")
            a(f"buffer_load_dwordx4 v{VW+t}, {sr(SRD_W,4)}, s{S_SW} offen lds")
    stamp(a, 1)
    issue_x(0)
    a(f"s_mul_i32 s{S_T+6}, s{S_J}, 320")
    a(f"s_movk_i32 s{S_T+7}, 3277")
    for t in range(5):
        a(f"v_add_u32 v2, s{S_T+6}, v{L}")
        if t: a(f"v_add_u32 v2, {64*t}, v2")
        a(f"v_mul_u32_u24 v3, s{S_T+7}, v2")
        a(f"v_lshrrev_b32 v3, 16, v3")
        a(f"v_mul_u32_u24 v4, 20, v3")
        a(f"v_sub_u32 v4, v2, v4")
        a(f"v_bfe_u32 v5, v3, 3, 1")
        a(f"v_lshlrev_b32 v5, 1, v5")
        a(f"v_xor_b32 v4, v4, v5")
        a(f"v_mul_lo_u32 v6, v3, s{S_WSTR}")
        a(f"v_lshl_add_u32 v6, v4, 4, v6")
        a(f"v_add_u32 v{VW+t}, s{S_WCOL}, v6")
    issue_w(0)
    issue_x(1); issue_w(1)
    a(f"v_and_b32 v2, 15, v{L}")
    a(f"s_lshl_b32 s{S_T+6}, s{S_J}, 4")
    a(f"v_add_u32 v4, s{S_T+6}, v2")
    a(f"v_bfe_u32 v5, v4, 3, 1")
    a(f"v_mul_u32_u24 v30, 320, v4")
    a(f"v_lshl_add_u32 v30, v5, 5, v30")
    a(f"v_add_u32 v30, {WOFF}, v30")
    a(f"v_and_b32 v6, 1, v4")
    a(f"v_lshlrev_b32 v6, 15, v6")
    a(f"v_or_b32 v31, 0x3f80, v6")
    def pack_issue():
        a(f"s_lshl_b32 s{S_T+8}, s2, 2")
        a(f"s_add_u32 s{S_T+8}, s{S_T+8}, s{S_J}")
        a(f"s_bfe_u32 s{S_T+9}, s{S_T+8}, 0x50004")
        a(f"s_and_b32 s{S_T+10}, s{S_T+8}, 15")
        a(f"s_lshl_b32 s{S_T+11}, s{S_T+9}, 17")
        a(f"s_lshl_b32 s{S_T+12}, s{S_T+10}, 7")
        a(f"s_add_u32 s{S_T+11}, s{S_T+11}, s{S_T+12}")
        a(f"v_lshrrev_b32 v2, 3, v{L}")
        a(f"v_and_b32 v3, 7, v{L}")
        a(f"v_xor_b32 v3, v3, v2")
        a(f"v_lshlrev_b32 v2, 12, v2")
        a(f"v_lshl_add_u32 v32, v3, 4, v2")
        a(f"s_lshl_b32 s{S_T+12}, s{S_J}, 12")
        a(f"s_add_u32 s{S_T+12}, s{S_T+12}, {NSLOT*STAGE}")
        for q in range(4):
            a(f"s_add_u32 m0, s{S_T+12}, {q*1024}")
            a(f"s_add_u32 s{S_T+13}, s{S_T+11}, {q*8*4096}")
            a(f"buffer_load_dwordx4 v32, {sr(SRD_SQ,4)}, s{S_T+13} offen lds")
        a(f"v_and_b32 v2, 31, v{L}")
        a(f"v_lshrrev_b32 v3, 5, v{L}")
        a(f"v_and_b32 v4, 7, v{L}")
        a(f"v_xor_b32 v3, v3, v4")
        a(f"v_lshlrev_b32 v2, 7, v2")
        a(f"v_add_u32 v2, s{S_T+12}, v2")
        for ksq in range(4):
            a(f"v_xor_b32 v4, {2*ksq}, v3")
            a(f"v_lshl_add_u32 v{33+ksq}, v4, 4, v2")
        a(f"s_lshl_b32 s{S_T+14}, s{S_T+8}, 12")
        a(f"s_add_u32 s{S_T+14}, s{S_T+14}, {WS_CP}")
        a(f"v_lshlrev_b32 v37, 4, v{L}")
    def patch(stage):
        lab = a.newlabel("nopatch")
        a(f"s_cmp_lg_u32 s{S_CG}, 14")
        a(f"s_cbranch_scc1 {lab}")
        a("s_mov_b64 exec, 0xffff")
        slot = (stage % NSLOT) * STAGE
        a(f"v_add_u32 v2, {slot}, v30")
        a(f"ds_write_b16 v2, v31")
        a("s_mov_b64 exec, -1")
        a("s_waitcnt lgkmcnt(0)")
        a.label(lab)
    stamp(a, 2)
    issued = 2
    for n in range(NST):
        a(f"s_waitcnt vmcnt({NDMA*(issued-1-n) + (4 if n > 6 else 0)})")
        patch(n)
        if n in (0, 1, 2, 5, 9): stamp(a, {0:3, 1:4, 2:5, 5:6, 9:7}[n])
        a("s_barrier")
        k = 2 if n == 0 else 1
        for _ in range(k):
            if issued < NST:
                issue_x(issued); issue_w(issued); issued += 1
        if n == 3: copy_setup(a)
        if n == 6: pack_issue()
    a("s_waitcnt vmcnt(0)")
    for ksq in range(4): a(f"ds_read_b128 {vr(40+4*ksq,4)}, v{33+ksq}")
    for ksq in range(4):
        a(f"s_waitcnt lgkmcnt({3-ksq})")
        a(f"buffer_store_dwordx4 {vr(40+4*ksq,4)}, v37, {sr(SRD_WS,4)}, s{S_T+14} offen offset:{ksq*1024}{STF}")
    copy_out(a)

ACC = 96
FS = [20, 56]
V_XA = [2, 3]
V_WA = [4, 5]
VE = 8

def acc(a_, ct): return ACC + (a_ * 5 + ct) * 4

def frag_reads(ks, fs):
    r = []
    xs = []
    for a_ in range(4):
        rt_rel = (a_ & 1) + 4 * (a_ >> 1)
        xs.append(f"ds_read_b128 {vr(fs+4*a_,4)}, v{V_XA[ks]} offset:{rt_rel*2048}")
    ws = []
    for ct in range(5):
        for h2 in range(2):
            krow = 4 * h2 + 32 * ks
            ws.append(f"ds_read_b64_tr_b16 {vr(fs+16+4*ct+2*h2,2)}, v{V_WA[ct%2]} offset:{krow*320 + ct*32}")
    return ws[:2] + xs + ws[2:]

def mfmas(tr, fs):
    r = []
    for ct in range(5):
        for a_ in range(4):
            X = vr(fs + 4 * a_, 4); W = vr(fs + 16 + 4 * ct, 4)
            A, B = (W, X) if tr else (X, W)
            r.append(f"v_mfma_f32_16x16x32_bf16 {vr(acc(a_,ct),4)}, {A}, {B}, {vr(acc(a_,ct),4)}")
    return r

def interleave(a, ms, rs):
    k = 0
    for m in ms:
        a(m)
        if k < len(rs):
            a(rs[k]); k += 1
    while k < len(rs):
        a(rs[k]); k += 1

def compute_setup(a):
    L = V_LANE
    t = VE
    a(f"v_and_b32 v{t}, 15, v{L}")
    a(f"v_lshrrev_b32 v{t+1}, 4, v{L}")
    a(f"v_lshrrev_b32 v{t+2}, 1, v{t}")
    a(f"v_xor_b32 v{t+3}, v{t+1}, v{t+2}")
    a(f"s_lshl_b32 s{S_T}, s{S_I}, 12")
    a(f"v_lshlrev_b32 v{t+4}, 7, v{t}")
    a(f"v_add_u32 v{t+4}, s{S_T}, v{t+4}")
    a(f"v_lshl_add_u32 v{V_XA[0]}, v{t+3}, 4, v{t+4}")
    a(f"v_xor_b32 v{V_XA[1]}, 64, v{V_XA[0]}")
    a(f"v_lshrrev_b32 v{t+2}, 2, v{t}")
    a(f"v_and_b32 v{t+3}, 3, v{t}")
    a(f"v_lshl_add_u32 v{t+4}, v{t+1}, 3, v{t+2}")
    a(f"v_mul_u32_u24 v{t+4}, 320, v{t+4}")
    a(f"v_lshl_add_u32 v{t+4}, v{t+3}, 3, v{t+4}")
    a(f"s_mul_i32 s{S_T}, s{S_J}, 160")
    a(f"s_add_u32 s{S_T}, s{S_T}, {WOFF}")
    a(f"v_add_u32 v{t+4}, s{S_T}, v{t+4}")
    a(f"v_and_b32 v{t+5}, 1, v{t+1}")
    a(f"v_lshlrev_b32 v{t+5}, 5, v{t+5}")
    a(f"v_add_u32 v{t+6}, v{t+4}, v{t+5}")
    a(f"v_sub_u32 v{t+7}, v{t+4}, v{t+5}")
    a(f"s_cmp_eq_u32 s{S_J}, 0")
    a(f"s_cselect_b64 vcc, -1, 0")
    a(f"v_cndmask_b32 v{V_WA[0]}, v{t+7}, v{t+6}, vcc")
    a(f"v_cndmask_b32 v{V_WA[1]}, v{t+6}, v{t+7}, vcc")
    for r in range(92):
        a(f"v_mov_b32 v{ACC+r}, 0")
    a(f"s_mov_b32 s{S_CNT}, 0")
    a(f"s_mov_b32 s{S_SLOT}, 0")

def compute_loop(a, tr):
    regs = V_XA + V_WA
    lab = f"L_k1_loop{int(tr)}"
    stamp(a, 1)
    a("s_barrier")
    stamp(a, 2)
    for r in frag_reads(0, FS[0]): a(r)
    a.label(lab)
    a("s_waitcnt lgkmcnt(0)")
    interleave(a, mfmas(tr, FS[0]), frag_reads(1, FS[1]))
    a(f"s_add_u32 s{S_CNT}, s{S_CNT}, 1")
    a(f"s_cmp_eq_u32 s{S_CNT}, {NST}")
    a(f"s_cbranch_scc1 {lab}_last")
    a(f"s_add_u32 s{S_SLOT}, s{S_SLOT}, 1")
    a(f"s_mov_b32 s{S_DELTA}, {STAGE}")
    a(f"s_cmp_eq_u32 s{S_SLOT}, {NSLOT}")
    a(f"s_cselect_b32 s{S_DELTA}, {(-(NSLOT-1)*STAGE) & 0xffffffff}, s{S_DELTA}")
    a(f"s_cselect_b32 s{S_SLOT}, 0, s{S_SLOT}")
    for r in regs:
        a(f"v_add_u32 v{r}, s{S_DELTA}, v{r}")
    a("s_waitcnt lgkmcnt(0)")
    a("s_barrier")
    interleave(a, mfmas(tr, FS[1]), frag_reads(0, FS[0]))
    a(f"s_branch {lab}")
    a.label(f"{lab}_last")
    a("s_waitcnt lgkmcnt(0)")
    for m in mfmas(tr, FS[1]): a(m)
    stamp(a, 3)

IMG = 2 * STAGE
S_GB = 67
S_NP = 68
EA = 176

def pre_qk(a):
    L = V_LANE; t = 8
    a(f"v_and_b32 v{t}, 15, v{L}")
    a(f"v_lshrrev_b32 v{t+1}, 4, v{L}")
    a(f"s_lshl_b32 s{S_T+2}, s{S_I}, 10")
    a(f"s_lshl_b32 s{S_T+3}, s{S_I}, 3")
    a(f"s_add_u32 s{S_T+3}, s{S_T+3}, 4096")
    a(f"s_mul_i32 s{S_T+6}, s{S_J}, 20")
    a(f"v_lshlrev_b32 v{t+10}, 4, v{t}")
    a(f"v_add_u32 v{t+10}, {IMG}, v{t+10}")
    a(f"v_add_u32 v{t+1}, s{S_T+6}, v{t+1}")
    a(f"v_mov_b32 v{t+7}, s{S_T+3}")
    a(f"v_mov_b32 v{t+9}, 512")
    for ct in range(5):
        A0, A1 = EA + 2 * ct, EA + 2 * ct + 1
        if ct: a(f"v_add_u32 v{t+1}, 4, v{t+1}")
        a(f"v_mul_u32_u24 v{t+3}, 205, v{t+1}")
        a(f"v_lshrrev_b32 v{t+3}, 10, v{t+3}")
        a(f"v_mul_u32_u24 v{t+4}, 5, v{t+3}")
        a(f"v_sub_u32 v{t+6}, v{t+1}, v{t+4}")
        a(f"v_mul_u32_u24 v{t+3}, 5120, v{t+3}")
        a(f"v_add_u32 v{t+3}, v{t+3}, v{t+10}")
        a(f"v_lshrrev_b32 v{t+4}, 1, v{t+6}")
        a(f"v_lshlrev_b32 v{t+4}, 9, v{t+4}")
        a(f"v_and_b32 v{t+5}, 1, v{t+6}")
        a(f"v_lshl_add_u32 v{t+4}, v{t+5}, 3, v{t+4}")
        a(f"v_cmp_eq_u32 vcc, 4, v{t+6}")
        a(f"v_add_u32 v{t+4}, s{S_T+2}, v{t+4}")
        a(f"v_mov_b32 v{t+8}, 2048")
        a(f"v_cndmask_b32 v{t+4}, v{t+4}, v{t+7}, vcc")
        a(f"v_cndmask_b32 v{t+8}, v{t+8}, v{t+9}, vcc")
        a(f"v_add_u32 v{A0}, v{t+3}, v{t+4}")
        a(f"v_add_u32 v{A1}, v{A0}, v{t+8}")

def pre_v(a):
    L = V_LANE; t = 8
    a(f"v_and_b32 v{t}, 15, v{L}")
    a(f"v_lshrrev_b32 v{t+1}, 4, v{L}")
    a(f"s_mul_i32 s{S_T+1}, s{S_I}, 1280")
    a(f"s_add_u32 s{S_T+1}, s{S_T+1}, {IMG}")
    a(f"v_and_b32 v{t+2}, 1, v{t+1}")
    a(f"v_mul_u32_u24 v{t+2}, 320, v{t+2}")
    a(f"v_lshrrev_b32 v{t+3}, 1, v{t+1}")
    a(f"v_lshl_add_u32 v{t+2}, v{t+3}, 3, v{t+2}")
    a(f"v_add_u32 v{t+2}, s{S_T+1}, v{t+2}")
    a(f"s_mul_i32 s{S_T+6}, s{S_J}, 80")
    a(f"v_add_u32 v{t}, s{S_T+6}, v{t}")
    a(f"s_movk_i32 s{S_T+7}, 3277")
    for ct in range(5):
        if ct: a(f"v_add_u32 v{t}, 16, v{t}")
        a(f"v_mul_u32_u24 v{t+3}, s{S_T+7}, v{t}")
        a(f"v_lshrrev_b32 v{t+3}, 16, v{t+3}")
        a(f"v_mul_u32_u24 v{t+4}, 20, v{t+3}")
        a(f"v_sub_u32 v{t+4}, v{t}, v{t+4}")
        a(f"v_mul_u32_u24 v{t+3}, 5120, v{t+3}")
        a(f"v_lshl_add_u32 v{t+4}, v{t+4}, 4, v{t+2}")
        a(f"v_add_u32 v{EA+ct}, v{t+4}, v{t+3}")

def pre_d(a):
    L = V_LANE; t = 8
    a(f"v_and_b32 v{t}, 15, v{L}")
    a(f"v_lshrrev_b32 v{t+1}, 4, v{L}")
    a(f"s_lshl_b32 s{S_T+1}, s{S_I}, 11")
    a(f"s_add_u32 s{S_T+1}, s{S_T+1}, {IMG}")
    a(f"v_lshrrev_b32 v{t+2}, 1, v{t+1}")
    a(f"v_lshlrev_b32 v{t+2}, 9, v{t+2}")
    a(f"v_and_b32 v{t+3}, 1, v{t+1}")
    a(f"v_lshl_add_u32 v{t+2}, v{t+3}, 3, v{t+2}")
    a(f"v_add_u32 v{t+2}, s{S_T+1}, v{t+2}")
    a(f"s_mul_i32 s{S_T+6}, s{S_J}, 80")
    a(f"v_add_u32 v{t}, s{S_T+6}, v{t}")
    a(f"s_cmp_lt_u32 s{S_CG}, 14")
    a(f"s_mov_b32 s{S_T+3}, {WS_BOT}")
    a(f"s_cselect_b32 s{S_T+3}, {WS_AET}, s{S_T+3}")
    a(f"s_cselect_b32 s{S_T+5}, 1.0, -1.0")
    a(f"s_and_b32 s{S_T+2}, s{S_CG}, 1")
    a(f"s_mul_i32 s{S_T+2}, s{S_T+2}, {5*AEP_ET}")
    a(f"s_add_u32 s{S_T+3}, s{S_T+3}, s{S_T+2}")
    a(f"s_add_u32 s{S_T+3}, s{S_T+3}, {64*1024}")
    a(f"s_mov_b32 s{S_T+4}, {AEP_ET}")
    for ct in range(5):
        if ct: a(f"v_add_u32 v{t}, 16, v{t}")
        a(f"v_lshrrev_b32 v{t+3}, 5, v{t}")
        a(f"v_and_b32 v{t+4}, 31, v{t}")
        a(f"v_lshlrev_b32 v{t+4}, 4, v{t+4}")
        a(f"v_lshl_add_u32 v{t+5}, v{t+3}, 12, v{t+4}")
        a(f"v_add_u32 v{EA+ct}, v{t+5}, v{t+2}")
        a(f"v_mul_lo_u32 v{t+5}, v{t+3}, s{S_T+4}")
        a(f"v_add3_u32 v{EA+5+ct}, v{t+5}, v{t+4}, s{S_T+3}")
    a(f"v_mov_b32 v{EA+10}, s{S_T+5}")
    a(f"v_mov_b32 v{EA+11}, s{S_T+5}")

def copy_setup(a):
    lab_d = a.newlabel("cpd"); lab_e = a.newlabel("cpe")
    a(f"s_cmp_ge_u32 s{S_CG}, 12")
    a(f"s_cbranch_scc1 {lab_d}")
    a(f"s_and_b32 s{S_T}, s{S_CG}, 3")
    a(f"s_lshl_b32 s{S_T}, s{S_T}, 3")
    a(f"s_add_u32 s{S_T}, s{S_T}, s{S_WAVE}")
    a(f"s_mul_i32 s{S_T}, s{S_T}, {Q_HEAD_BYTES}")
    a(f"s_mul_i32 s{S_T+1}, s{S_B}, 5120")
    a(f"s_add_u32 s{S_GB}, s{S_T}, s{S_T+1}")
    a(f"s_mov_b32 s{S_NP}, 5")
    a(f"s_cmp_lt_u32 s{S_CG}, 4")
    a(f"s_cbranch_scc1 {lab_e}")
    a(f"s_lshl_b32 s{S_GB}, s{S_GB}, 1")
    a(f"s_add_u32 s{S_GB}, s{S_GB}, {WS_KV}")
    a(f"s_cmp_lt_u32 s{S_CG}, 8")
    a(f"s_cbranch_scc1 {lab_e}")
    a(f"s_add_u32 s{S_GB}, s{S_GB}, 5120")
    a(f"s_branch {lab_e}")
    a.label(lab_d)
    a(f"s_cmp_lt_u32 s{S_CG}, 14")
    a(f"s_mov_b32 s{S_T+3}, {WS_BOT}")
    a(f"s_cselect_b32 s{S_T+3}, {WS_AET}, s{S_T+3}")
    a(f"s_and_b32 s{S_T}, s{S_CG}, 1")
    a(f"s_mul_i32 s{S_T}, s{S_T}, 5")
    a(f"s_add_u32 s{S_T}, s{S_T}, s{S_WAVE}")
    a(f"s_mul_i32 s{S_T}, s{S_T}, {AEP_ET}")
    a(f"s_lshl_b32 s{S_T+1}, s{S_B}, 12")
    a(f"s_add_u32 s{S_GB}, s{S_T}, s{S_T+1}")
    a(f"s_add_u32 s{S_GB}, s{S_GB}, s{S_T+3}")
    a(f"s_cmp_lt_u32 s{S_WAVE}, 5")
    a(f"s_cselect_b32 s{S_NP}, 4, 0")
    a.label(lab_e)

def copy_out(a):
    a.label("L_k1_copy")
    a("s_waitcnt lgkmcnt(0)")
    a("s_barrier")
    a(f"s_cmp_eq_u32 s{S_NP}, 0")
    a("s_cbranch_scc1 L_k1_done")
    a(f"s_mul_i32 s{S_T}, s{S_WAVE}, s{S_NP}")
    a(f"s_lshl_b32 s{S_T}, s{S_T}, 10")
    a(f"s_add_u32 s{S_T}, s{S_T}, {IMG}")
    a(f"v_lshlrev_b32 v2, 4, v{V_LANE}")
    a(f"v_add_u32 v3, s{S_T}, v2")
    for p in range(5):
        a(f"ds_read_b128 {vr(4+4*p,4)}, v3 offset:{p*1024}")
    for p in range(4):
        a(f"s_waitcnt lgkmcnt({4-p})")
        a(f"buffer_store_dwordx4 {vr(4+4*p,4)}, v2, {sr(SRD_WS,4)}, s{S_GB} offen offset:{p*1024}{STF}")
    a(f"s_cmp_eq_u32 s{S_NP}, 4")
    a("s_cbranch_scc1 L_k1_done")
    a(f"s_add_u32 s{S_GB}, s{S_GB}, 4096")
    a("s_waitcnt lgkmcnt(0)")
    a(f"buffer_store_dwordx4 {vr(20,4)}, v2, {sr(SRD_WS,4)}, s{S_GB} offen{STF}")
    a.label("L_k1_done")
    stamp(a, 4)
    stamp_store(a)
    a("s_endpgm")

def epilogue_qk(a):
    lab = a.newlabel("noscale")
    a(f"s_cmp_ge_u32 s{S_CG}, 4")
    a(f"s_mov_b32 s{S_T+4}, {f32bits(QSCALE)}")
    a("s_nop 5")
    a(f"s_cbranch_scc1 {lab}")
    for r in range(80): a(f"v_mul_f32 v{ACC+r}, s{S_T+4}, v{ACC+r}")
    a.label(lab)
    pk = 20
    for ct in range(5):
        for a_ in range(4):
            c = acc(a_, ct)
            p = pk + 2 * (ct * 4 + a_)
            a(f"v_cvt_pk_bf16_f32 v{p}, v{c}, v{c+1}")
            a(f"v_cvt_pk_bf16_f32 v{p+1}, v{c+2}, v{c+3}")
            a(f"ds_write_b64 v{EA+2*ct+(a_>>1)}, {vr(p,2)} offset:{(a_&1)*256}")
    a("s_branch L_k1_copy")

def epilogue_v(a):
    a("s_nop 7")
    pk = 20
    for ct in range(5):
        for a_ in range(4):
            c = acc(a_, ct)
            p = pk + 2 * (ct * 4 + a_)
            a(f"v_cvt_pk_bf16_f32 v{p}, v{c}, v{c+1}")
            a(f"v_cvt_pk_bf16_f32 v{p+1}, v{c+2}, v{c+3}")
            a(f"ds_write_b64 v{EA+ct}, {vr(p,2)} offset:{(a_>>1)*2560 + (a_&1)*640}")
    a("s_branch L_k1_copy")

def epilogue_d(a):
    spec = a.newlabel("spec"); nospec = a.newlabel("nospec")
    a(f"s_lshl_b32 s{S_T+6}, s{S_J}, 4")
    a(f"s_add_u32 s{S_T+6}, s{S_T+6}, s{S_CG}")
    a(f"v_and_b32 v2, 15, v{V_LANE}")
    a(f"s_cmp_lg_u32 s{S_T+6}, 14")
    a(f"s_cbranch_scc1 {nospec}")
    a(f"v_cmp_eq_u32 vcc, 0, v2")
    a(f"v_mov_b32 v3, {WS_AET + 10*AEP_ET + 64*1024}")
    a("s_nop 0")
    a(f"v_cndmask_b32 v{EA+5}, v{EA+5}, v3, vcc")
    a(f"v_cndmask_b32 v{EA+10}, v{EA+10}, 1.0, vcc")
    a.label(nospec)
    lab = a.newlabel("nos0")
    a(f"s_or_b32 s{S_T+7}, s{S_B}, s{S_I}")
    a(f"s_cmp_lg_u32 s{S_T+7}, 0")
    a("s_nop 3")
    a(f"s_cbranch_scc1 {lab}")
    a("s_mov_b64 exec, 0xffff")
    for k in range(1, 4): a(f"v_mov_b32 v{80+k}, 0")
    for k in range(4): a(f"v_mov_b32 v{84+k}, 0")
    for ct in range(5):
        cm = acc(2, ct)
        a(f"v_cvt_pk_bf16_f32 v80, v{cm}, 0")
        a(f"v_mov_b32 v{cm}, 0")
        a(f"buffer_store_dwordx4 v[80:83], v{EA+5+ct}, {sr(SRD_WS,4)}, 0 offen")
        a(f"buffer_store_dwordx4 v[84:87], v{EA+5+ct}, {sr(SRD_WS,4)}, 0 offen offset:512")
        a("s_nop 1")
    a("s_mov_b64 exec, -1")
    a.label(lab)
    pk = 20
    for ct in range(5):
        for a_ in range(2):
            cs, cm = acc(a_, ct), acc(a_ + 2, ct)
            for r in range(4):
                a(f"v_fma_f32 v{cs+r}, v{cm+r}, v{EA+10 if ct == 0 else EA+11}, v{cs+r}")
            p = pk + 2 * (ct * 2 + a_)
            a(f"v_cvt_pk_bf16_f32 v{p}, v{cs}, v{cs+1}")
            a(f"v_cvt_pk_bf16_f32 v{p+1}, v{cs+2}, v{cs+3}")
            a(f"ds_write_b64 v{EA+ct}, {vr(p,2)} offset:{a_*1024}")
    a(f"s_cmp_lg_u32 s{S_T+6}, 14")
    a("s_cbranch_scc1 L_k1_copy")
    a(f"v_lshrrev_b32 v3, 4, v{V_LANE}")
    a(f"v_lshrrev_b32 v4, 1, v3")
    a(f"v_lshlrev_b32 v4, 9, v4")
    a(f"v_and_b32 v3, 1, v3")
    a(f"v_lshl_add_u32 v4, v3, 3, v4")
    a(f"s_lshl_b32 s{S_T}, s{S_B}, 12")
    a(f"s_lshl_b32 s{S_T+1}, s{S_I}, 11")
    a(f"s_add_u32 s{S_T}, s{S_T}, s{S_T+1}")
    a(f"s_add_u32 s{S_T}, s{S_T}, {WS_AET + 10*AEP_ET}")
    a(f"v_cmp_eq_u32 vcc, 0, v2")
    a("s_and_saveexec_b64 s[58:59], vcc")
    a(f"buffer_store_dwordx2 {vr(pk,2)}, v4, {sr(SRD_WS,4)}, s{S_T} offen")
    a(f"buffer_store_dwordx2 {vr(pk+2,2)}, v4, {sr(SRD_WS,4)}, s{S_T} offen offset:1024")
    a("s_mov_b64 exec, -1")
    a("s_branch L_k1_copy")

def gen_k1(a, name):
    kernel_header(a, name)
    a("s_cmp_ge_u32 s2, 256")
    a("s_cbranch_scc1 L_k1_exit")
    a(f"s_load_dwordx4 {sr(S_X,4)}, s[0:1], 0")
    a(f"s_load_dwordx4 {sr(S_DRE,4)}, s[0:1], 48")
    a(f"s_load_dwordx2 {sr(S_WS,2)}, s[0:1], 88")
    a(f"s_load_dwordx4 s[4:7], s[0:1], 32")
    stamp(a, 0)
    a(f"v_and_b32 v{V_LANE}, 63, v0")
    a(f"v_lshrrev_b32 v2, 6, v0")
    a("s_nop 0")
    a(f"v_readfirstlane_b32 s{S_WAVE}, v2")
    a(f"s_and_b32 s{S_T}, s2, 1")
    a(f"s_lshl_b32 s{S_T}, s{S_T}, 3")
    a(f"s_bfe_u32 s{S_T+1}, s2, 0x30003")
    a(f"s_add_u32 s{S_B}, s{S_T}, s{S_T+1}")
    a(f"s_bfe_u32 s{S_T}, s2, 0x20001")
    a(f"s_lshl_b32 s{S_T}, s{S_T}, 2")
    a(f"s_lshr_b32 s{S_T+1}, s2, 6")
    a(f"s_add_u32 s{S_CG}, s{S_T}, s{S_T+1}")
    a(f"s_bfe_u32 s{S_I}, s{S_WAVE}, 0x10001")
    a(f"s_and_b32 s{S_J}, s{S_WAVE}, 1")
    a(f"s_and_b32 s{S_T}, s{S_CG}, 1")
    a(f"s_cmp_lt_u32 s{S_CG}, 12")
    a(f"s_cselect_b32 s{S_T}, s{S_CG}, s{S_T}")
    a(f"s_cselect_b32 s{S_WSTR}, 3840, 64")
    a(f"s_mul_i32 s{S_WCOL}, s{S_T}, 320")
    a(f"s_cselect_b32 s{S_T+1}, 0, 1216")
    a(f"s_add_u32 s{S_WSTR}, s{S_WSTR}, s{S_T+1}")
    a(f"s_lshl_b32 s{S_WSTEP}, s{S_WSTR}, 6")
    a(f"s_mul_i32 s{S_T+2}, s{S_WSTR}, 640")
    a("s_waitcnt lgkmcnt(0)")
    make_srd(a, SRD_X, S_X, S_X + 1, 0, S * D * 2)
    a(f"s_cmp_lt_u32 s{S_CG}, 14")
    a(f"s_cselect_b32 s{SRD_W}, s{S_DRE}, s{S_DIM}")
    a(f"s_cselect_b32 s{SRD_W+1}, s{S_DRE+1}, s{S_DIM+1}")
    a(f"s_cmp_lt_u32 s{S_CG}, 12")
    a(f"s_cselect_b32 s{SRD_W}, s{S_W}, s{SRD_W}")
    a(f"s_cselect_b32 s{SRD_W+1}, s{S_W+1}, s{SRD_W+1}")
    a(f"s_mov_b32 s{SRD_W+2}, s{S_T+2}")
    a(f"s_mov_b32 s{SRD_W+3}, 0x00020000")
    make_srd(a, SRD_WS, S_WS, S_WS + 1, 0, WS_END)
    a(f"s_cmp_lt_u32 s2, 128")
    a(f"s_cselect_b32 s{SRD_SQ}, s4, s6")
    a(f"s_cselect_b32 s{SRD_SQ+1}, s5, s7")
    a(f"s_mov_b32 s{SRD_SQ+2}, {S*S*2}")
    a(f"s_mov_b32 s{SRD_SQ+3}, 0x00020000")
    if STAMP: make_srd(a, 96, S_WS, S_WS + 1, 0x2000000, 0x100000)
    a(f"s_cmp_ge_u32 s{S_WAVE}, 4")
    a("s_cbranch_scc1 L_k1_loader")
    compute_setup(a)
    copy_setup(a)
    a(f"s_cmp_ge_u32 s{S_CG}, 8")
    a("s_cbranch_scc1 L_k1_c1")
    pre_qk(a)
    compute_loop(a, True)
    epilogue_qk(a)
    a.label("L_k1_c1")
    a(f"s_cmp_ge_u32 s{S_CG}, 12")
    a("s_cbranch_scc1 L_k1_c1d")
    pre_v(a)
    a("s_branch L_k1_c1go")
    a.label("L_k1_c1d")
    pre_d(a)
    a.label("L_k1_c1go")
    compute_loop(a, False)
    a(f"s_cmp_ge_u32 s{S_CG}, 12")
    a("s_cbranch_scc1 L_k1_c2")
    epilogue_v(a)
    a.label("L_k1_c2")
    epilogue_d(a)
    a.label("L_k1_loader")
    loader(a)
    a.label("L_k1_exit")
    a("s_endpgm")
```

```python
from common import *

V_LANE = 1; V_KA = 2; V_VA = 3
V_T0 = 4
Q1 = 10
Q2W = 14
Q2 = {1: 14, 0: 16, 3: 18, 2: 20}
CM = 24
SB = [40, 56]
OA = 72
PR = 88
KB = [96, 100]
K2B = [104, 108]
V0B = [112, 116]
V1B = [120, 124]
V_M = 128
V_KA0 = 129; V_VA0 = 130

S_WS = 4
SRD_Q = 8; SRD_KV = 12; SRD_O = 16
S_WAVE = 52; S_HEAD = 53; S_QB = 54; S_IT = 55; S_BARM = 56; S_FB = 57
S_VMASK = 58
S_T = 60

def mfma32(a, d, A, B, C):
    c = "0" if C is None else vr(C, 16)
    a(f"v_mfma_f32_32x32x16_bf16 {vr(d,16)}, {vr(A,4)}, {vr(B,4)}, {c}")

def k_off(u):  return (u // 4) * 10240 + (u % 4) * 1024
def k2_off(cc): return cc * 10240 + 4096
def v_off(u, i): return (u // 4) * 10240 + (u % 4) * 1280 + i * 640

def exps(a, s, lo, n=4):
    for i in range(lo, lo + n):
        a(f"v_exp_f32 v{s+i}, v{s+i}")
def cvts(a, s, lo):
    for i in (lo, lo + 2):
        a(f"v_cvt_pk_bf16_f32 v{PR+i//2}, v{s+i}, v{s+i+1}")

NOEXEC = 0; NOLDS = 0; NOWAIT = 0; NOBARCHK = 0; ORDER = 0
def tile_body(a, u, bar_points):
    s_cur = SB[u % 2]; s_nxt = SB[(u + 1) % 2]
    nread = 1
    if u % 4 == 2 and not NOBARCHK:
        lab = a.newlabel("nobar")
        a(f"s_bitcmp1_b32 s{S_BARM}, s{S_IT}" if u == 2 else f"s_bitcmp1_b32 s{S_BARM+0}, s{S_T}")
        a(f"s_cbranch_scc0 {lab}")
        a("s_barrier")
        a.label(lab)
    if not NOLDS: a(f"ds_read_b128 {vr(KB[u%2],4)}, v{V_KA} offset:{k_off(u+2)}")
    else: a("s_nop 0")
    if u % 4 == 2:
        cc = u // 4 + 1
        if not NOLDS: a(f"ds_read_b128 {vr(K2B[cc%2],4)}, v{V_KA} offset:{k2_off(cc)}")
        nread = 2
    if not NOWAIT: a(f"s_waitcnt lgkmcnt({nread})")
    else: a("s_nop 0")
    mfma32(a, OA, V1B[(u - 1) % 2], PR + 4, OA)
    def vreads():
        if not NOEXEC: a(f"s_mov_b64 exec, {sr(S_VMASK,2)}")
        if not NOLDS:
            a(f"ds_read_b128 {vr(V0B[(u+1)%2],4)}, v{V_VA} offset:{v_off(u+1,0)}")
            a(f"ds_read_b128 {vr(V1B[(u+1)%2],4)}, v{V_VA} offset:{v_off(u+1,1)}")
        if not NOEXEC: a("s_mov_b64 exec, -1")
    if ORDER == 0:
        vreads()
        exps(a, s_cur, 0); cvts(a, s_cur, 0)
        mfma32(a, s_nxt, KB[(u + 1) % 2], Q1, CM)
        exps(a, s_cur, 4); cvts(a, s_cur, 4)
        mfma32(a, s_nxt, K2B[((u + 1) // 4) % 2], Q2[(u + 1) % 4], s_nxt)
        exps(a, s_cur, 8); cvts(a, s_cur, 8)
        mfma32(a, OA, V0B[u % 2], PR, OA)
        exps(a, s_cur, 12); cvts(a, s_cur, 12)
    elif ORDER == 1:
        def ee_c(lo):
            exps(a, s_cur, lo, 2)
        def c1(i): a(f"v_cvt_pk_bf16_f32 v{PR+i//2}, v{s_cur+i}, v{s_cur+i+1}")
        vreads()
        exps(a, s_cur, 0, 3); c1(0); exps(a, s_cur, 3, 2); c1(2)
        mfma32(a, s_nxt, KB[(u + 1) % 2], Q1, CM)
        exps(a, s_cur, 5, 2); c1(4); exps(a, s_cur, 7, 2); c1(6)
        mfma32(a, s_nxt, K2B[((u + 1) // 4) % 2], Q2[(u + 1) % 4], s_nxt)
        exps(a, s_cur, 9, 2); c1(8); exps(a, s_cur, 11, 2); c1(10)
        mfma32(a, OA, V0B[u % 2], PR, OA)
        exps(a, s_cur, 13, 2); c1(12); exps(a, s_cur, 15, 1); a("s_nop 0"); c1(14)

def max16(a, dst, s, first):
    t = V_T0
    if first:
        a(f"v_max3_f32 v{dst}, v{s}, v{s+1}, v{s+2}")
        rest = list(range(3, 16))
    else:
        rest = list(range(0, 16))
    while len(rest) >= 2:
        x, y = rest.pop(0), rest.pop(0)
        a(f"v_max3_f32 v{dst}, v{dst}, v{s+x}, v{s+y}")
    if rest:
        a(f"v_max_f32 v{dst}, v{dst}, v{s+rest[0]}")

def cross_half_max(a, m):
    t0, t1 = V_T0, V_T0 + 1
    a(f"v_mov_b32 v{t0}, v{m}")
    a(f"v_mov_b32 v{t1}, v{m}")
    a("s_nop 1")
    a(f"v_permlane32_swap_b32 v{t0}, v{t1}")
    a("s_nop 1")
    a(f"v_max_f32 v{m}, v{t0}, v{t1}")

BAR_POINTS = {0: 1, 1: 4, 3: 15}

STAMP = False
AHEAD = 2
PRIO = 0
def stamp(a, idx):
    if STAMP:
        a(f"s_memtime s[{78+2*idx}:{79+2*idx}]")
def stamp_rt(a, idx):
    if STAMP:
        a(f"s_memrealtime s[{78+2*idx}:{79+2*idx}]")
def stamp_store(a, n):
    if not STAMP: return
    a("s_waitcnt lgkmcnt(0)")
    a("s_mov_b64 exec, -1")
    a(f"s_lshl_b32 s{S_T}, s2, 4")
    a(f"s_add_u32 s{S_T}, s{S_T}, s{S_WAVE}")
    a(f"s_lshl_b32 s{S_T}, s{S_T}, 6")
    a(f"s_add_u32 s{S_T}, s{S_T}, 0x400000")
    a(f"v_mov_b32 v2, 0")
    for i in range(n):
        a(f"v_mov_b32 v3, s{78+2*i}")
        a(f"buffer_store_dword v3, v2, s[96:99], s{S_T} offen offset:{4*i}")
def attention_wave(a):
    lab_run = "L_att_run"; lab_loop = "L_att_loop"; lab_epi = "L_att_epi"
    a(f"s_lshr_b32 s{S_T}, s{S_WAVE}, 2")
    a(f"s_lshl_b32 s{S_T+1}, s{S_QB}, 1")
    a(f"s_add_u32 s{S_T}, s{S_T}, s{S_T+1}")
    a(f"s_mul_i32 s{S_T}, s{S_T}, 5120")
    a(f"s_and_b32 s{S_T+1}, s{S_WAVE}, 3")
    a(f"s_lshl_b32 s{S_T+2}, s{S_T+1}, 10")
    a(f"s_add_u32 s{S_T+2}, s{S_T+2}, s{S_T}")
    a(f"v_lshlrev_b32 v{V_KA}, 4, v{V_LANE}")
    a(f"buffer_load_dwordx4 {vr(Q1,4)}, v{V_KA}, {sr(SRD_Q,4)}, s{S_T+2} offen")
    a(f"s_lshr_b32 s{S_T+3}, s{S_T+1}, 1")
    a(f"s_lshl_b32 s{S_T+3}, s{S_T+3}, 9")
    a(f"s_and_b32 s{S_T+4}, s{S_T+1}, 1")
    a(f"s_lshl_b32 s{S_T+4}, s{S_T+4}, 3")
    a(f"s_add_u32 s{S_T+3}, s{S_T+3}, s{S_T+4}")
    a(f"s_add_u32 s{S_T+3}, s{S_T+3}, s{S_T}")
    a(f"s_add_u32 s{S_T+3}, s{S_T+3}, 4096")
    a(f"v_and_b32 v{V_T0}, 31, v{V_LANE}")
    a(f"v_lshlrev_b32 v{V_T0+1}, 4, v{V_T0}")
    a(f"buffer_load_dwordx2 {vr(V_T0+2,2)}, v{V_T0+1}, {sr(SRD_Q,4)}, s{S_T+3} offen")
    a(f"v_lshrrev_b32 v{V_T0+4}, 5, v{V_LANE}")
    a(f"v_mad_u32_u24 v{V_VA}, v{V_T0+4}, 20, v{V_T0}")
    a(f"v_lshlrev_b32 v{V_VA}, 4, v{V_VA}")
    a(f"v_add_u32 v{V_VA0}, 5120, v{V_VA}")
    a(f"v_mov_b32 v{V_KA0}, v{V_KA}")
    a(f"v_mov_b32 v{V_T0+5}, 0x3f803f80")
    a(f"v_cmp_eq_u32 vcc, 20, v{V_T0}")
    a("s_nop 1")
    a(f"v_cndmask_b32 v{V_T0+5}, 0, v{V_T0+5}, vcc")
    for r in range(V0B[0], V0B[0] + 16):
        a(f"v_mov_b32 v{r}, v{V_T0+5}")
    a(f"v_cmp_gt_u32 {sr(S_VMASK,2)}, 20, v{V_T0}")
    for r in (0, 1, 4, 5, 8, 9):
        a(f"v_mov_b32 v{Q2W+r}, 0")
    a(f"v_cmp_gt_u32 vcc, 32, v{V_LANE}")
    a("s_waitcnt vmcnt(0)")
    a(f"v_cndmask_b32 v{Q2W+2}, 0, v{V_T0+2}, vcc")
    a(f"v_cndmask_b32 v{Q2W+3}, 0, v{V_T0+3}, vcc")
    a(f"v_cndmask_b32 v{Q2W+6}, v{V_T0+2}, 0, vcc")
    a(f"v_cndmask_b32 v{Q2W+7}, v{V_T0+3}, 0, vcc")
    m = 0
    for p in BAR_POINTS:
        if p % 2 == 0: m |= 1 << (p // 2)
        else: m |= 1 << (16 + p // 2)
    a(f"s_mov_b32 s{S_BARM}, {m}")
    a(f"s_mov_b32 s{S_FB}, 0")
    stamp(a, 1)
    a("s_barrier")
    stamp(a, 2)
    a(f"ds_read_b128 {vr(KB[0],4)}, v{V_KA} offset:{k_off(0)}")
    a(f"ds_read_b128 {vr(K2B[0],4)}, v{V_KA} offset:{k2_off(0)}")
    a("s_waitcnt lgkmcnt(0)")
    mfma32(a, SB[0], KB[0], Q1, None)
    mfma32(a, SB[0], K2B[0], Q2[0], SB[0])
    a("s_nop 15")
    max16(a, V_M, SB[0], True)
    cross_half_max(a, V_M)
    a.label(lab_run)
    a(f"v_mov_b32 v{V_KA}, v{V_KA0}")
    a(f"v_mov_b32 v{V_VA}, v{V_VA0}")
    a(f"ds_read_b128 {vr(KB[0],4)}, v{V_KA} offset:{k_off(0)}")
    a(f"ds_read_b128 {vr(K2B[0],4)}, v{V_KA} offset:{k2_off(0)}")
    a(f"ds_read_b128 {vr(KB[1],4)}, v{V_KA} offset:{k_off(1)}")
    a(f"s_mov_b64 exec, {sr(S_VMASK,2)}")
    a(f"ds_read_b128 {vr(V0B[0],4)}, v{V_VA} offset:{v_off(0,0)}")
    a(f"ds_read_b128 {vr(V1B[0],4)}, v{V_VA} offset:{v_off(0,1)}")
    a("s_mov_b64 exec, -1")
    for i in range(16):
        a(f"v_sub_f32 v{CM+i}, 0, v{V_M}")
    for i in range(16):
        a(f"v_mov_b32 v{OA+i}, 0")
    for i in range(8):
        a(f"v_mov_b32 v{PR+i}, 0")
    a(f"s_mov_b32 s{S_IT}, 0")
    a(f"s_mov_b32 s{S_T}, 16")
    a("s_waitcnt lgkmcnt(0)")
    mfma32(a, SB[0], KB[0], Q1, CM)
    mfma32(a, SB[0], K2B[0], Q2[0], SB[0])
    a("s_nop 7")
    stamp(a, 3)
    a(".p2align 3")
    a.label(lab_loop)
    for u in range(8):
        if PRIO == 1 and u in (0, 4):
            lab = a.newlabel("prio")
            a(f"s_setprio {0 if u == 0 else 1}")
            a(f"s_bitcmp1_b32 s{S_WAVE}, 2")
            a(f"s_cbranch_scc0 {lab}")
            a(f"s_setprio {1 if u == 0 else 0}")
            a.label(lab)
        if PRIO == 2 and u % 2 == 0:
            lab = a.newlabel("prio")
            a(f"s_setprio {(u//2)%2}")
            a(f"s_bitcmp1_b32 s{S_WAVE}, 2")
            a(f"s_cbranch_scc0 {lab}")
            a(f"s_setprio {1-(u//2)%2}")
            a.label(lab)
        tile_body(a, u, None)
    a(f"v_add_u32 v{V_KA}, 20480, v{V_KA}")
    a(f"v_add_u32 v{V_VA}, 20480, v{V_VA}")
    a(f"s_add_u32 s{S_IT}, s{S_IT}, 1")
    a(f"s_add_u32 s{S_T}, s{S_T}, 1")
    a(f"s_cmp_lt_u32 s{S_IT}, 8")
    a(f"s_cbranch_scc1 {lab_loop}")
    stamp(a, 4)
    stamp_rt(a, 6)
    a("s_waitcnt lgkmcnt(0)")
    mfma32(a, OA, V1B[1], PR + 4, OA)
    a("s_nop 15")
    a("s_nop 3")
    t = V_T0
    a(f"v_add_f32 v{t}, |v{OA}|, |v{OA+1}|")
    for i in range(2, 12):
        a(f"v_add_f32 v{t}, v{t}, |v{OA+i}|")
    a(f"s_mov_b32 s{S_T+1}, 0x7b800000")
    a(f"v_cmp_gt_f32 vcc, s{S_T+1}, v{t}")
    a("s_nop 3")
    a("s_cmp_eq_u64 vcc, exec")
    a(f"s_cbranch_scc1 {lab_epi}")
    a(f"s_cmp_lg_u32 s{S_FB}, 0")
    a(f"s_cbranch_scc1 {lab_epi}")
    a(f"s_mov_b32 s{S_FB}, 1")
    a(f"s_mov_b32 s{S_BARM}, 0")
    a(f"v_mov_b32 v{V_KA}, v{V_KA0}")
    a(f"v_mov_b32 v{V_M}, 0xff800000")
    a(f"s_mov_b32 s{S_IT}, 0")
    a.label("L_att_fbmax")
    a(f"ds_read_b128 {vr(K2B[0],4)}, v{V_KA} offset:{k2_off(0)}")
    for tt in range(4):
        a(f"ds_read_b128 {vr(KB[0],4)}, v{V_KA} offset:{k_off(tt)}")
        a("s_waitcnt lgkmcnt(0)")
        mfma32(a, SB[0], KB[0], Q1, None)
        mfma32(a, SB[0], K2B[0], Q2[tt], SB[0])
        a("s_nop 15")
        a("s_nop 3")
        max16(a, V_M, SB[0], False)
    a(f"v_add_u32 v{V_KA}, 10240, v{V_KA}")
    a(f"s_add_u32 s{S_IT}, s{S_IT}, 1")
    a(f"s_cmp_lt_u32 s{S_IT}, 16")
    a("s_cbranch_scc1 L_att_fbmax")
    cross_half_max(a, V_M)
    a(f"s_branch {lab_run}")
    a.label(lab_epi)
    t0, t1, t2, t3 = V_T0, V_T0 + 1, V_T0 + 2, V_T0 + 3
    a(f"v_mov_b32 v{t0}, v{OA+8}")
    a(f"v_mov_b32 v{t1}, v{OA+8}")
    a("s_nop 1")
    a(f"v_permlane32_swap_b32 v{t0}, v{t1}")
    a("s_nop 1")
    a(f"v_rcp_f32 v{t1}, v{t1}")
    a(f"s_lshr_b32 s{S_T}, s{S_WAVE}, 2")
    a(f"s_lshl_b32 s{S_T+1}, s{S_QB}, 1")
    a(f"s_add_u32 s{S_T}, s{S_T}, s{S_T+1}")
    a(f"s_lshl_b32 s{S_T}, s{S_T}, 6")
    a(f"s_and_b32 s{S_T+1}, s{S_WAVE}, 1")
    a(f"s_lshl_b32 s{S_T+1}, s{S_T+1}, 5")
    a(f"s_add_u32 s{S_T}, s{S_T}, s{S_T+1}")
    a(f"v_and_b32 v{t2}, 31, v{V_LANE}")
    a(f"v_add_u32 v{t2}, s{S_T}, v{t2}")
    a(f"s_bitcmp1_b32 s{S_WAVE}, 1")
    a("s_cbranch_scc0 L_att_direct")
    a(f"v_sub_u32 v{t3}, 2048, v{t2}")
    a(f"v_cmp_eq_u32 vcc, 0, v{t2}")
    a(f"v_mov_b32 v{t2}, 1024")
    a("s_nop 0")
    a(f"v_cndmask_b32 v{t2}, v{t3}, v{t2}, vcc")
    a.label("L_att_direct")
    a(f"v_lshrrev_b32 v{t3}, 4, v{t2}")
    a(f"v_mul_u32_u24 v{t3}, 20480, v{t3}")
    a(f"v_and_b32 v{t2}, 15, v{t2}")
    a(f"v_lshl_add_u32 v{t2}, v{t2}, 4, v{t3}")
    a(f"s_mul_i32 s{S_T+3}, s{S_HEAD}, 5")
    a(f"v_lshrrev_b32 v{t3}, 5, v{V_LANE}")
    a(f"v_add_u32 v{t3}, s{S_T+3}, v{t3}")
    a(f"v_lshrrev_b32 v{t0}, 1, v{t3}")
    a(f"v_lshl_add_u32 v{t2}, v{t0}, 8, v{t2}")
    a(f"v_and_b32 v{t3}, 1, v{t3}")
    a(f"v_lshl_add_u32 v{t2}, v{t3}, 3, v{t2}")
    for i in range(12):
        a(f"v_mul_f32 v{OA+i}, v{OA+i}, v{t1}")
    for i in range(6):
        a(f"v_cvt_pk_bf16_f32 v{PR+i}, v{OA+2*i}, v{OA+2*i+1}")
    a(f"buffer_store_dwordx2 {vr(PR,2)}, v{t2}, {sr(SRD_O,4)}, 0 offen")
    a(f"buffer_store_dwordx2 {vr(PR+2,2)}, v{t2}, {sr(SRD_O,4)}, 0 offen offset:256")
    a("s_mov_b64 exec, 0xffffffff")
    a(f"buffer_store_dwordx2 {vr(PR+4,2)}, v{t2}, {sr(SRD_O,4)}, 0 offen offset:512")
    if STAMP: a("s_waitcnt vmcnt(0)")
    stamp(a, 5)
    stamp_store(a, 8)
    a("s_endpgm")

def helper_dma(a):
    sA, sB = S_T, S_T + 1
    a(f"s_sub_u32 s{sA}, s{S_WAVE}, 8")
    a(f"s_lshl_b32 s{sA}, s{sA}, 10")
    a(f"v_lshlrev_b32 v2, 4, v{V_LANE}")
    def cnt(c): return (10 * (c + 1) + 3) // 4
    needs = [cnt(0)] + [cnt(BAR_POINTS[p]) for p in sorted(BAR_POINTS)]
    issue_upto = [min(40, n + AHEAD) for n in needs]
    issue_upto[-1] = 40
    n = 0
    for need, upto in zip(needs, issue_upto):
        while n < upto:
            x, y = (sA, sB) if n % 2 == 0 else (sB, sA)
            a(f"s_mov_b32 m0, s{x}")
            a(f"s_add_u32 s{y}, s{x}, 4096")
            a(f"buffer_load_dwordx4 v2, {sr(SRD_KV,4)}, s{x} offen lds")
            n += 1
        a(f"s_waitcnt vmcnt({n - need})")
        a("s_barrier")

def gen_k2(a, name, helper_extra=None):
    kernel_header(a, name)
    a("s_cmp_ge_u32 s2, 256")
    a("s_cbranch_scc1 L_k2_exit")
    a(f"s_load_dwordx2 {sr(S_WS,2)}, s[0:1], 88")
    a(f"s_load_dwordx2 s[68:69], s[0:1], 0")
    a(f"s_load_dwordx2 s[70:71], s[0:1], 16")
    a(f"s_load_dwordx4 s[72:75], s[0:1], 32")
    a(f"s_load_dwordx2 s[76:77], s[0:1], 64")
    stamp(a, 0)
    stamp_rt(a, 7)
    a(f"v_and_b32 v{V_LANE}, 63, v0")
    a(f"v_lshrrev_b32 v2, 6, v0")
    a("s_nop 0")
    a(f"v_readfirstlane_b32 s{S_WAVE}, v2")
    a(f"s_and_b32 s{S_T}, s2, 7")
    a(f"s_lshl_b32 s{S_T}, s{S_T}, 2")
    a(f"s_lshr_b32 s{S_T+1}, s2, 3")
    a(f"s_and_b32 s{S_T+1}, s{S_T+1}, 3")
    a(f"s_add_u32 s{S_HEAD}, s{S_T}, s{S_T+1}")
    a(f"s_lshr_b32 s{S_QB}, s2, 5")
    a(f"s_mul_i32 s{S_T}, s{S_HEAD}, {Q_HEAD_BYTES}")
    a(f"s_mul_i32 s{S_T+1}, s{S_HEAD}, {KV_HEAD_BYTES}")
    a(f"s_add_u32 s{S_T+1}, s{S_T+1}, {WS_KV}")
    a("s_waitcnt lgkmcnt(0)")
    make_srd(a, SRD_Q, S_WS, S_WS + 1, f"s{S_T}", Q_HEAD_BYTES)
    make_srd(a, SRD_KV, S_WS, S_WS + 1, f"s{S_T+1}", KV_HEAD_BYTES)
    make_srd(a, SRD_O, S_WS, S_WS + 1, WS_O, S * D * 2)
    if STAMP: make_srd(a, 96, S_WS, S_WS + 1, WS_O, 0x1000000)
    if helper_extra: helper_extra.setup(a)
    a(f"s_cmp_ge_u32 s{S_WAVE}, 8")
    a("s_cbranch_scc1 L_k2_helper")
    attention_wave(a)
    a.label("L_k2_helper")
    helper_dma(a)
    if helper_extra: helper_extra.body(a)
    a.label("L_k2_exit")
    a("s_endpgm")
```

```python
from common import *
import k2
from k2 import S_WAVE, S_T, S_WS, V_LANE, mfma32
import math, struct
def f32bits(x): return struct.unpack("<I", struct.pack("<f", x))[0]
OOB = 0x40000000
SRD_CS = 20; SRD_SS = 24; SRD_AE = 28; SRD_BO = 32; SRD_Y = 36; SRD_A = 40; SRD_B = 44; SRD_G = 48
ACCP = 8; ACCQ = 24; BUF = 40; DEPTH = 12; HPRIO = 0

def setup(a):
    make_srd(a, SRD_CS, 72, 73, 0, S * S * 2)
    make_srd(a, SRD_A, S_WS, S_WS + 1, WS_CP, 0x200000)
    make_srd(a, SRD_B, S_WS, S_WS + 1, WS_SP, 0x200000)
    make_srd(a, SRD_AE, S_WS, S_WS + 1, WS_AET, 11 * AEP_ET)
    make_srd(a, SRD_BO, S_WS, S_WS + 1, WS_BOT, 11 * AEP_ET)
    make_srd(a, SRD_Y, S_WS, S_WS + 1, WS_Y, S * D * 2)

def dft2(a):
    L = V_LANE
    sTT, sET, sN = S_T + 2, S_T + 3, S_T + 4
    a(f"s_lshr_b32 s{sN}, s2, 3")
    a(f"s_sub_u32 s{S_T}, s{S_WAVE}, 8")
    a(f"s_lshl_b32 s{S_T}, s{S_T}, 5")
    a(f"s_add_u32 s{sN}, s{sN}, s{S_T}")
    a(f"s_and_b32 s{S_T+1}, s2, 7")
    a(f"s_mul_i32 s{S_T}, s{sN}, 187")
    a(f"s_lshr_b32 s{S_T}, s{S_T}, 11")
    a(f"s_mul_i32 s{sET}, s{S_T}, 11")
    a(f"s_sub_u32 s{sET}, s{sN}, s{sET}")
    a(f"s_lshl_b32 s{sTT}, s{S_T+1}, 2")
    a(f"s_add_u32 s{sTT}, s{sTT}, s{S_T}")
    a(f"s_cmp_lt_u32 s{sN}, 44")
    a("s_cbranch_scc1 L_dft_go")
    a(f"s_mov_b32 s{sTT}, 32")
    a(f"s_mov_b32 s{sET}, s{S_T+1}")
    a(f"s_cmp_eq_u32 s{sN}, 44")
    a("s_cbranch_scc1 L_dft_go")
    a(f"s_add_u32 s{sET}, s{S_T+1}, 8")
    a(f"s_cmp_lg_u32 s{sN}, 45")
    a("s_cbranch_scc1 L_k2_exit")
    a(f"s_cmp_ge_u32 s{S_T+1}, 3")
    a("s_cbranch_scc1 L_k2_exit")
    a.label("L_dft_go")
    if HPRIO: a(f"s_setprio {HPRIO}")
    k2.stamp(a, 1)
    vA, vB, vE, vH, vt = 2, 3, 4, 5, 6
    a(f"v_and_b32 v{vt}, 31, v{L}")
    a(f"v_lshrrev_b32 v{vH}, 5, v{L}")
    a(f"s_lshl_b32 s{S_T}, s{sTT}, 5")
    a(f"v_add_u32 v{vA}, s{S_T}, v{vt}")
    a(f"v_lshlrev_b32 v{vA}, 12, v{vA}")
    a(f"v_lshl_add_u32 v{vA}, v{vH}, 4, v{vA}")
    a(f"s_lshl_b32 s{S_T+1}, s{sET}, 5")
    a(f"v_add_u32 v{vE}, s{S_T+1}, v{vt}")
    a(f"s_mul_i32 s{S_T+7}, s{sET}, {AEP_ET}")
    a(f"v_lshlrev_b32 v{vB}, 4, v{L}")
    a(f"s_cmp_eq_u32 s{sTT}, 32")
    a("s_cbranch_scc1 L_dft_slow")
    a(f"s_lshl_b32 s{S_T+5}, s{sTT}, 16")
    def run(steps, packedA):
        def loads(i):
            sa, sb, ks, _ = steps[i]
            b = BUF + 8 * (i % DEPTH)
            if ks % 4 == 0:
                a(f"s_add_u32 s{S_T+6}, s{S_T+7}, {ks*1024}")
                if packedA: a(f"s_add_u32 s{S_T+4}, s{S_T+5}, {ks*1024}")
            if packedA:
                a(f"buffer_load_dwordx4 {vr(b,4)}, v{vB}, {sr(sa,4)}, s{S_T+4} offen offset:{(ks%4)*1024}")
            else:
                a(f"buffer_load_dwordx4 {vr(b,4)}, v{vA}, {sr(sa,4)}, 0 offen offset:{ks*32}")
            a(f"buffer_load_dwordx4 {vr(b+4,4)}, v{vB}, {sr(sb,4)}, s{S_T+6} offen offset:{(ks%4)*1024}")
        for i in range(DEPTH): loads(i)
        n = len(steps)
        for i in range(n):
            out = min(n, i + DEPTH) - (i + 1)
            a(f"s_waitcnt vmcnt({2*out})")
            b = BUF + 8 * (i % DEPTH)
            acc = steps[i][3]
            mfma32(a, acc, b, b + 4, None if steps[i][2] == 0 else acc)
            if i + DEPTH < n: loads(i + DEPTH)
    a(f"v_lshlrev_b32 v7, 4, v{vt}")
    a(f"s_add_u32 s{S_T+6}, s{S_T+7}, {64*1024}")
    a(f"buffer_load_ushort v7, v7, {sr(SRD_AE,4)}, s{S_T+6} offen")
    run([(SRD_A, SRD_AE, ks, ACCP) for ks in range(64)] + [(SRD_B, SRD_BO, ks, ACCQ) for ks in range(64)], True)
    a(f"v_lshlrev_b32 v7, 16, v7")
    a("s_nop 7")
    for r in range(16):
        a(f"v_{'add' if r % 2 == 0 else 'sub'}_f32 v{ACCP+r}, v{ACCP+r}, v7")
    a("s_branch L_dft_fin")
    a.label("L_dft_slow")
    for r in range(16): a(f"v_mov_b32 v{ACCQ+r}, 0")
    run([(SRD_CS, SRD_AE, ks, ACCP) for ks in range(65)], False)
    a.label("L_dft_fin")
    k2.stamp(a, 2)
    aDD, aDM, aMD, aMM = 40, 41, 42, 43
    t0, t1, t2 = 44, 45, 46
    a(f"v_lshlrev_b32 v{t0}, 1, v{vE}")
    a(f"v_sub_u32 v{t1}, 1280, v{t0}")
    a(f"v_mov_b32 v{t2}, {OOB}")
    a(f"v_cmp_lt_u32 vcc, 320, v{vE}")
    a(f"v_add_u32 v47, -1, v{vE}")
    a("s_nop 0")
    a(f"v_cndmask_b32 v{t0}, v{t0}, v{t2}, vcc")
    a(f"v_cmp_lt_u32 vcc, 318, v47")
    a(f"v_lshl_add_u32 v48, v{vH}, 2, s{S_T}")
    a("s_nop 0")
    a(f"v_cndmask_b32 v{t1}, v{t1}, v{t2}, vcc")
    for r in range(16):
        a(f"v_cndmask_b32 v{ACCQ+r}, v{ACCQ+r}, 0, vcc")
    a(f"v_mul_u32_u24 v49, 1280, v48")
    a(f"v_sub_u32 v50, {(2048-27)*1280}, v49")
    a(f"v_add_u32 v{aDD}, v49, v{t0}")
    a(f"v_add_u32 v{aDM}, v49, v{t1}")
    a(f"v_add_u32 v{aMD}, v50, v{t0}")
    a(f"v_add_u32 v{aMM}, v50, v{t1}")
    a(f"s_cmp_eq_u32 s{sTT}, 32")
    a("s_cbranch_scc1 L_dft_edge")
    for r in range(16):
        c = 8 * (r // 4) + r % 4
        p = 52 + (r % 8)
        a(f"v_sub_f32 v60, v{ACCP+r}, v{ACCQ+r}")
        a(f"v_add_f32 v61, v{ACCP+r}, v{ACCQ+r}")
        a(f"s_movk_i32 s{S_T+5}, {c*1280 if c*1280 < 32768 else 0}" if c * 1280 < 32768 else f"s_mov_b32 s{S_T+5}, {c*1280}")
        a(f"v_cvt_pk_bf16_f32 v{p}, v60, v61")
        a(f"s_mov_b32 s{S_T+6}, {(27-c)*1280}")
        a(f"buffer_store_short v{p}, v{aDD}, {sr(SRD_Y,4)}, s{S_T+5} offen")
        a(f"buffer_store_short_d16_hi v{p}, v{aDM}, {sr(SRD_Y,4)}, s{S_T+5} offen")
        a(f"buffer_store_short_d16_hi v{p}, v{aMD}, {sr(SRD_Y,4)}, s{S_T+6} offen")
        a(f"buffer_store_short v{p}, v{aMM}, {sr(SRD_Y,4)}, s{S_T+6} offen")
    k2.stamp(a, 3)
    if k2.STAMP: a("s_waitcnt vmcnt(0)")
    k2.stamp(a, 4)
    k2.stamp_store(a, 8)
    a("s_endpgm")
    a.label("L_dft_edge")
    a("s_mov_b64 exec, 0xffffffff")
    a(f"v_sub_f32 v60, v{ACCP}, v{ACCQ}")
    a(f"v_add_f32 v61, v{ACCP}, v{ACCQ}")
    a("s_nop 0")
    a(f"v_cvt_pk_bf16_f32 v52, v60, v61")
    a(f"buffer_store_short v52, v{aDD}, {sr(SRD_Y,4)}, 0 offen")
    a(f"buffer_store_short_d16_hi v52, v{aDM}, {sr(SRD_Y,4)}, 0 offen")
    a("s_endpgm")

def gate(a):
    L = V_LANE
    make_srd(a, SRD_A, 68, 69, 0, S * D * 2)
    make_srd(a, SRD_B, 76, 77, 0, D * 2)
    make_srd(a, SRD_G, S_WS, S_WS + 1, WS_G, S * 4)
    a(f"v_lshrrev_b32 v2, 3, v{L}")
    a(f"v_and_b32 v3, 7, v{L}")
    a(f"s_lshl_b32 s{S_T}, s2, 3")
    a(f"v_add_u32 v2, s{S_T}, v2")
    a(f"v_mul_u32_u24 v4, 160, v3")
    a(f"v_mul_u32_u24 v5, 1280, v2")
    a(f"v_add_u32 v5, v5, v4")
    for i in range(10):
        a(f"buffer_load_dwordx4 {vr(8+4*i,4)}, v5, {sr(SRD_A,4)}, 0 offen offset:{16*i}")
        a(f"buffer_load_dwordx4 {vr(48+4*i,4)}, v4, {sr(SRD_B,4)}, 0 offen offset:{16*i}")
    a("v_mov_b32 v6, 0")
    a("v_mov_b32 v7, 0")
    a("s_waitcnt vmcnt(0)")
    for i in range(40):
        d = 6 + (i % 2)
        a(f"v_dot2_f32_bf16 v{d}, v{8+i}, v{48+i}, v{d}")
    a("s_nop 3")
    a("v_add_f32 v6, v6, v7")
    a("s_nop 1")
    a("v_add_f32_dpp v6, v6, v6 quad_perm:[1,0,3,2] row_mask:0xf bank_mask:0xf")
    a("s_nop 1")
    a("v_add_f32_dpp v6, v6, v6 quad_perm:[2,3,0,1] row_mask:0xf bank_mask:0xf")
    a("s_nop 1")
    a("v_add_f32_dpp v6, v6, v6 row_half_mirror row_mask:0xf bank_mask:0xf")
    a(f"v_mul_f32 v6, {f32bits(-math.log2(math.e))}, v6")
    a("v_exp_f32 v6, v6")
    a("s_nop 0")
    a("v_add_f32 v6, 1.0, v6")
    a("v_rcp_f32 v6, v6")
    a("v_lshlrev_b32 v2, 2, v2")
    a("v_cmp_eq_u32 vcc, 0, v3")
    a("s_and_saveexec_b64 s[66:67], vcc")
    a(f"buffer_store_dword v6, v2, {sr(SRD_G,4)}, 0 offen")
    a("s_endpgm")

def wopack(a):
    L = V_LANE
    make_srd(a, SRD_A, 70, 71, 0, D * D * 2)
    make_srd(a, SRD_B, S_WS, S_WS + 1, WS_WOT, 800 * 1024)
    a(f"v_and_b32 v2, 15, v{L}")
    a(f"v_lshrrev_b32 v3, 4, v{L}")
    a(f"v_mul_u32_u24 v3, {8*1280}, v3")
    a(f"v_lshl_add_u32 v3, v2, 1, v3")
    a(f"v_add_u32 v4, 5120, v3")
    a(f"v_lshlrev_b32 v5, 4, v{L}")
    for m in range(4):
        a(f"s_add_u32 s{S_T}, s2, {256*m}")
        a(f"s_mul_i32 s{S_T+1}, s{S_T}, 3277")
        a(f"s_lshr_b32 s{S_T+1}, s{S_T+1}, 16")
        a(f"s_mul_i32 s{S_T+2}, s{S_T+1}, 20")
        a(f"s_sub_u32 s{S_T+2}, s{S_T}, s{S_T+2}")
        a(f"s_mul_i32 s{S_T+2}, s{S_T+2}, {32*1280}")
        a(f"s_lshl_b32 s{S_T+1}, s{S_T+1}, 5")
        a(f"s_add_u32 s{S_T+2}, s{S_T+2}, s{S_T+1}")
        a(f"s_lshl_b32 s{S_T+3+m}, s{S_T}, 10")
        for jj in range(8):
            r = 24 + 8 * m + jj
            a(f"buffer_load_ushort v{r}, v{3 if jj < 4 else 4}, {sr(SRD_A,4)}, s{S_T+2} offen offset:{(jj%4)*1280}")
    a("s_waitcnt vmcnt(0)")
    for m in range(4):
        for q in range(4):
            a(f"v_lshl_or_b32 v{8+4*m+q}, v{24+8*m+2*q+1}, 16, v{24+8*m+2*q}")
        a(f"buffer_store_dwordx4 {vr(8+4*m,4)}, v5, {sr(SRD_B,4)}, s{S_T+3+m} offen")
    a("s_endpgm")

def body(a):
    a(f"s_cmp_eq_u32 s{S_WAVE}, 10")
    a("s_cbranch_scc1 L_k2_gate")
    a(f"s_cmp_eq_u32 s{S_WAVE}, 11")
    a("s_cbranch_scc1 L_k2_wopack")
    dft2(a)
    a.label("L_k2_gate")
    gate(a)
    a.label("L_k2_wopack")
    wopack(a)
```

```python
from common import *
S_WS = 4; S_OUT = 6
SRD_O = 8; SRD_W = 12; SRD_Y = 16; SRD_G = 20; SRD_OUT = 24
S_WAVE = 36; S_RB = 37; S_CB = 38; S_T = 44
V_LANE = 1
ACC = 160
BUF = 16
def acc(a_, ct): return ACC + (a_ * 5 + ct) * 4

STAMP = False
def stamp(a, idx):
    if STAMP: a(f"s_memtime s[{70+2*idx}:{71+2*idx}]")
def stamp_store(a, n=8):
    if not STAMP: return
    a("s_waitcnt vmcnt(0)")
    stamp(a, n - 1)
    a("s_waitcnt lgkmcnt(0)")
    a(f"s_lshl_b32 s{S_T}, s2, 4")
    a(f"s_add_u32 s{S_T}, s{S_T}, s{S_WAVE}")
    a(f"s_lshl_b32 s{S_T}, s{S_T}, 6")
    a(f"v_mov_b32 v2, 0")
    for i in range(n):
        a(f"v_mov_b32 v3, s{70+2*i}")
        a(f"buffer_store_dword v3, v2, s[96:99], s{S_T} offen offset:{4*i}")
def gen_k3(a, name):
    L = V_LANE
    kernel_header(a, name)
    a("s_cmp_ge_u32 s2, 256")
    a("s_cbranch_scc1 L_k3_exit")
    a(f"s_load_dwordx2 {sr(S_WS,2)}, s[0:1], 88")
    a(f"s_load_dwordx2 {sr(S_OUT,2)}, s[0:1], 72")
    stamp(a, 0)
    a(f"v_and_b32 v{L}, 63, v0")
    a(f"v_lshrrev_b32 v2, 6, v0")
    a("s_nop 0")
    a(f"v_readfirstlane_b32 s{S_WAVE}, v2")
    a(f"s_and_b32 s{S_T}, s2, 3")
    a(f"s_lshl_b32 s{S_T}, s{S_T}, 3")
    a(f"s_bfe_u32 s{S_T+1}, s2, 0x30003")
    a(f"s_add_u32 s{S_RB}, s{S_T}, s{S_T+1}")
    a(f"s_and_b32 s{S_T}, s2, 4")
    a(f"s_lshr_b32 s{S_T+1}, s2, 6")
    a(f"s_add_u32 s{S_CB}, s{S_T}, s{S_T+1}")
    a(f"v_and_b32 v2, 15, v{L}")
    a(f"v_lshrrev_b32 v3, 4, v{L}")
    a(f"s_lshl_b32 s{S_T}, s{S_RB}, 6")
    a(f"v_add_u32 v4, s{S_T}, v2")
    a(f"v_mul_u32_u24 v4, 1280, v4")
    a(f"s_mul_i32 s{S_T+2}, s{S_RB}, {4*20480}")
    a(f"s_mul_i32 s{S_T+8}, s{S_WAVE}, 5120")
    a(f"s_add_u32 s{S_T+2}, s{S_T+2}, s{S_T+8}")
    a(f"v_lshlrev_b32 v9, 4, v{L}")
    a(f"s_mul_i32 s{S_T+3}, s{S_CB}, {100*1024}")
    a(f"s_mul_i32 s{S_T+4}, s{S_WAVE}, {5*1024}")
    a(f"s_add_u32 s{S_T+3}, s{S_T+3}, s{S_T+4}")
    a(f"s_mul_i32 s{S_T+5}, s{S_WAVE}, {16*1280}")
    a(f"s_mul_i32 s{S_T+6}, s{S_CB}, 160")
    a(f"s_add_u32 s{S_T+5}, s{S_T+5}, s{S_T+6}")
    a(f"v_lshl_add_u32 v10, v3, 3, v4")
    a(f"v_add_u32 v10, s{S_T+5}, v10")
    a(f"s_lshl_b32 s{S_T+6}, s{S_WAVE}, 4")
    a(f"s_add_u32 s{S_T+6}, s{S_T+6}, s{S_T}")
    a(f"v_add_u32 v11, s{S_T+6}, v2")
    a(f"v_lshlrev_b32 v11, 2, v11")
    a("s_waitcnt lgkmcnt(0)")
    make_srd(a, SRD_O, S_WS, S_WS + 1, WS_O, S * D * 2)
    make_srd(a, SRD_W, S_WS, S_WS + 1, WS_WOT, 800 * 1024)
    make_srd(a, SRD_Y, S_WS, S_WS + 1, WS_Y, S * D * 2)
    make_srd(a, SRD_G, S_WS, S_WS + 1, WS_G, S * 4)
    make_srd(a, SRD_OUT, S_OUT, S_OUT + 1, 0, S * D * 2)
    if STAMP: make_srd(a, 96, S_WS, S_WS + 1, 0x2100000, 0x100000)
    stamp(a, 1)
    def loads(ks):
        b = BUF + 36 * (ks % 4)
        for a_ in range(4):
            a(f"s_add_u32 s{S_T+7}, s{S_T+2}, {a_*20480 + ks*1024}")
            a(f"buffer_load_dwordx4 {vr(b+4*a_,4)}, v9, {sr(SRD_O,4)}, s{S_T+7} offen")
        for ct in range(5):
            a(f"s_add_u32 s{S_T+7}, s{S_T+3}, {ct*20*1024 + ks*1024}")
            a(f"buffer_load_dwordx4 {vr(b+16+4*ct,4)}, v9, {sr(SRD_W,4)}, s{S_T+7} offen")
    for ks in range(4): loads(ks)
    def mm(ks):
        b = BUF + 36 * (ks % 4)
        for ct in range(5):
            for a_ in range(4):
                c = "0" if ks == 0 else vr(acc(a_, ct), 4)
                a(f"v_mfma_f32_16x16x32_bf16 {vr(acc(a_,ct),4)}, {vr(b+16+4*ct,4)}, {vr(b+4*a_,4)}, {c}")
    stamp(a, 2)
    a("s_waitcnt vmcnt(27)")
    stamp(a, 3)
    mm(0)
    loads(4)
    a("s_waitcnt vmcnt(27)")
    mm(1)
    YR = 52
    for ct in range(5):
        a(f"buffer_load_dwordx2 {vr(YR+2*ct,2)}, v10, {sr(SRD_Y,4)}, 0 offen offset:{32*ct}")
    a(f"buffer_load_dword v{YR+10}, v11, {sr(SRD_G,4)}, 0 offen")
    a("s_waitcnt vmcnt(24)")
    mm(2)
    a("s_waitcnt vmcnt(15)")
    mm(3)
    a("s_waitcnt vmcnt(6)")
    mm(4)
    stamp(a, 4)
    a(f"s_mul_i32 s{S_T+8}, s{S_WAVE}, 20480")
    a(f"v_add_u32 v12, s{S_T+8}, v9")
    a(f"s_mul_i32 s{S_T+9}, s{S_WAVE}, 5120")
    a(f"v_add_u32 v13, s{S_T+9}, v9")
    a(f"v_add_u32 v14, 40960, v13")
    a("s_nop 4")
    for a_ in range(4):
        for ct in range(5):
            a(f"ds_write_b128 v12, {vr(acc(a_,ct),4)} offset:{a_*5120 + ct*1024}")
    a("s_waitcnt lgkmcnt(0)")
    a("s_barrier")
    RB_ = 88
    for src in range(4):
        for ct in range(5):
            dst = (RB_ + (src * 5 + ct) * 4) if src < 3 else (ACC + ct * 4)
            a(f"ds_read_b128 {vr(dst,4)}, v{13 + src//2} offset:{(src%2)*20480 + ct*1024}")
    a("s_waitcnt vmcnt(0) lgkmcnt(0)")
    stamp(a, 5)
    for ct in range(5):
        for r in range(4):
            d = ACC + ct * 4 + r
            a(f"v_add_f32 v{d}, v{d}, v{RB_+ct*4+r}")
            a(f"v_add_f32 v{RB_+20+ct*4+r}, v{RB_+20+ct*4+r}, v{RB_+40+ct*4+r}")
        for r in range(4):
            d = ACC + ct * 4 + r
            a(f"v_add_f32 v{d}, v{d}, v{RB_+20+ct*4+r}")
        y0, y1 = YR + 2 * ct, YR + 2 * ct + 1
        t = 16 + 4 * ct
        a(f"v_lshlrev_b32 v{t}, 16, v{y0}")
        a(f"v_and_b32 v{t+1}, 0xffff0000, v{y0}")
        a(f"v_lshlrev_b32 v{t+2}, 16, v{y1}")
        a(f"v_and_b32 v{t+3}, 0xffff0000, v{y1}")
        for r in range(4):
            d = ACC + ct * 4 + r
            a(f"v_sub_f32 v{d}, v{d}, v{t+r}")
            a(f"v_fma_f32 v{d}, v{d}, v{YR+10}, v{t+r}")
        d = ACC + ct * 4
        a(f"v_cvt_pk_bf16_f32 v{40+2*ct}, v{d}, v{d+1}")
        a(f"v_cvt_pk_bf16_f32 v{41+2*ct}, v{d+2}, v{d+3}")
        a(f"buffer_store_dwordx2 {vr(40+2*ct,2)}, v10, {sr(SRD_OUT,4)}, 0 offen offset:{32*ct}")
    stamp(a, 6)
    stamp_store(a)
    a.label("L_k3_exit")
    a("s_endpgm")
```

```python
from common import *
import math, struct

STAGE = 36864; WOFF = 16384; NSLOT = 4; NST = 10
S_X = 24; S_W = 26; S_DRE = 28; S_DIM = 30; S_WS = 32
SRD_X = 8; SRD_W = 12; SRD_SQ = 16; SRD_WS = 20
S_WAVE = 36; S_B = 37; S_CG = 38; S_I = 39; S_J = 40; S_WSTR = 41; S_WCOL = 42
S_T = 44
S_SX = 61; S_SW = 62; S_WSTEP = 63; S_DELTA = 64; S_CNT = 65; S_SLOT = 66
V_LANE = 1
QSCALE = math.log2(math.e) / math.sqrt(20.0)
def f32bits(x): return struct.unpack("<I", struct.pack("<f", x))[0]
OOB = 0x40000000
STAMP = False
def stamp(a, idx):
    if STAMP: a(f"s_memtime s[{70+2*idx}:{71+2*idx}]")
def stamp_store(a, n=12):
    if not STAMP: return
    a("s_waitcnt vmcnt(0)")
    stamp(a, n - 1)
    a("s_waitcnt lgkmcnt(0)")
    a("s_mov_b64 exec, -1")
    a(f"s_lshl_b32 s{S_T}, s2, 4")
    a(f"s_add_u32 s{S_T}, s{S_T}, s{S_WAVE}")
    a(f"s_lshl_b32 s{S_T}, s{S_T}, 6")
    a(f"v_mov_b32 v2, 0")
    for i in range(n):
        a(f"v_mov_b32 v3, s{70+2*i}")
        a(f"buffer_store_dword v3, v2, s[96:99], s{S_T} offen offset:{4*i}")

STF = ' sc1'
ROT = 1
PACK0 = 3
XMAP = 0
S_KST = 69
NDMA = 9
def loader(a):
    VX, VW = 20, 24
    L = V_LANE
    a(f"s_sub_u32 s{S_J}, s{S_WAVE}, 4")
    if ROT == 0: a(f"s_mov_b32 s{S_KST}, 0")
    else:
        if ROT == 1: a(f"s_mov_b32 s{S_KST}, s{S_CG}")
        elif ROT == 2: a(f"s_add_u32 s{S_KST}, s{S_CG}, s{S_B}")
        elif ROT == 3: a(f"s_mul_i32 s{S_KST}, s{S_CG}, 3")
        elif ROT == 4: a(f"s_mov_b32 s{S_KST}, s{S_B}")
        a(f"s_mul_i32 s{S_T}, s{S_KST}, 205")
        a(f"s_lshr_b32 s{S_T}, s{S_T}, 11")
        a(f"s_mul_i32 s{S_T}, s{S_T}, 10")
        a(f"s_sub_u32 s{S_KST}, s{S_KST}, s{S_T}")
    a(f"v_lshrrev_b32 v2, 3, v{L}")
    a(f"v_and_b32 v3, 7, v{L}")
    a(f"v_lshrrev_b32 v4, 4, v{L}")
    a(f"v_xor_b32 v3, v3, v4")
    a(f"s_lshl_b32 s{S_T}, s{S_B}, 6")
    a(f"s_and_b32 s{S_T+1}, s{S_J}, 1")
    a(f"s_lshl_b32 s{S_T+1}, s{S_T+1}, 5")
    a(f"s_add_u32 s{S_T}, s{S_T}, s{S_T+1}")
    a(f"v_add_u32 v5, s{S_T}, v2")
    a(f"s_cmp_ge_u32 s{S_J}, 2")
    a(f"s_movk_i32 s{S_T+2}, 1280")
    a(f"s_cselect_b32 s{S_T+2}, {(-1280) & 0xffffffff}, s{S_T+2}")
    a(f"s_cselect_b32 s{S_T+3}, {2048*1280}, 0")
    a(f"v_mul_lo_u32 v6, v5, s{S_T+2}")
    a(f"v_add_u32 v6, s{S_T+3}, v6")
    a(f"s_lshl_b32 s{S_T+2}, s{S_T+2}, 3")
    a(f"v_lshl_add_u32 v{VX}, v3, 4, v6")
    a(f"v_xor_b32 v3, 4, v3")
    a(f"v_add_u32 v6, s{S_T+2}, v6")
    a(f"v_lshl_add_u32 v{VX+1}, v3, 4, v6")
    a(f"s_lshl_b32 s{S_T+2}, s{S_T+2}, 1")
    a(f"v_add_u32 v{VX+2}, s{S_T+2}, v{VX}")
    a(f"v_add_u32 v{VX+3}, s{S_T+2}, v{VX+1}")
    a(f"v_subrev_u32 v7, {1024*1280}, v{VX}")
    a(f"v_cmp_le_u32 vcc, {2048*1280}, v{VX}")
    a(f"s_lshl_b32 s{S_T+4}, s{S_J}, 12")
    a(f"s_mul_i32 s{S_T+5}, s{S_J}, 5120")
    a(f"v_cndmask_b32 v{VX}, v{VX}, v7, vcc")
    a(f"s_add_u32 s{S_T+5}, s{S_T+5}, {WOFF}")
    def issue_x(stage):
        slot = (stage % NSLOT) * STAGE
        a(f"s_lshl_b32 s{S_SX}, s{S_KST}, 7")
        for t in range(4):
            a(f"s_add_u32 m0, s{S_T+4}, {slot + t*1024}")
            a("s_nop 0")
            a(f"buffer_load_dwordx4 v{VX+t}, {sr(SRD_X,4)}, s{S_SX} offen lds")
    def issue_w(stage):
        slot = (stage % NSLOT) * STAGE
        a(f"s_mul_i32 s{S_SW}, s{S_WSTEP}, s{S_KST}")
        for t in range(5):
            a(f"s_add_u32 m0, s{S_T+5}, {slot + t*1024}")
            a("s_nop 0")
            a(f"buffer_load_dwordx4 v{VW+t}, {sr(SRD_W,4)}, s{S_SW} offen lds")
        a(f"s_add_u32 s{S_KST}, s{S_KST}, 1")
        a(f"s_cmp_eq_u32 s{S_KST}, {NST}")
        a(f"s_cselect_b32 s{S_KST}, 0, s{S_KST}")
    stamp(a, 1)
    issue_x(0)
    a(f"s_mul_i32 s{S_T+6}, s{S_J}, 320")
    a(f"s_movk_i32 s{S_T+7}, 3277")
    for t in range(5):
        a(f"v_add_u32 v2, s{S_T+6}, v{L}")
        if t: a(f"v_add_u32 v2, {64*t}, v2")
        a(f"v_mul_u32_u24 v3, s{S_T+7}, v2")
        a(f"v_lshrrev_b32 v3, 16, v3")
        a(f"v_mul_u32_u24 v4, 20, v3")
        a(f"v_sub_u32 v4, v2, v4")
        a(f"v_bfe_u32 v5, v3, 3, 1")
        a(f"v_lshlrev_b32 v5, 1, v5")
        a(f"v_xor_b32 v4, v4, v5")
        a(f"v_mul_lo_u32 v6, v3, s{S_WSTR}")
        a(f"v_lshl_add_u32 v6, v4, 4, v6")
        a(f"v_add_u32 v{VW+t}, s{S_WCOL}, v6")
    issue_w(0)
    issue_x(1); issue_w(1)
    a(f"v_and_b32 v2, 15, v{L}")
    a(f"s_lshl_b32 s{S_T+6}, s{S_J}, 4")
    a(f"v_add_u32 v4, s{S_T+6}, v2")
    a(f"v_bfe_u32 v5, v4, 3, 1")
    a(f"v_mul_u32_u24 v30, 320, v4")
    a(f"v_lshl_add_u32 v30, v5, 5, v30")
    a(f"v_add_u32 v30, {WOFF}, v30")
    a(f"v_and_b32 v6, 1, v4")
    a(f"v_lshlrev_b32 v6, 15, v6")
    a(f"v_or_b32 v31, 0x3f80, v6")
    def patch(stage):
        lab = a.newlabel("nopatch")
        a(f"s_cmp_lg_u32 s{S_CG}, 14")
        a(f"s_cbranch_scc1 {lab}")
        a("s_mov_b64 exec, 0xffff")
        slot = (stage % NSLOT) * STAGE
        a(f"v_add_u32 v2, {slot}, v30")
        a(f"ds_write_b16 v2, v31")
        a("s_mov_b64 exec, -1")
        a("s_waitcnt lgkmcnt(0)")
        a.label(lab)
    stamp(a, 2)
    issued = 2
    ops = [0] * NDMA + [1] * NDMA
    for n in range(NST):
        last = max(i for i, t in enumerate(ops) if t == n)
        a(f"s_waitcnt vmcnt({len(ops) - 1 - last})")
        patch(n)
        if n in (0, 1, 2, 5, 9): stamp(a, {0:3, 1:4, 2:5, 5:6, 9:7}[n])
        a("s_barrier")
        k = 2 if n == 0 else 1
        for _ in range(k):
            if issued < NST:
                issue_x(issued); issue_w(issued); ops += [issued] * NDMA; issued += 1
        if n == 1: copy_setup(a)
        if n == PACK0 - 1: pack_setup(a)
        if PACK0 <= n < PACK0 + 4:
            pack_frag(a, n - PACK0); ops.append(-1)
    copy_out(a)

ACC = 96
FS = [20, 56]
V_XA = [2, 3]
V_WA = [4, 5]
VE = 8

def acc(a_, ct): return ACC + (a_ * 5 + ct) * 4

def frag_reads(ks, fs):
    r = []
    xs = []
    for a_ in range(4):
        rt_rel = (a_ & 1) + 4 * (a_ >> 1)
        xs.append(f"ds_read_b128 {vr(fs+4*a_,4)}, v{V_XA[ks]} offset:{rt_rel*2048}")
    ws = []
    for ct in range(5):
        for h2 in range(2):
            krow = 4 * h2 + 32 * ks
            ws.append(f"ds_read_b64_tr_b16 {vr(fs+16+4*ct+2*h2,2)}, v{V_WA[ct%2]} offset:{krow*320 + ct*32}")
    return ws[:2] + xs + ws[2:]

def mfmas(tr, fs):
    r = []
    for ct in range(5):
        for a_ in range(4):
            X = vr(fs + 4 * a_, 4); W = vr(fs + 16 + 4 * ct, 4)
            A, B = (W, X) if tr else (X, W)
            r.append(f"v_mfma_f32_16x16x32_bf16 {vr(acc(a_,ct),4)}, {A}, {B}, {vr(acc(a_,ct),4)}")
    return r

def interleave(a, ms, rs):
    k = 0
    for m in ms:
        a(m)
        if k < len(rs):
            a(rs[k]); k += 1
    while k < len(rs):
        a(rs[k]); k += 1

def compute_setup(a):
    L = V_LANE
    t = VE
    a(f"v_and_b32 v{t}, 15, v{L}")
    a(f"v_lshrrev_b32 v{t+1}, 4, v{L}")
    a(f"v_lshrrev_b32 v{t+2}, 1, v{t}")
    a(f"v_xor_b32 v{t+3}, v{t+1}, v{t+2}")
    a(f"s_lshl_b32 s{S_T}, s{S_I}, 12")
    a(f"v_lshlrev_b32 v{t+4}, 7, v{t}")
    a(f"v_add_u32 v{t+4}, s{S_T}, v{t+4}")
    a(f"v_lshl_add_u32 v{V_XA[0]}, v{t+3}, 4, v{t+4}")
    a(f"v_xor_b32 v{V_XA[1]}, 64, v{V_XA[0]}")
    a(f"v_lshrrev_b32 v{t+2}, 2, v{t}")
    a(f"v_and_b32 v{t+3}, 3, v{t}")
    a(f"v_lshl_add_u32 v{t+4}, v{t+1}, 3, v{t+2}")
    a(f"v_mul_u32_u24 v{t+4}, 320, v{t+4}")
    a(f"v_lshl_add_u32 v{t+4}, v{t+3}, 3, v{t+4}")
    a(f"s_mul_i32 s{S_T}, s{S_J}, 160")
    a(f"s_add_u32 s{S_T}, s{S_T}, {WOFF}")
    a(f"v_add_u32 v{t+4}, s{S_T}, v{t+4}")
    a(f"v_and_b32 v{t+5}, 1, v{t+1}")
    a(f"v_lshlrev_b32 v{t+5}, 5, v{t+5}")
    a(f"v_add_u32 v{t+6}, v{t+4}, v{t+5}")
    a(f"v_sub_u32 v{t+7}, v{t+4}, v{t+5}")
    a(f"s_cmp_eq_u32 s{S_J}, 0")
    a(f"s_cselect_b64 vcc, -1, 0")
    a(f"v_cndmask_b32 v{V_WA[0]}, v{t+7}, v{t+6}, vcc")
    a(f"v_cndmask_b32 v{V_WA[1]}, v{t+6}, v{t+7}, vcc")
    for r in range(92):
        a(f"v_mov_b32 v{ACC+r}, 0")
    a(f"s_mov_b32 s{S_CNT}, 0")
    a(f"s_mov_b32 s{S_SLOT}, 0")

def pack_setup(a):
    L = V_LANE
    a(f"s_lshl_b32 s{S_T+8}, s2, 2")
    a(f"s_add_u32 s{S_T+8}, s{S_T+8}, s{S_J}")
    a(f"s_bfe_u32 s{S_T+9}, s{S_T+8}, 0x50004")
    a(f"s_and_b32 s{S_T+10}, s{S_T+8}, 15")
    a(f"s_lshl_b32 s{S_T+9}, s{S_T+9}, 5")
    a(f"s_lshl_b32 s{S_T+10}, s{S_T+10}, 6")
    a(f"v_and_b32 v60, 31, v{L}")
    a(f"v_add_u32 v60, s{S_T+9}, v60")
    a(f"v_lshrrev_b32 v61, 5, v{L}")
    a(f"v_lshl_add_u32 v61, v61, 3, s{S_T+10}")
    a(f"v_mul_u32_u24 v62, v60, v61")
    a(f"v_and_b32 v62, 2047, v62")
    a(f"v_cvt_f32_u32 v62, v62")
    a(f"v_cvt_f32_u32 v63, v60")
    a(f"s_mov_b32 s{S_T+11}, {f32bits(1.0/2048)}")
    a(f"v_mul_f32 v62, s{S_T+11}, v62")
    a(f"v_mul_f32 v63, s{S_T+11}, v63")
    a(f"v_mul_f32 v64, 8.0, v63") if False else a(f"v_ldexp_f32 v64, v63, 3")
    a(f"s_cmp_lt_u32 s2, 128")
    a(f"s_cselect_b32 s{S_T+12}, 0, {f32bits(0.25)}")
    a(f"v_add_f32 v62, s{S_T+12}, v62")
    a(f"s_lshl_b32 s{S_T+14}, s{S_T+8}, 12")
    a(f"s_add_u32 s{S_T+14}, s{S_T+14}, {WS_CP}")
    a(f"v_lshlrev_b32 v65, 4, v{L}")
def pack_frag(a, ksq):
    for j in range(8):
        a(f"v_fract_f32 v62, v62")
        a(f"v_cos_f32 v{66+j}, v62")
        a(f"v_add_f32 v62, v62, v63")
    a(f"v_add_f32 v62, v62, v64")
    for q in range(4):
        a(f"v_cvt_pk_bf16_f32 v{40+4*ksq+q}, v{66+2*q}, v{67+2*q}")
    a(f"buffer_store_dwordx4 {vr(40+4*ksq,4)}, v65, {sr(SRD_WS,4)}, s{S_T+14} offen offset:{ksq*1024}{STF}")

def compute_loop(a, tr):
    regs = V_XA + V_WA
    lab = f"L_k1_loop{int(tr)}"
    stamp(a, 1)
    a("s_barrier")
    stamp(a, 2)
    for r in frag_reads(0, FS[0]): a(r)
    a.label(lab)
    a("s_waitcnt lgkmcnt(0)")
    interleave(a, mfmas(tr, FS[0]), frag_reads(1, FS[1]))
    a(f"s_add_u32 s{S_CNT}, s{S_CNT}, 1")
    a(f"s_cmp_eq_u32 s{S_CNT}, {NST}")
    a(f"s_cbranch_scc1 {lab}_last")
    a(f"s_add_u32 s{S_SLOT}, s{S_SLOT}, 1")
    a(f"s_mov_b32 s{S_DELTA}, {STAGE}")
    a(f"s_cmp_eq_u32 s{S_SLOT}, {NSLOT}")
    a(f"s_cselect_b32 s{S_DELTA}, {(-(NSLOT-1)*STAGE) & 0xffffffff}, s{S_DELTA}")
    a(f"s_cselect_b32 s{S_SLOT}, 0, s{S_SLOT}")
    for r in regs:
        a(f"v_add_u32 v{r}, s{S_DELTA}, v{r}")
    a("s_waitcnt lgkmcnt(0)")
    a("s_barrier")
    interleave(a, mfmas(tr, FS[1]), frag_reads(0, FS[0]))
    a(f"s_branch {lab}")
    a.label(f"{lab}_last")
    a("s_waitcnt lgkmcnt(0)")
    for m in mfmas(tr, FS[1]): a(m)
    stamp(a, 3)

IMG = 2 * STAGE
S_GB = 67
S_NP = 68
EA = 176

def pre_qk(a):
    L = V_LANE; t = 8
    a(f"v_and_b32 v{t}, 15, v{L}")
    a(f"v_lshrrev_b32 v{t+1}, 4, v{L}")
    a(f"s_lshl_b32 s{S_T+2}, s{S_I}, 10")
    a(f"s_lshl_b32 s{S_T+3}, s{S_I}, 3")
    a(f"s_add_u32 s{S_T+3}, s{S_T+3}, 4096")
    a(f"s_mul_i32 s{S_T+6}, s{S_J}, 20")
    a(f"v_lshlrev_b32 v{t+10}, 4, v{t}")
    a(f"v_add_u32 v{t+10}, {IMG}, v{t+10}")
    a(f"v_add_u32 v{t+1}, s{S_T+6}, v{t+1}")
    a(f"v_mov_b32 v{t+7}, s{S_T+3}")
    a(f"v_mov_b32 v{t+9}, 512")
    for ct in range(5):
        A0, A1 = EA + 2 * ct, EA + 2 * ct + 1
        if ct: a(f"v_add_u32 v{t+1}, 4, v{t+1}")
        a(f"v_mul_u32_u24 v{t+3}, 205, v{t+1}")
        a(f"v_lshrrev_b32 v{t+3}, 10, v{t+3}")
        a(f"v_mul_u32_u24 v{t+4}, 5, v{t+3}")
        a(f"v_sub_u32 v{t+6}, v{t+1}, v{t+4}")
        a(f"v_mul_u32_u24 v{t+3}, 5120, v{t+3}")
        a(f"v_add_u32 v{t+3}, v{t+3}, v{t+10}")
        a(f"v_lshrrev_b32 v{t+4}, 1, v{t+6}")
        a(f"v_lshlrev_b32 v{t+4}, 9, v{t+4}")
        a(f"v_and_b32 v{t+5}, 1, v{t+6}")
        a(f"v_lshl_add_u32 v{t+4}, v{t+5}, 3, v{t+4}")
        a(f"v_cmp_eq_u32 vcc, 4, v{t+6}")
        a(f"v_add_u32 v{t+4}, s{S_T+2}, v{t+4}")
        a(f"v_mov_b32 v{t+8}, 2048")
        a(f"v_cndmask_b32 v{t+4}, v{t+4}, v{t+7}, vcc")
        a(f"v_cndmask_b32 v{t+8}, v{t+8}, v{t+9}, vcc")
        a(f"v_add_u32 v{A0}, v{t+3}, v{t+4}")
        a(f"v_add_u32 v{A1}, v{A0}, v{t+8}")

def pre_v(a):
    L = V_LANE; t = 8
    a(f"v_and_b32 v{t}, 15, v{L}")
    a(f"v_lshrrev_b32 v{t+1}, 4, v{L}")
    a(f"s_mul_i32 s{S_T+1}, s{S_I}, 1280")
    a(f"s_add_u32 s{S_T+1}, s{S_T+1}, {IMG}")
    a(f"v_and_b32 v{t+2}, 1, v{t+1}")
    a(f"v_mul_u32_u24 v{t+2}, 320, v{t+2}")
    a(f"v_lshrrev_b32 v{t+3}, 1, v{t+1}")
    a(f"v_lshl_add_u32 v{t+2}, v{t+3}, 3, v{t+2}")
    a(f"v_add_u32 v{t+2}, s{S_T+1}, v{t+2}")
    a(f"s_mul_i32 s{S_T+6}, s{S_J}, 80")
    a(f"v_add_u32 v{t}, s{S_T+6}, v{t}")
    a(f"s_movk_i32 s{S_T+7}, 3277")
    for ct in range(5):
        if ct: a(f"v_add_u32 v{t}, 16, v{t}")
        a(f"v_mul_u32_u24 v{t+3}, s{S_T+7}, v{t}")
        a(f"v_lshrrev_b32 v{t+3}, 16, v{t+3}")
        a(f"v_mul_u32_u24 v{t+4}, 20, v{t+3}")
        a(f"v_sub_u32 v{t+4}, v{t}, v{t+4}")
        a(f"v_mul_u32_u24 v{t+3}, 5120, v{t+3}")
        a(f"v_lshl_add_u32 v{t+4}, v{t+4}, 4, v{t+2}")
        a(f"v_add_u32 v{EA+ct}, v{t+4}, v{t+3}")

def pre_d(a):
    L = V_LANE; t = 8
    a(f"v_and_b32 v{t}, 15, v{L}")
    a(f"v_lshrrev_b32 v{t+1}, 4, v{L}")
    a(f"s_lshl_b32 s{S_T+1}, s{S_I}, 11")
    a(f"s_add_u32 s{S_T+1}, s{S_T+1}, {IMG}")
    a(f"v_lshrrev_b32 v{t+2}, 1, v{t+1}")
    a(f"v_lshlrev_b32 v{t+2}, 9, v{t+2}")
    a(f"v_and_b32 v{t+3}, 1, v{t+1}")
    a(f"v_lshl_add_u32 v{t+2}, v{t+3}, 3, v{t+2}")
    a(f"v_add_u32 v{t+2}, s{S_T+1}, v{t+2}")
    a(f"s_mul_i32 s{S_T+6}, s{S_J}, 80")
    a(f"v_add_u32 v{t}, s{S_T+6}, v{t}")
    a(f"s_cmp_lt_u32 s{S_CG}, 14")
    a(f"s_mov_b32 s{S_T+3}, {WS_BOT}")
    a(f"s_cselect_b32 s{S_T+3}, {WS_AET}, s{S_T+3}")
    a(f"s_cselect_b32 s{S_T+5}, 1.0, -1.0")
    a(f"s_and_b32 s{S_T+2}, s{S_CG}, 1")
    a(f"s_mul_i32 s{S_T+2}, s{S_T+2}, {5*AEP_ET}")
    a(f"s_add_u32 s{S_T+3}, s{S_T+3}, s{S_T+2}")
    a(f"s_add_u32 s{S_T+3}, s{S_T+3}, {64*1024}")
    a(f"s_mov_b32 s{S_T+4}, {AEP_ET}")
    for ct in range(5):
        if ct: a(f"v_add_u32 v{t}, 16, v{t}")
        a(f"v_lshrrev_b32 v{t+3}, 5, v{t}")
        a(f"v_and_b32 v{t+4}, 31, v{t}")
        a(f"v_lshlrev_b32 v{t+4}, 4, v{t+4}")
        a(f"v_lshl_add_u32 v{t+5}, v{t+3}, 12, v{t+4}")
        a(f"v_add_u32 v{EA+ct}, v{t+5}, v{t+2}")
        a(f"v_mul_lo_u32 v{t+5}, v{t+3}, s{S_T+4}")
        a(f"v_add3_u32 v{EA+5+ct}, v{t+5}, v{t+4}, s{S_T+3}")
    a(f"v_mov_b32 v{EA+10}, s{S_T+5}")
    a(f"v_mov_b32 v{EA+11}, s{S_T+5}")

def copy_setup(a):
    lab_d = a.newlabel("cpd"); lab_e = a.newlabel("cpe")
    a(f"s_cmp_ge_u32 s{S_CG}, 12")
    a(f"s_cbranch_scc1 {lab_d}")
    a(f"s_and_b32 s{S_T}, s{S_CG}, 3")
    a(f"s_lshl_b32 s{S_T}, s{S_T}, 3")
    a(f"s_add_u32 s{S_T}, s{S_T}, s{S_WAVE}")
    a(f"s_mul_i32 s{S_T}, s{S_T}, {Q_HEAD_BYTES}")
    a(f"s_mul_i32 s{S_T+1}, s{S_B}, 5120")
    a(f"s_add_u32 s{S_GB}, s{S_T}, s{S_T+1}")
    a(f"s_mov_b32 s{S_NP}, 5")
    a(f"s_cmp_lt_u32 s{S_CG}, 4")
    a(f"s_cbranch_scc1 {lab_e}")
    a(f"s_lshl_b32 s{S_GB}, s{S_GB}, 1")
    a(f"s_add_u32 s{S_GB}, s{S_GB}, {WS_KV}")
    a(f"s_cmp_lt_u32 s{S_CG}, 8")
    a(f"s_cbranch_scc1 {lab_e}")
    a(f"s_add_u32 s{S_GB}, s{S_GB}, 5120")
    a(f"s_branch {lab_e}")
    a.label(lab_d)
    a(f"s_cmp_lt_u32 s{S_CG}, 14")
    a(f"s_mov_b32 s{S_T+3}, {WS_BOT}")
    a(f"s_cselect_b32 s{S_T+3}, {WS_AET}, s{S_T+3}")
    a(f"s_and_b32 s{S_T}, s{S_CG}, 1")
    a(f"s_mul_i32 s{S_T}, s{S_T}, 5")
    a(f"s_add_u32 s{S_T}, s{S_T}, s{S_WAVE}")
    a(f"s_mul_i32 s{S_T}, s{S_T}, {AEP_ET}")
    a(f"s_lshl_b32 s{S_T+1}, s{S_B}, 12")
    a(f"s_add_u32 s{S_GB}, s{S_T}, s{S_T+1}")
    a(f"s_add_u32 s{S_GB}, s{S_GB}, s{S_T+3}")
    a(f"s_cmp_lt_u32 s{S_WAVE}, 5")
    a(f"s_cselect_b32 s{S_NP}, 4, 0")
    a.label(lab_e)

def copy_out(a):
    a.label("L_k1_copy")
    a("s_waitcnt lgkmcnt(0)")
    a("s_barrier")
    a(f"s_cmp_eq_u32 s{S_NP}, 0")
    a("s_cbranch_scc1 L_k1_done")
    a(f"s_mul_i32 s{S_T}, s{S_WAVE}, s{S_NP}")
    a(f"s_lshl_b32 s{S_T}, s{S_T}, 10")
    a(f"s_add_u32 s{S_T}, s{S_T}, {IMG}")
    a(f"v_lshlrev_b32 v2, 4, v{V_LANE}")
    a(f"v_add_u32 v3, s{S_T}, v2")
    for p in range(5):
        a(f"ds_read_b128 {vr(4+4*p,4)}, v3 offset:{p*1024}")
    for p in range(4):
        a(f"s_waitcnt lgkmcnt({4-p})")
        a(f"buffer_store_dwordx4 {vr(4+4*p,4)}, v2, {sr(SRD_WS,4)}, s{S_GB} offen offset:{p*1024}{STF}")
    a(f"s_cmp_eq_u32 s{S_NP}, 4")
    a("s_cbranch_scc1 L_k1_done")
    a(f"s_add_u32 s{S_GB}, s{S_GB}, 4096")
    a("s_waitcnt lgkmcnt(0)")
    a(f"buffer_store_dwordx4 {vr(20,4)}, v2, {sr(SRD_WS,4)}, s{S_GB} offen{STF}")
    a.label("L_k1_done")
    stamp(a, 4)
    stamp_store(a)
    a("s_endpgm")

def epilogue_qk(a):
    lab = a.newlabel("noscale")
    a(f"s_cmp_ge_u32 s{S_CG}, 4")
    a(f"s_mov_b32 s{S_T+4}, {f32bits(QSCALE)}")
    a("s_nop 5")
    a(f"s_cbranch_scc1 {lab}")
    for r in range(80): a(f"v_mul_f32 v{ACC+r}, s{S_T+4}, v{ACC+r}")
    a.label(lab)
    pk = 20
    for ct in range(5):
        for a_ in range(4):
            c = acc(a_, ct)
            p = pk + 2 * (ct * 4 + a_)
            a(f"v_cvt_pk_bf16_f32 v{p}, v{c}, v{c+1}")
            a(f"v_cvt_pk_bf16_f32 v{p+1}, v{c+2}, v{c+3}")
            a(f"ds_write_b64 v{EA+2*ct+(a_>>1)}, {vr(p,2)} offset:{(a_&1)*256}")
    a("s_branch L_k1_copy")

def epilogue_v(a):
    a("s_nop 7")
    pk = 20
    for ct in range(5):
        for a_ in range(4):
            c = acc(a_, ct)
            p = pk + 2 * (ct * 4 + a_)
            a(f"v_cvt_pk_bf16_f32 v{p}, v{c}, v{c+1}")
            a(f"v_cvt_pk_bf16_f32 v{p+1}, v{c+2}, v{c+3}")
            a(f"ds_write_b64 v{EA+ct}, {vr(p,2)} offset:{(a_>>1)*2560 + (a_&1)*640}")
    a("s_branch L_k1_copy")

def epilogue_d(a):
    spec = a.newlabel("spec"); nospec = a.newlabel("nospec")
    a(f"s_lshl_b32 s{S_T+6}, s{S_J}, 4")
    a(f"s_add_u32 s{S_T+6}, s{S_T+6}, s{S_CG}")
    a(f"v_and_b32 v2, 15, v{V_LANE}")
    a(f"s_cmp_lg_u32 s{S_T+6}, 14")
    a(f"s_cbranch_scc1 {nospec}")
    a(f"v_cmp_eq_u32 vcc, 0, v2")
    a(f"v_mov_b32 v3, {WS_AET + 10*AEP_ET + 64*1024}")
    a("s_nop 0")
    a(f"v_cndmask_b32 v{EA+5}, v{EA+5}, v3, vcc")
    a(f"v_cndmask_b32 v{EA+10}, v{EA+10}, 1.0, vcc")
    a.label(nospec)
    lab = a.newlabel("nos0")
    a(f"s_or_b32 s{S_T+7}, s{S_B}, s{S_I}")
    a(f"s_cmp_lg_u32 s{S_T+7}, 0")
    a("s_nop 3")
    a(f"s_cbranch_scc1 {lab}")
    a("s_mov_b64 exec, 0xffff")
    for k in range(1, 4): a(f"v_mov_b32 v{80+k}, 0")
    for k in range(4): a(f"v_mov_b32 v{84+k}, 0")
    for ct in range(5):
        cm = acc(2, ct)
        a(f"v_cvt_pk_bf16_f32 v80, v{cm}, 0")
        a(f"v_mov_b32 v{cm}, 0")
        a(f"buffer_store_dwordx4 v[80:83], v{EA+5+ct}, {sr(SRD_WS,4)}, 0 offen")
        a(f"buffer_store_dwordx4 v[84:87], v{EA+5+ct}, {sr(SRD_WS,4)}, 0 offen offset:512")
        a("s_nop 1")
    a("s_mov_b64 exec, -1")
    a.label(lab)
    pk = 20
    for ct in range(5):
        for a_ in range(2):
            cs, cm = acc(a_, ct), acc(a_ + 2, ct)
            for r in range(4):
                a(f"v_fma_f32 v{cs+r}, v{cm+r}, v{EA+10 if ct == 0 else EA+11}, v{cs+r}")
            p = pk + 2 * (ct * 2 + a_)
            a(f"v_cvt_pk_bf16_f32 v{p}, v{cs}, v{cs+1}")
            a(f"v_cvt_pk_bf16_f32 v{p+1}, v{cs+2}, v{cs+3}")
            a(f"ds_write_b64 v{EA+ct}, {vr(p,2)} offset:{a_*1024}")
    a(f"s_cmp_lg_u32 s{S_T+6}, 14")
    a("s_cbranch_scc1 L_k1_copy")
    a(f"v_lshrrev_b32 v3, 4, v{V_LANE}")
    a(f"v_lshrrev_b32 v4, 1, v3")
    a(f"v_lshlrev_b32 v4, 9, v4")
    a(f"v_and_b32 v3, 1, v3")
    a(f"v_lshl_add_u32 v4, v3, 3, v4")
    a(f"s_lshl_b32 s{S_T}, s{S_B}, 12")
    a(f"s_lshl_b32 s{S_T+1}, s{S_I}, 11")
    a(f"s_add_u32 s{S_T}, s{S_T}, s{S_T+1}")
    a(f"s_add_u32 s{S_T}, s{S_T}, {WS_AET + 10*AEP_ET}")
    a(f"v_cmp_eq_u32 vcc, 0, v2")
    a("s_and_saveexec_b64 s[58:59], vcc")
    a(f"buffer_store_dwordx2 {vr(pk,2)}, v4, {sr(SRD_WS,4)}, s{S_T} offen")
    a(f"buffer_store_dwordx2 {vr(pk+2,2)}, v4, {sr(SRD_WS,4)}, s{S_T} offen offset:1024")
    a("s_mov_b64 exec, -1")
    a("s_branch L_k1_copy")

def gen_k1(a, name):
    kernel_header(a, name)
    a("s_cmp_ge_u32 s2, 256")
    a("s_cbranch_scc1 L_k1_exit")
    a(f"s_load_dwordx4 {sr(S_X,4)}, s[0:1], 0")
    a(f"s_load_dwordx4 {sr(S_DRE,4)}, s[0:1], 48")
    a(f"s_load_dwordx2 {sr(S_WS,2)}, s[0:1], 88")
    a(f"s_load_dwordx4 s[4:7], s[0:1], 32")
    stamp(a, 0)
    a(f"v_and_b32 v{V_LANE}, 63, v0")
    a(f"v_lshrrev_b32 v2, 6, v0")
    a("s_nop 0")
    a(f"v_readfirstlane_b32 s{S_WAVE}, v2")
    if XMAP == 0:
        a(f"s_and_b32 s{S_T}, s2, 1")
        a(f"s_lshl_b32 s{S_T}, s{S_T}, 3")
        a(f"s_bfe_u32 s{S_T+1}, s2, 0x30003")
        a(f"s_add_u32 s{S_B}, s{S_T}, s{S_T+1}")
        a(f"s_bfe_u32 s{S_T}, s2, 0x20001")
        a(f"s_lshl_b32 s{S_T}, s{S_T}, 2")
        a(f"s_lshr_b32 s{S_T+1}, s2, 6")
        a(f"s_add_u32 s{S_CG}, s{S_T}, s{S_T+1}")
    elif XMAP == 1:
        a(f"s_and_b32 s{S_T}, s2, 7")
        a(f"s_lshl_b32 s{S_T}, s{S_T}, 1")
        a(f"s_bfe_u32 s{S_T+1}, s2, 0x10003")
        a(f"s_add_u32 s{S_B}, s{S_T}, s{S_T+1}")
        a(f"s_lshr_b32 s{S_CG}, s2, 4")
    elif XMAP == 2:
        a(f"s_and_b32 s{S_T}, s2, 7")
        a(f"s_lshl_b32 s{S_T}, s{S_T}, 1")
        a(f"s_bfe_u32 s{S_T+1}, s2, 0x10003")
        a(f"s_add_u32 s{S_CG}, s{S_T}, s{S_T+1}")
        a(f"s_lshr_b32 s{S_B}, s2, 4")
    elif XMAP == 3:
        a(f"s_and_b32 s{S_T}, s2, 3")
        a(f"s_lshl_b32 s{S_T}, s{S_T}, 2")
        a(f"s_bfe_u32 s{S_T+1}, s2, 0x20003")
        a(f"s_add_u32 s{S_B}, s{S_T}, s{S_T+1}")
        a(f"s_bfe_u32 s{S_T}, s2, 0x10002")
        a(f"s_lshl_b32 s{S_T}, s{S_T}, 3")
        a(f"s_lshr_b32 s{S_T+1}, s2, 5")
        a(f"s_add_u32 s{S_CG}, s{S_T}, s{S_T+1}")
    a(f"s_bfe_u32 s{S_I}, s{S_WAVE}, 0x10001")
    a(f"s_and_b32 s{S_J}, s{S_WAVE}, 1")
    a(f"s_and_b32 s{S_T}, s{S_CG}, 1")
    a(f"s_cmp_lt_u32 s{S_CG}, 12")
    a(f"s_cselect_b32 s{S_T}, s{S_CG}, s{S_T}")
    a(f"s_cselect_b32 s{S_WSTR}, 3840, 64")
    a(f"s_mul_i32 s{S_WCOL}, s{S_T}, 320")
    a(f"s_cselect_b32 s{S_T+1}, 0, 1216")
    a(f"s_add_u32 s{S_WSTR}, s{S_WSTR}, s{S_T+1}")
    a(f"s_lshl_b32 s{S_WSTEP}, s{S_WSTR}, 6")
    a(f"s_mul_i32 s{S_T+2}, s{S_WSTR}, 640")
    a("s_waitcnt lgkmcnt(0)")
    make_srd(a, SRD_X, S_X, S_X + 1, 0, S * D * 2)
    a(f"s_cmp_lt_u32 s{S_CG}, 14")
    a(f"s_cselect_b32 s{SRD_W}, s{S_DRE}, s{S_DIM}")
    a(f"s_cselect_b32 s{SRD_W+1}, s{S_DRE+1}, s{S_DIM+1}")
    a(f"s_cmp_lt_u32 s{S_CG}, 12")
    a(f"s_cselect_b32 s{SRD_W}, s{S_W}, s{SRD_W}")
    a(f"s_cselect_b32 s{SRD_W+1}, s{S_W+1}, s{SRD_W+1}")
    a(f"s_mov_b32 s{SRD_W+2}, s{S_T+2}")
    a(f"s_mov_b32 s{SRD_W+3}, 0x00020000")
    make_srd(a, SRD_WS, S_WS, S_WS + 1, 0, WS_END)
    a(f"s_cmp_lt_u32 s2, 128")
    a(f"s_cselect_b32 s{SRD_SQ}, s4, s6")
    a(f"s_cselect_b32 s{SRD_SQ+1}, s5, s7")
    a(f"s_mov_b32 s{SRD_SQ+2}, {S*S*2}")
    a(f"s_mov_b32 s{SRD_SQ+3}, 0x00020000")
    if STAMP: make_srd(a, 96, S_WS, S_WS + 1, 0x2000000, 0x100000)
    a(f"s_cmp_ge_u32 s{S_WAVE}, 4")
    a("s_cbranch_scc1 L_k1_loader")
    compute_setup(a)
    copy_setup(a)
    a(f"s_cmp_ge_u32 s{S_CG}, 8")
    a("s_cbranch_scc1 L_k1_c1")
    pre_qk(a)
    compute_loop(a, True)
    epilogue_qk(a)
    a.label("L_k1_c1")
    a(f"s_cmp_ge_u32 s{S_CG}, 12")
    a("s_cbranch_scc1 L_k1_c1d")
    pre_v(a)
    a("s_branch L_k1_c1go")
    a.label("L_k1_c1d")
    pre_d(a)
    a.label("L_k1_c1go")
    compute_loop(a, False)
    a(f"s_cmp_ge_u32 s{S_CG}, 12")
    a("s_cbranch_scc1 L_k1_c2")
    epilogue_v(a)
    a.label("L_k1_c2")
    epilogue_d(a)
    a.label("L_k1_loader")
    loader(a)
    a.label("L_k1_exit")
    a("s_endpgm")
```

```python
from common import *
S_WS = 4; S_OUT = 6
SRD_O = 8; SRD_W = 12; SRD_Y = 16; SRD_G = 20; SRD_OUT = 24
S_WAVE = 36; S_RB = 37; S_CB = 38; S_T = 44
V_LANE = 1
ACC = 160
BUF = 16
def acc(a_, ct): return ACC + (a_ * 5 + ct) * 4

STAMP = False
def stamp(a, idx):
    if STAMP: a(f"s_memtime s[{70+2*idx}:{71+2*idx}]")
def stamp_store(a, n=8):
    if not STAMP: return
    a("s_waitcnt vmcnt(0)")
    stamp(a, n - 1)
    a("s_waitcnt lgkmcnt(0)")
    a(f"s_lshl_b32 s{S_T}, s2, 4")
    a(f"s_add_u32 s{S_T}, s{S_T}, s{S_WAVE}")
    a(f"s_lshl_b32 s{S_T}, s{S_T}, 6")
    a(f"v_mov_b32 v2, 0")
    for i in range(n):
        a(f"v_mov_b32 v3, s{70+2*i}")
        a(f"buffer_store_dword v3, v2, s[96:99], s{S_T} offen offset:{4*i}")
def gen_k3(a, name):
    L = V_LANE
    kernel_header(a, name)
    a("s_cmp_ge_u32 s2, 256")
    a("s_cbranch_scc1 L_k3_exit")
    a(f"s_load_dwordx2 {sr(S_WS,2)}, s[0:1], 88")
    a(f"s_load_dwordx2 {sr(S_OUT,2)}, s[0:1], 72")
    stamp(a, 0)
    a(f"v_and_b32 v{L}, 63, v0")
    a(f"v_lshrrev_b32 v2, 6, v0")
    a("s_nop 0")
    a(f"v_readfirstlane_b32 s{S_WAVE}, v2")
    a(f"s_and_b32 s{S_T}, s2, 3")
    a(f"s_lshl_b32 s{S_T}, s{S_T}, 3")
    a(f"s_bfe_u32 s{S_T+1}, s2, 0x30003")
    a(f"s_add_u32 s{S_RB}, s{S_T}, s{S_T+1}")
    a(f"s_and_b32 s{S_T}, s2, 4")
    a(f"s_lshr_b32 s{S_T+1}, s2, 6")
    a(f"s_add_u32 s{S_CB}, s{S_T}, s{S_T+1}")
    a(f"v_and_b32 v2, 15, v{L}")
    a(f"v_lshrrev_b32 v3, 4, v{L}")
    a(f"s_lshl_b32 s{S_T}, s{S_RB}, 6")
    a(f"v_add_u32 v4, s{S_T}, v2")
    a(f"v_mul_u32_u24 v4, 1280, v4")
    a(f"s_mul_i32 s{S_T+2}, s{S_RB}, {4*20480}")
    a(f"s_mul_i32 s{S_T+8}, s{S_WAVE}, 5120")
    a(f"s_add_u32 s{S_T+2}, s{S_T+2}, s{S_T+8}")
    a(f"v_lshlrev_b32 v9, 4, v{L}")
    a(f"s_mul_i32 s{S_T+3}, s{S_CB}, {100*1024}")
    a(f"s_mul_i32 s{S_T+4}, s{S_WAVE}, {5*1024}")
    a(f"s_add_u32 s{S_T+3}, s{S_T+3}, s{S_T+4}")
    a(f"s_mul_i32 s{S_T+5}, s{S_WAVE}, {16*1280}")
    a(f"s_mul_i32 s{S_T+6}, s{S_CB}, 160")
    a(f"s_add_u32 s{S_T+5}, s{S_T+5}, s{S_T+6}")
    a(f"v_lshl_add_u32 v10, v3, 3, v4")
    a(f"v_add_u32 v10, s{S_T+5}, v10")
    a(f"s_lshl_b32 s{S_T+6}, s{S_WAVE}, 4")
    a(f"s_add_u32 s{S_T+6}, s{S_T+6}, s{S_T}")
    a(f"v_add_u32 v11, s{S_T+6}, v2")
    a(f"v_lshlrev_b32 v11, 2, v11")
    a("s_waitcnt lgkmcnt(0)")
    make_srd(a, SRD_O, S_WS, S_WS + 1, WS_O, S * D * 2)
    make_srd(a, SRD_W, S_WS, S_WS + 1, WS_WOT, 800 * 1024)
    make_srd(a, SRD_Y, S_WS, S_WS + 1, WS_Y, S * D * 2)
    make_srd(a, SRD_G, S_WS, S_WS + 1, WS_G, S * 4)
    make_srd(a, SRD_OUT, S_OUT, S_OUT + 1, 0, S * D * 2)
    if STAMP: make_srd(a, 96, S_WS, S_WS + 1, 0x2100000, 0x100000)
    stamp(a, 1)
    def loads(ks):
        b = BUF + 36 * (ks % 4)
        for a_ in range(4):
            a(f"s_add_u32 s{S_T+7}, s{S_T+2}, {a_*20480 + ks*1024}")
            a(f"buffer_load_dwordx4 {vr(b+4*a_,4)}, v9, {sr(SRD_O,4)}, s{S_T+7} offen")
        for ct in range(5):
            a(f"s_add_u32 s{S_T+7}, s{S_T+3}, {ct*20*1024 + ks*1024}")
            a(f"buffer_load_dwordx4 {vr(b+16+4*ct,4)}, v9, {sr(SRD_W,4)}, s{S_T+7} offen")
    def load_list(ks):
        b = BUF + 36 * (ks % 4)
        r = []
        def w(ct): return [f"s_add_u32 s{S_T+7}, s{S_T+3}, {ct*20*1024 + ks*1024}", f"buffer_load_dwordx4 {vr(b+16+4*ct,4)}, v9, {sr(SRD_W,4)}, s{S_T+7} offen"]
        def o(a_): return [f"s_add_u32 s{S_T+7}, s{S_T+2}, {a_*20480 + ks*1024}", f"buffer_load_dwordx4 {vr(b+4*a_,4)}, v9, {sr(SRD_O,4)}, s{S_T+7} offen"]
        return [o(0), o(1), o(2), o(3), w(0), w(1), w(2), w(3), w(4)]
    def mm_list(ks):
        b = BUF + 36 * (ks % 4)
        r = []
        for ct in range(5):
            for a_ in range(4):
                c = "0" if ks == 0 else vr(acc(a_, ct), 4)
                r.append(f"v_mfma_f32_16x16x32_bf16 {vr(acc(a_,ct),4)}, {vr(b+16+4*ct,4)}, {vr(b+4*a_,4)}, {c}")
        return r
    YR = 240
    for ks in range(2):
        for l_ in load_list(ks):
            for x in l_: a(x)
    stamp(a, 2)
    extra = [[f"buffer_load_dwordx2 {vr(YR+2*ct,2)}, v10, {sr(SRD_Y,4)}, 0 offen offset:{32*ct}"] for ct in range(5)] + [[f"buffer_load_dword v{YR+10}, v11, {sr(SRD_G,4)}, 0 offen"]]
    for ks in range(5):
        nxt = load_list(ks + 2) if ks + 2 < 5 else (extra if ks == 3 else [])
        younger = 9 if ks + 1 < 5 else 6
        ms = mm_list(ks)
        issued_extra = 0
        for ct in range(5):
            a(f"s_waitcnt vmcnt({younger + (4 - ct) + issued_extra})")
            if ks == 0 and ct == 0: stamp(a, 3)
            for a_ in range(4):
                a(ms[ct * 4 + a_])
                if (ct * 4 + a_) % 2 == 1 and issued_extra < len(nxt):
                    for x in nxt[issued_extra]: a(x)
                    issued_extra += 1
        while issued_extra < len(nxt):
            for x in nxt[issued_extra]: a(x)
            issued_extra += 1
    stamp(a, 4)
    a(f"s_mul_i32 s{S_T+8}, s{S_WAVE}, 20480")
    a(f"v_add_u32 v12, s{S_T+8}, v9")
    a(f"s_mul_i32 s{S_T+9}, s{S_WAVE}, 5120")
    a(f"v_add_u32 v13, s{S_T+9}, v9")
    a(f"v_add_u32 v14, 40960, v13")
    a("s_nop 4")
    for a_ in range(4):
        for ct in range(5):
            a(f"ds_write_b128 v12, {vr(acc(a_,ct),4)} offset:{a_*5120 + ct*1024}")
    a("s_waitcnt lgkmcnt(0)")
    a("s_barrier")
    RB_ = 88
    YR = 240
    for src in range(4):
        for ct in range(5):
            dst = (RB_ + (src * 5 + ct) * 4) if src < 3 else (ACC + ct * 4)
            a(f"ds_read_b128 {vr(dst,4)}, v{13 + src//2} offset:{(src%2)*20480 + ct*1024}")
    a("s_waitcnt vmcnt(0) lgkmcnt(0)")
    stamp(a, 5)
    for ct in range(5):
        for r in range(4):
            d = ACC + ct * 4 + r
            a(f"v_add_f32 v{d}, v{d}, v{RB_+ct*4+r}")
            a(f"v_add_f32 v{RB_+20+ct*4+r}, v{RB_+20+ct*4+r}, v{RB_+40+ct*4+r}")
        for r in range(4):
            d = ACC + ct * 4 + r
            a(f"v_add_f32 v{d}, v{d}, v{RB_+20+ct*4+r}")
        y0, y1 = YR + 2 * ct, YR + 2 * ct + 1
        t = 16 + 4 * ct
        a(f"v_lshlrev_b32 v{t}, 16, v{y0}")
        a(f"v_and_b32 v{t+1}, 0xffff0000, v{y0}")
        a(f"v_lshlrev_b32 v{t+2}, 16, v{y1}")
        a(f"v_and_b32 v{t+3}, 0xffff0000, v{y1}")
        for r in range(4):
            d = ACC + ct * 4 + r
            a(f"v_sub_f32 v{d}, v{d}, v{t+r}")
            a(f"v_fma_f32 v{d}, v{d}, v{YR+10}, v{t+r}")
        d = ACC + ct * 4
        a(f"v_cvt_pk_bf16_f32 v{40+2*ct}, v{d}, v{d+1}")
        a(f"v_cvt_pk_bf16_f32 v{41+2*ct}, v{d+2}, v{d+3}")
        a(f"buffer_store_dwordx2 {vr(40+2*ct,2)}, v10, {sr(SRD_OUT,4)}, 0 offen offset:{32*ct}")
    stamp(a, 6)
    stamp_store(a)
    a.label("L_k3_exit")
    a("s_endpgm")
```

```python
S = 2048; D = 640; H = 32; DH = 20

WS_Q   = 0x000000
WS_KV  = 0x280000
WS_AET = 0x780000
WS_BOT = 0x840000
WS_Y   = 0x900000
WS_O   = 0xB80000
WS_G   = 0xE00000
WS_WOT = 0xE10000
WS_CP  = 0x1000000
WS_SP  = 0x1000000 + 17 * 65536
WS_END = 0x1400000
AET_STRIDE = 2112
AEP_ET = 66 * 1024
Q_HEAD_BYTES = 16 * 5120
KV_HEAD_BYTES = 16 * 10240

class Asm:
    def __init__(self):
        self.lines = []
        self.uid = 0
    def __call__(self, s):
        for l in s.strip("\n").split("\n"):
            self.lines.append("    " + l.strip() if not l.strip().endswith(":") else l.strip())
    def label(self, name):
        self.lines.append(name + ":")
    def newlabel(self, base):
        self.uid += 1
        return f"L_{base}_{self.uid}"
    def comment(self, s):
        self.lines.append("    ; " + s)
    def text(self):
        return "\n".join(self.lines) + "\n"

def vr(a, n=1):
    return f"v{a}" if n == 1 else f"v[{a}:{a+n-1}]"
def sr(a, n=1):
    return f"s{a}" if n == 1 else f"s[{a}:{a+n-1}]"

def kernel_header(a, name):
    a.lines.append(f".globl {name}")
    a.lines.append(".p2align 8")
    a.lines.append(f".type {name},@function")
    a.lines.append(f"{name}:")

def kernel_desc(name, nvgpr, nsgpr=102):
    acc = (nvgpr + 3) // 4 * 4
    return f""".p2align 6
.amdhsa_kernel {name}
  .amdhsa_next_free_vgpr {nvgpr}
  .amdhsa_next_free_sgpr {nsgpr}
  .amdhsa_accum_offset {acc}
  .amdhsa_group_segment_fixed_size 0
  .amdhsa_kernarg_size 96
  .amdhsa_user_sgpr_count 2
  .amdhsa_user_sgpr_kernarg_segment_ptr 1
  .amdhsa_system_sgpr_workgroup_id_x 1
.end_amdhsa_kernel
"""

def make_srd(a, d, base_lo, base_hi, off, size):
    if off == 0:
        a(f"s_mov_b32 s{d}, s{base_lo}")
        a(f"s_mov_b32 s{d+1}, s{base_hi}")
    else:
        a(f"s_add_u32 s{d}, s{base_lo}, {off}")
        a(f"s_addc_u32 s{d+1}, s{base_hi}, 0")
    a(f"s_mov_b32 s{d+2}, {size}")
    a(f"s_mov_b32 s{d+3}, 0x00020000")

class Cfg:
    MEGA = False
    LDF = ""
    STF2 = ""
def endp(a, label):
    if Cfg.MEGA: a(f"s_branch {label}")
    else: a("s_endpgm")
```

```python
from common import *
import math, struct

STAGE = 36864; WOFF = 16384; NSLOT = 4; NST = 10
S_X = 24; S_W = 26; S_DRE = 28; S_DIM = 30; S_WS = 32
SRD_X = 8; SRD_W = 12; SRD_SQ = 16; SRD_WS = 20
S_WAVE = 36; S_B = 37; S_CG = 38; S_I = 39; S_J = 40; S_WSTR = 41; S_WCOL = 42
S_T = 44
S_SX = 61; S_SW = 62; S_WSTEP = 63; S_DELTA = 64; S_CNT = 65; S_SLOT = 66
V_LANE = 1
QSCALE = math.log2(math.e) / math.sqrt(20.0)
def f32bits(x): return struct.unpack("<I", struct.pack("<f", x))[0]
OOB = 0x40000000
STAMP = False
def stamp(a, idx):
    if STAMP: a(f"s_memtime s[{70+2*idx}:{71+2*idx}]")
def stamp_store(a, n=12):
    if not STAMP: return
    a("s_waitcnt vmcnt(0)")
    stamp(a, n - 1)
    a("s_waitcnt lgkmcnt(0)")
    a("s_mov_b64 exec, -1")
    a(f"s_lshl_b32 s{S_T}, s2, 4")
    a(f"s_add_u32 s{S_T}, s{S_T}, s{S_WAVE}")
    a(f"s_lshl_b32 s{S_T}, s{S_T}, 6")
    a(f"v_mov_b32 v2, 0")
    for i in range(n):
        a(f"v_mov_b32 v3, s{70+2*i}")
        a(f"buffer_store_dword v3, v2, s[96:99], s{S_T} offen offset:{4*i}")

STF = ' sc1'
ROT = 1
PACK0 = 3
XMAP = 0
S_KST = 69
NDMA = 9
def loader(a):
    VX, VW = 20, 24
    L = V_LANE
    a(f"s_sub_u32 s{S_J}, s{S_WAVE}, 4")
    if ROT == 0: a(f"s_mov_b32 s{S_KST}, 0")
    else:
        if ROT == 1: a(f"s_mov_b32 s{S_KST}, s{S_CG}")
        elif ROT == 2: a(f"s_add_u32 s{S_KST}, s{S_CG}, s{S_B}")
        elif ROT == 3: a(f"s_mul_i32 s{S_KST}, s{S_CG}, 3")
        elif ROT == 4: a(f"s_mov_b32 s{S_KST}, s{S_B}")
        a(f"s_mul_i32 s{S_T}, s{S_KST}, 205")
        a(f"s_lshr_b32 s{S_T}, s{S_T}, 11")
        a(f"s_mul_i32 s{S_T}, s{S_T}, 10")
        a(f"s_sub_u32 s{S_KST}, s{S_KST}, s{S_T}")
    a(f"v_lshrrev_b32 v2, 3, v{L}")
    a(f"v_and_b32 v3, 7, v{L}")
    a(f"v_lshrrev_b32 v4, 4, v{L}")
    a(f"v_xor_b32 v3, v3, v4")
    a(f"s_lshl_b32 s{S_T}, s{S_B}, 6")
    a(f"s_and_b32 s{S_T+1}, s{S_J}, 1")
    a(f"s_lshl_b32 s{S_T+1}, s{S_T+1}, 5")
    a(f"s_add_u32 s{S_T}, s{S_T}, s{S_T+1}")
    a(f"v_add_u32 v5, s{S_T}, v2")
    a(f"s_cmp_ge_u32 s{S_J}, 2")
    a(f"s_movk_i32 s{S_T+2}, 1280")
    a(f"s_cselect_b32 s{S_T+2}, {(-1280) & 0xffffffff}, s{S_T+2}")
    a(f"s_cselect_b32 s{S_T+3}, {2048*1280}, 0")
    a(f"v_mul_lo_u32 v6, v5, s{S_T+2}")
    a(f"v_add_u32 v6, s{S_T+3}, v6")
    a(f"s_lshl_b32 s{S_T+2}, s{S_T+2}, 3")
    a(f"v_lshl_add_u32 v{VX}, v3, 4, v6")
    a(f"v_xor_b32 v3, 4, v3")
    a(f"v_add_u32 v6, s{S_T+2}, v6")
    a(f"v_lshl_add_u32 v{VX+1}, v3, 4, v6")
    a(f"s_lshl_b32 s{S_T+2}, s{S_T+2}, 1")
    a(f"v_add_u32 v{VX+2}, s{S_T+2}, v{VX}")
    a(f"v_add_u32 v{VX+3}, s{S_T+2}, v{VX+1}")
    a(f"v_subrev_u32 v7, {1024*1280}, v{VX}")
    a(f"v_cmp_le_u32 vcc, {2048*1280}, v{VX}")
    a(f"s_lshl_b32 s{S_T+4}, s{S_J}, 12")
    a(f"s_mul_i32 s{S_T+5}, s{S_J}, 5120")
    a(f"v_cndmask_b32 v{VX}, v{VX}, v7, vcc")
    a(f"s_add_u32 s{S_T+5}, s{S_T+5}, {WOFF}")
    def issue_x(stage):
        slot = (stage % NSLOT) * STAGE
        a(f"s_lshl_b32 s{S_SX}, s{S_KST}, 7")
        for t in range(4):
            a(f"s_add_u32 m0, s{S_T+4}, {slot + t*1024}")
            a("s_nop 0")
            a(f"buffer_load_dwordx4 v{VX+t}, {sr(SRD_X,4)}, s{S_SX} offen lds")
    def issue_w(stage):
        slot = (stage % NSLOT) * STAGE
        a(f"s_mul_i32 s{S_SW}, s{S_WSTEP}, s{S_KST}")
        for t in range(5):
            a(f"s_add_u32 m0, s{S_T+5}, {slot + t*1024}")
            a("s_nop 0")
            a(f"buffer_load_dwordx4 v{VW+t}, {sr(SRD_W,4)}, s{S_SW} offen lds")
        a(f"s_add_u32 s{S_KST}, s{S_KST}, 1")
        a(f"s_cmp_eq_u32 s{S_KST}, {NST}")
        a(f"s_cselect_b32 s{S_KST}, 0, s{S_KST}")
    stamp(a, 1)
    issue_x(0)
    a(f"s_mul_i32 s{S_T+6}, s{S_J}, 320")
    a(f"s_movk_i32 s{S_T+7}, 3277")
    for t in range(5):
        a(f"v_add_u32 v2, s{S_T+6}, v{L}")
        if t: a(f"v_add_u32 v2, {64*t}, v2")
        a(f"v_mul_u32_u24 v3, s{S_T+7}, v2")
        a(f"v_lshrrev_b32 v3, 16, v3")
        a(f"v_mul_u32_u24 v4, 20, v3")
        a(f"v_sub_u32 v4, v2, v4")
        a(f"v_bfe_u32 v5, v3, 3, 1")
        a(f"v_lshlrev_b32 v5, 1, v5")
        a(f"v_xor_b32 v4, v4, v5")
        a(f"v_mul_lo_u32 v6, v3, s{S_WSTR}")
        a(f"v_lshl_add_u32 v6, v4, 4, v6")
        a(f"v_add_u32 v{VW+t}, s{S_WCOL}, v6")
    issue_w(0)
    issue_x(1); issue_w(1)
    a(f"v_and_b32 v2, 15, v{L}")
    a(f"s_lshl_b32 s{S_T+6}, s{S_J}, 4")
    a(f"v_add_u32 v4, s{S_T+6}, v2")
    a(f"v_bfe_u32 v5, v4, 3, 1")
    a(f"v_mul_u32_u24 v30, 320, v4")
    a(f"v_lshl_add_u32 v30, v5, 5, v30")
    a(f"v_add_u32 v30, {WOFF}, v30")
    a(f"v_and_b32 v6, 1, v4")
    a(f"v_lshlrev_b32 v6, 15, v6")
    a(f"v_or_b32 v31, 0x3f80, v6")
    def patch(stage):
        lab = a.newlabel("nopatch")
        a(f"s_cmp_lg_u32 s{S_CG}, 14")
        a(f"s_cbranch_scc1 {lab}")
        a("s_mov_b64 exec, 0xffff")
        slot = (stage % NSLOT) * STAGE
        a(f"v_add_u32 v2, {slot}, v30")
        a(f"ds_write_b16 v2, v31")
        a("s_mov_b64 exec, -1")
        a("s_waitcnt lgkmcnt(0)")
        a.label(lab)
    stamp(a, 2)
    issued = 2
    ops = [0] * NDMA + [1] * NDMA
    for n in range(NST):
        last = max(i for i, t in enumerate(ops) if t == n)
        a(f"s_waitcnt vmcnt({len(ops) - 1 - last})")
        patch(n)
        if n in (0, 1, 2, 5, 9): stamp(a, {0:3, 1:4, 2:5, 5:6, 9:7}[n])
        a("s_barrier")
        k = 2 if n == 0 else 1
        for _ in range(k):
            if issued < NST:
                issue_x(issued); issue_w(issued); ops += [issued] * NDMA; issued += 1
        if n == 1: copy_setup(a)
        if n == PACK0 - 1: pack_setup(a)
        if PACK0 <= n < PACK0 + 4:
            pack_frag(a, n - PACK0); ops.append(-1)
    copy_out(a)

ACC = 88
FS = [16, 52]
V_XA = [2, 3]
V_WA = [4, 5]
VE = 8

def acc(a_, ct): return ACC + (a_ * 5 + ct) * 4

def frag_reads(ks, fs):
    r = []
    xs = []
    for a_ in range(4):
        rt_rel = (a_ & 1) + 4 * (a_ >> 1)
        xs.append(f"ds_read_b128 {vr(fs+4*a_,4)}, v{V_XA[ks]} offset:{rt_rel*2048}")
    ws = []
    for ct in range(5):
        for h2 in range(2):
            krow = 4 * h2 + 32 * ks
            ws.append(f"ds_read_b64_tr_b16 {vr(fs+16+4*ct+2*h2,2)}, v{V_WA[ct%2]} offset:{krow*320 + ct*32}")
    return ws[:2] + xs + ws[2:]

def mfmas(tr, fs):
    r = []
    for ct in range(5):
        for a_ in range(4):
            X = vr(fs + 4 * a_, 4); W = vr(fs + 16 + 4 * ct, 4)
            A, B = (W, X) if tr else (X, W)
            r.append(f"v_mfma_f32_16x16x32_bf16 {vr(acc(a_,ct),4)}, {A}, {B}, {vr(acc(a_,ct),4)}")
    return r

RPM = 1
def interleave(a, ms, rs):
    k = 0
    for m in ms:
        a(m)
        for _ in range(RPM):
            if k < len(rs):
                a(rs[k]); k += 1
    while k < len(rs):
        a(rs[k]); k += 1

def compute_setup(a):
    L = V_LANE
    t = VE
    a(f"v_and_b32 v{t}, 15, v{L}")
    a(f"v_lshrrev_b32 v{t+1}, 4, v{L}")
    a(f"v_lshrrev_b32 v{t+2}, 1, v{t}")
    a(f"v_xor_b32 v{t+3}, v{t+1}, v{t+2}")
    a(f"s_lshl_b32 s{S_T}, s{S_I}, 12")
    a(f"v_lshlrev_b32 v{t+4}, 7, v{t}")
    a(f"v_add_u32 v{t+4}, s{S_T}, v{t+4}")
    a(f"v_lshl_add_u32 v{V_XA[0]}, v{t+3}, 4, v{t+4}")
    a(f"v_xor_b32 v{V_XA[1]}, 64, v{V_XA[0]}")
    a(f"v_lshrrev_b32 v{t+2}, 2, v{t}")
    a(f"v_and_b32 v{t+3}, 3, v{t}")
    a(f"v_lshl_add_u32 v{t+4}, v{t+1}, 3, v{t+2}")
    a(f"v_mul_u32_u24 v{t+4}, 320, v{t+4}")
    a(f"v_lshl_add_u32 v{t+4}, v{t+3}, 3, v{t+4}")
    a(f"s_mul_i32 s{S_T}, s{S_J}, 160")
    a(f"s_add_u32 s{S_T}, s{S_T}, {WOFF}")
    a(f"v_add_u32 v{t+4}, s{S_T}, v{t+4}")
    a(f"v_and_b32 v{t+5}, 1, v{t+1}")
    a(f"v_lshlrev_b32 v{t+5}, 5, v{t+5}")
    a(f"v_add_u32 v{t+6}, v{t+4}, v{t+5}")
    a(f"v_sub_u32 v{t+7}, v{t+4}, v{t+5}")
    a(f"s_cmp_eq_u32 s{S_J}, 0")
    a(f"s_cselect_b64 vcc, -1, 0")
    a(f"v_cndmask_b32 v{V_WA[0]}, v{t+7}, v{t+6}, vcc")
    a(f"v_cndmask_b32 v{V_WA[1]}, v{t+6}, v{t+7}, vcc")
    for r in range(80):
        a(f"v_mov_b32 v{ACC+r}, 0")
    for r in range(12):
        a(f"v_mov_b32 v{EA+r}, 0")
    a(f"s_mov_b32 s{S_CNT}, 0")
    a(f"s_mov_b32 s{S_SLOT}, 0")

def pack_setup(a):
    L = V_LANE
    a(f"s_lshl_b32 s{S_T+8}, s2, 2")
    a(f"s_add_u32 s{S_T+8}, s{S_T+8}, s{S_J}")
    a(f"s_cmp_ge_u32 s{S_T+8}, 272")
    a(f"s_cselect_b32 s{S_T+12}, {f32bits(0.25)}, 0")
    a(f"s_cselect_b32 s{S_T+9}, 272, 0")
    a(f"s_sub_u32 s{S_T+9}, s{S_T+8}, s{S_T+9}")
    a(f"s_and_b32 s{S_T+10}, s{S_T+9}, 15")
    a(f"s_lshr_b32 s{S_T+9}, s{S_T+9}, 4")
    a(f"s_lshl_b32 s{S_T+9}, s{S_T+9}, 5")
    a(f"s_lshl_b32 s{S_T+10}, s{S_T+10}, 6")
    a(f"v_and_b32 v60, 31, v{L}")
    a(f"v_add_u32 v60, s{S_T+9}, v60")
    a(f"v_lshrrev_b32 v61, 5, v{L}")
    a(f"v_lshl_add_u32 v61, v61, 4, s{S_T+10}")
    a(f"v_mul_u32_u24 v62, v60, v61")
    a(f"v_and_b32 v62, 2047, v62")
    a(f"v_cvt_f32_u32 v62, v62")
    a(f"v_cvt_f32_u32 v63, v60")
    a(f"s_mov_b32 s{S_T+11}, {f32bits(1.0/2048)}")
    a(f"v_mul_f32 v62, s{S_T+11}, v62")
    a(f"v_mul_f32 v63, s{S_T+11}, v63")
    a(f"v_add_f32 v62, s{S_T+12}, v62")
    a(f"v_add_f32 v64, v63, v63")
    a(f"s_lshl_b32 s{S_T+14}, s{S_T+8}, 12")
    a(f"s_add_u32 s{S_T+14}, s{S_T+14}, {WS_CP}")
    a(f"s_cmp_lt_u32 s{S_T+8}, 544")
    a(f"s_cselect_b32 s{S_T+14}, s{S_T+14}, {OOB}")
    a(f"v_lshlrev_b32 v65, 4, v{L}")

def pack_frag(a, q):
    jj, p = q // 2, q % 2
    off = 32 * jj + p
    if off == 0: a("v_mov_b32 v74, v62")
    elif off == 1: a("v_add_f32 v74, v62, v63")
    else:
        a(f"v_mov_b32 v75, {f32bits(float(off))}")
        a("v_fma_f32 v74, v63, v75, v62")
    for m in range(8):
        a(f"v_fract_f32 v74, v74")
        a(f"v_cos_f32 v{66+m}, v74")
        a(f"v_add_f32 v74, v74, v64")
    for qq in range(4):
        a(f"v_cvt_pk_bf16_f32 v{40+4*q+qq}, v{66+2*qq}, v{67+2*qq}")
    a(f"buffer_store_dwordx4 {vr(40+4*q,4)}, v65, {sr(SRD_WS,4)}, s{S_T+14} offen offset:{q*1024}{STF}")

def compute_loop(a, tr):
    regs = V_XA + V_WA
    lab = f"L_k1_loop{int(tr)}"
    a(f"s_mul_i32 s{S_T}, s{S_WAVE}, 3072")
    a(f"s_add_u32 s{S_T}, s{S_T}, {NSLOT*STAGE}")
    a(f"v_lshl_add_u32 v6, v{V_LANE}, 2, s{S_T}")
    for r in range(12): a(f"ds_write_b32 v6, v{EA+r} offset:{256*r}")
    a("s_waitcnt lgkmcnt(0)")
    stamp(a, 1)
    a("s_barrier")
    stamp(a, 2)
    for r in frag_reads(0, FS[0]): a(r)
    a.label(lab)
    a("s_waitcnt lgkmcnt(0)")
    interleave(a, mfmas(tr, FS[0]), frag_reads(1, FS[1]))
    a(f"s_add_u32 s{S_CNT}, s{S_CNT}, 1")
    a(f"s_cmp_eq_u32 s{S_CNT}, {NST}")
    a(f"s_cbranch_scc1 {lab}_last")
    a(f"s_add_u32 s{S_SLOT}, s{S_SLOT}, 1")
    a(f"s_mov_b32 s{S_DELTA}, {STAGE}")
    a(f"s_cmp_eq_u32 s{S_SLOT}, {NSLOT}")
    a(f"s_cselect_b32 s{S_DELTA}, {(-(NSLOT-1)*STAGE) & 0xffffffff}, s{S_DELTA}")
    a(f"s_cselect_b32 s{S_SLOT}, 0, s{S_SLOT}")
    for r in regs:
        a(f"v_add_u32 v{r}, s{S_DELTA}, v{r}")
    a("s_waitcnt lgkmcnt(0)")
    a("s_barrier")
    interleave(a, mfmas(tr, FS[1]), frag_reads(0, FS[0]))
    a(f"s_branch {lab}")
    a.label(f"{lab}_last")
    a("s_waitcnt lgkmcnt(0)")
    ms = mfmas(tr, FS[1])
    for m in ms: a(m)
    for r in range(12): a(f"ds_read_b32 v{EA2+r}, v6 offset:{256*r}")
    a("s_waitcnt lgkmcnt(0)")
    stamp(a, 3)

IMG = 2 * STAGE
S_GB = 67
S_NP = 68
EA2 = 72
EA = 60

def pre_qk(a):
    L = V_LANE; t = 8
    a(f"v_and_b32 v{t}, 15, v{L}")
    a(f"v_lshrrev_b32 v{t+1}, 4, v{L}")
    a(f"s_lshl_b32 s{S_T+2}, s{S_I}, 10")
    a(f"s_lshl_b32 s{S_T+3}, s{S_I}, 3")
    a(f"s_add_u32 s{S_T+3}, s{S_T+3}, 4096")
    a(f"s_mul_i32 s{S_T+6}, s{S_J}, 20")
    a(f"v_lshlrev_b32 v{t+10}, 4, v{t}")
    a(f"v_add_u32 v{t+10}, {IMG}, v{t+10}")
    a(f"v_add_u32 v{t+1}, s{S_T+6}, v{t+1}")
    a(f"v_mov_b32 v{t+7}, s{S_T+3}")
    a(f"v_mov_b32 v{t+9}, 512")
    for ct in range(5):
        A0, A1 = EA + 2 * ct, EA + 2 * ct + 1
        if ct: a(f"v_add_u32 v{t+1}, 4, v{t+1}")
        a(f"v_mul_u32_u24 v{t+3}, 205, v{t+1}")
        a(f"v_lshrrev_b32 v{t+3}, 10, v{t+3}")
        a(f"v_mul_u32_u24 v{t+4}, 5, v{t+3}")
        a(f"v_sub_u32 v{t+6}, v{t+1}, v{t+4}")
        a(f"v_mul_u32_u24 v{t+3}, 5120, v{t+3}")
        a(f"v_add_u32 v{t+3}, v{t+3}, v{t+10}")
        a(f"v_lshrrev_b32 v{t+4}, 1, v{t+6}")
        a(f"v_lshlrev_b32 v{t+4}, 9, v{t+4}")
        a(f"v_and_b32 v{t+5}, 1, v{t+6}")
        a(f"v_lshl_add_u32 v{t+4}, v{t+5}, 3, v{t+4}")
        a(f"v_cmp_eq_u32 vcc, 4, v{t+6}")
        a(f"v_add_u32 v{t+4}, s{S_T+2}, v{t+4}")
        a(f"v_mov_b32 v{t+8}, 2048")
        a(f"v_cndmask_b32 v{t+4}, v{t+4}, v{t+7}, vcc")
        a(f"v_cndmask_b32 v{t+8}, v{t+8}, v{t+9}, vcc")
        a(f"v_add_u32 v{A0}, v{t+3}, v{t+4}")
        a(f"v_add_u32 v{A1}, v{A0}, v{t+8}")

def pre_v(a):
    L = V_LANE; t = 8
    a(f"v_and_b32 v{t}, 15, v{L}")
    a(f"v_lshrrev_b32 v{t+1}, 4, v{L}")
    a(f"s_mul_i32 s{S_T+1}, s{S_I}, 1280")
    a(f"s_add_u32 s{S_T+1}, s{S_T+1}, {IMG}")
    a(f"v_and_b32 v{t+2}, 1, v{t+1}")
    a(f"v_mul_u32_u24 v{t+2}, 320, v{t+2}")
    a(f"v_lshrrev_b32 v{t+3}, 1, v{t+1}")
    a(f"v_lshl_add_u32 v{t+2}, v{t+3}, 3, v{t+2}")
    a(f"v_add_u32 v{t+2}, s{S_T+1}, v{t+2}")
    a(f"s_mul_i32 s{S_T+6}, s{S_J}, 80")
    a(f"v_add_u32 v{t}, s{S_T+6}, v{t}")
    a(f"s_movk_i32 s{S_T+7}, 3277")
    for ct in range(5):
        if ct: a(f"v_add_u32 v{t}, 16, v{t}")
        a(f"v_mul_u32_u24 v{t+3}, s{S_T+7}, v{t}")
        a(f"v_lshrrev_b32 v{t+3}, 16, v{t+3}")
        a(f"v_mul_u32_u24 v{t+4}, 20, v{t+3}")
        a(f"v_sub_u32 v{t+4}, v{t}, v{t+4}")
        a(f"v_mul_u32_u24 v{t+3}, 5120, v{t+3}")
        a(f"v_lshl_add_u32 v{t+4}, v{t+4}, 4, v{t+2}")
        a(f"v_add_u32 v{EA+ct}, v{t+4}, v{t+3}")

def pre_d(a):
    L = V_LANE; t = 8
    a(f"v_and_b32 v{t}, 15, v{L}")
    a(f"v_lshrrev_b32 v{t+1}, 4, v{L}")
    a(f"s_lshl_b32 s{S_T+1}, s{S_I}, 11")
    a(f"s_add_u32 s{S_T+1}, s{S_T+1}, {IMG}")
    a(f"v_lshl_add_u32 v{t+2}, v{t+1}, 2, s{S_T+1}")
    a(f"s_mul_i32 s{S_T+6}, s{S_J}, 80")
    a(f"v_add_u32 v{t}, s{S_T+6}, v{t}")
    a(f"s_cmp_lt_u32 s{S_CG}, 14")
    a(f"s_mov_b32 s{S_T+3}, {WS_BOT}")
    a(f"s_cselect_b32 s{S_T+3}, {WS_AET}, s{S_T+3}")
    a(f"s_cselect_b32 s{S_T+5}, 1.0, -1.0")
    a(f"s_and_b32 s{S_T+2}, s{S_CG}, 1")
    a(f"s_mul_i32 s{S_T+2}, s{S_T+2}, {5*AEP_ET}")
    a(f"s_add_u32 s{S_T+3}, s{S_T+3}, s{S_T+2}")
    a(f"s_add_u32 s{S_T+3}, s{S_T+3}, {64*1024}")
    a(f"s_mov_b32 s{S_T+4}, {AEP_ET}")
    for ct in range(5):
        if ct: a(f"v_add_u32 v{t}, 16, v{t}")
        a(f"v_lshrrev_b32 v{t+3}, 5, v{t}")
        a(f"v_and_b32 v{t+4}, 31, v{t}")
        a(f"v_lshlrev_b32 v{t+4}, 4, v{t+4}")
        a(f"v_lshl_add_u32 v{t+5}, v{t+3}, 12, v{t+4}")
        a(f"v_add_u32 v{EA+ct}, v{t+5}, v{t+2}")
        a(f"v_mul_lo_u32 v{t+5}, v{t+3}, s{S_T+4}")
        a(f"v_add3_u32 v{EA+5+ct}, v{t+5}, v{t+4}, s{S_T+3}")
    a(f"v_mov_b32 v{EA+10}, s{S_T+5}")
    a(f"v_mov_b32 v{EA+11}, s{S_T+5}")

def copy_setup(a):
    lab_d = a.newlabel("cpd"); lab_e = a.newlabel("cpe")
    a(f"s_cmp_ge_u32 s{S_CG}, 12")
    a(f"s_cbranch_scc1 {lab_d}")
    a(f"s_and_b32 s{S_T}, s{S_CG}, 3")
    a(f"s_lshl_b32 s{S_T}, s{S_T}, 3")
    a(f"s_add_u32 s{S_T}, s{S_T}, s{S_WAVE}")
    a(f"s_mul_i32 s{S_T}, s{S_T}, {Q_HEAD_BYTES}")
    a(f"s_mul_i32 s{S_T+1}, s{S_B}, 5120")
    a(f"s_add_u32 s{S_GB}, s{S_T}, s{S_T+1}")
    a(f"s_mov_b32 s{S_NP}, 5")
    a(f"s_cmp_lt_u32 s{S_CG}, 4")
    a(f"s_cbranch_scc1 {lab_e}")
    a(f"s_lshl_b32 s{S_GB}, s{S_GB}, 1")
    a(f"s_add_u32 s{S_GB}, s{S_GB}, {WS_KV}")
    a(f"s_cmp_lt_u32 s{S_CG}, 8")
    a(f"s_cbranch_scc1 {lab_e}")
    a(f"s_add_u32 s{S_GB}, s{S_GB}, 5120")
    a(f"s_branch {lab_e}")
    a.label(lab_d)
    a(f"s_cmp_lt_u32 s{S_CG}, 14")
    a(f"s_mov_b32 s{S_T+3}, {WS_BOT}")
    a(f"s_cselect_b32 s{S_T+3}, {WS_AET}, s{S_T+3}")
    a(f"s_and_b32 s{S_T}, s{S_CG}, 1")
    a(f"s_mul_i32 s{S_T}, s{S_T}, 5")
    a(f"s_add_u32 s{S_T}, s{S_T}, s{S_WAVE}")
    a(f"s_mul_i32 s{S_T}, s{S_T}, {AEP_ET}")
    a(f"s_lshl_b32 s{S_T+1}, s{S_B}, 12")
    a(f"s_add_u32 s{S_GB}, s{S_T}, s{S_T+1}")
    a(f"s_add_u32 s{S_GB}, s{S_GB}, s{S_T+3}")
    a(f"s_cmp_lt_u32 s{S_WAVE}, 5")
    a(f"s_cselect_b32 s{S_NP}, 4, 0")
    a.label(lab_e)

def copy_out(a):
    a.label("L_k1_copy")
    a("s_waitcnt lgkmcnt(0)")
    a("s_barrier")
    a(f"s_cmp_eq_u32 s{S_NP}, 0")
    a("s_cbranch_scc1 L_k1_done")
    a(f"s_mul_i32 s{S_T}, s{S_WAVE}, s{S_NP}")
    a(f"s_lshl_b32 s{S_T}, s{S_T}, 10")
    a(f"s_add_u32 s{S_T}, s{S_T}, {IMG}")
    a(f"v_lshlrev_b32 v2, 4, v{V_LANE}")
    a(f"v_add_u32 v3, s{S_T}, v2")
    for p in range(5):
        a(f"ds_read_b128 {vr(4+4*p,4)}, v3 offset:{p*1024}")
    for p in range(4):
        a(f"s_waitcnt lgkmcnt({4-p})")
        a(f"buffer_store_dwordx4 {vr(4+4*p,4)}, v2, {sr(SRD_WS,4)}, s{S_GB} offen offset:{p*1024}{STF}")
    a(f"s_cmp_eq_u32 s{S_NP}, 4")
    a("s_cbranch_scc1 L_k1_done")
    a(f"s_add_u32 s{S_GB}, s{S_GB}, 4096")
    a("s_waitcnt lgkmcnt(0)")
    a(f"buffer_store_dwordx4 {vr(20,4)}, v2, {sr(SRD_WS,4)}, s{S_GB} offen{STF}")
    a.label("L_k1_done")
    stamp(a, 4)
    stamp_store(a)
    endp(a, "L_A_done")

def epilogue_qk(a):
    lab = a.newlabel("noscale")
    a(f"s_cmp_ge_u32 s{S_CG}, 4")
    a(f"s_mov_b32 s{S_T+4}, {f32bits(QSCALE)}")
    a("s_nop 5")
    a(f"s_cbranch_scc1 {lab}")
    for r in range(80): a(f"v_mul_f32 v{ACC+r}, s{S_T+4}, v{ACC+r}")
    a.label(lab)
    pk = 20
    for ct in range(5):
        for a_ in range(4):
            c = acc(a_, ct)
            p = pk + 2 * (ct * 4 + a_)
            a(f"v_cvt_pk_bf16_f32 v{p}, v{c}, v{c+1}")
            a(f"v_cvt_pk_bf16_f32 v{p+1}, v{c+2}, v{c+3}")
            a(f"ds_write_b64 v{EA2+2*ct+(a_>>1)}, {vr(p,2)} offset:{(a_&1)*256}")
    a("s_branch L_k1_copy")

def epilogue_v(a):
    a("s_nop 7")
    pk = 20
    for ct in range(5):
        for a_ in range(4):
            c = acc(a_, ct)
            p = pk + 2 * (ct * 4 + a_)
            a(f"v_cvt_pk_bf16_f32 v{p}, v{c}, v{c+1}")
            a(f"v_cvt_pk_bf16_f32 v{p+1}, v{c+2}, v{c+3}")
            a(f"ds_write_b64 v{EA2+ct}, {vr(p,2)} offset:{(a_>>1)*2560 + (a_&1)*640}")
    a("s_branch L_k1_copy")

def epilogue_d(a):
    spec = a.newlabel("spec"); nospec = a.newlabel("nospec")
    a(f"s_lshl_b32 s{S_T+6}, s{S_J}, 4")
    a(f"s_add_u32 s{S_T+6}, s{S_T+6}, s{S_CG}")
    a(f"v_and_b32 v2, 15, v{V_LANE}")
    a(f"s_cmp_lg_u32 s{S_T+6}, 14")
    a(f"s_cbranch_scc1 {nospec}")
    a(f"v_cmp_eq_u32 vcc, 0, v2")
    a(f"v_mov_b32 v3, {WS_AET + 10*AEP_ET + 64*1024}")
    a("s_nop 0")
    a(f"v_cndmask_b32 v{EA2+5}, v{EA2+5}, v3, vcc")
    a(f"v_cndmask_b32 v{EA2+10}, v{EA2+10}, 1.0, vcc")
    a.label(nospec)
    lab = a.newlabel("nos0")
    a(f"s_or_b32 s{S_T+7}, s{S_B}, s{S_I}")
    a(f"s_cmp_lg_u32 s{S_T+7}, 0")
    a("s_nop 3")
    a(f"s_cbranch_scc1 {lab}")
    a("s_mov_b64 exec, 0xffff")
    for k in range(1, 4): a(f"v_mov_b32 v{8+k}, 0")
    for k in range(4): a(f"v_mov_b32 v{12+k}, 0")
    for ct in range(5):
        cm = acc(2, ct)
        a(f"v_cvt_pk_bf16_f32 v8, v{cm}, 0")
        a(f"v_mov_b32 v{cm}, 0")
        a(f"buffer_store_dwordx4 v[8:11], v{EA2+5+ct}, {sr(SRD_WS,4)}, 0 offen{STF}")
        a(f"buffer_store_dwordx4 v[12:15], v{EA2+5+ct}, {sr(SRD_WS,4)}, 0 offen offset:512{STF}")
        a("s_nop 1")
    a("s_mov_b64 exec, -1")
    a.label(lab)
    pk = 20
    for ct in range(5):
        for a_ in range(2):
            cs, cm = acc(a_, ct), acc(a_ + 2, ct)
            for r in range(4):
                a(f"v_fma_f32 v{cs+r}, v{cm+r}, v{EA2+10 if ct == 0 else EA2+11}, v{cs+r}")
            p = pk + 2 * (ct * 2 + a_)
            a(f"v_cvt_pk_bf16_f32 v{p}, v{cs}, v{cs+2}")
            a(f"v_cvt_pk_bf16_f32 v{p+1}, v{cs+1}, v{cs+3}")
            a(f"ds_write_b32 v{EA2+ct}, v{p} offset:{a_*512}")
            a(f"ds_write_b32 v{EA2+ct}, v{p+1} offset:{a_*512+1024}")
    a(f"s_cmp_lg_u32 s{S_T+6}, 14")
    a("s_cbranch_scc1 L_k1_copy")
    a(f"v_lshrrev_b32 v3, 4, v{V_LANE}")
    a(f"v_lshlrev_b32 v4, 2, v3")
    a(f"s_lshl_b32 s{S_T}, s{S_B}, 12")
    a(f"s_lshl_b32 s{S_T+1}, s{S_I}, 11")
    a(f"s_add_u32 s{S_T}, s{S_T}, s{S_T+1}")
    a(f"s_add_u32 s{S_T}, s{S_T}, {WS_AET + 10*AEP_ET}")
    a(f"v_cmp_eq_u32 vcc, 0, v2")
    a("s_and_saveexec_b64 s[58:59], vcc")
    for a_ in range(2):
        a(f"buffer_store_dword v{pk+2*a_}, v4, {sr(SRD_WS,4)}, s{S_T} offen offset:{a_*512}{STF}")
        a(f"buffer_store_dword v{pk+2*a_+1}, v4, {sr(SRD_WS,4)}, s{S_T} offen offset:{a_*512+1024}{STF}")
    a("s_mov_b64 exec, -1")
    a("s_branch L_k1_copy")

def gen_k1(a, name, side=None):
    kernel_header(a, name)
    a("s_cmp_ge_u32 s2, 256")
    a("s_cbranch_scc1 L_k1_exit")
    a(f"s_load_dwordx4 {sr(S_X,4)}, s[0:1], 0")
    a(f"s_load_dwordx4 {sr(S_DRE,4)}, s[0:1], 48")
    a(f"s_load_dwordx2 {sr(S_WS,2)}, s[0:1], 88")
    a(f"s_load_dwordx4 s[4:7], s[0:1], 32")
    stamp(a, 0)
    a(f"v_and_b32 v{V_LANE}, 63, v0")
    a(f"v_lshrrev_b32 v2, 6, v0")
    a("s_nop 0")
    a(f"v_readfirstlane_b32 s{S_WAVE}, v2")
    if XMAP == 0:
        a(f"s_and_b32 s{S_T}, s2, 1")
        a(f"s_lshl_b32 s{S_T}, s{S_T}, 3")
        a(f"s_bfe_u32 s{S_T+1}, s2, 0x30003")
        a(f"s_add_u32 s{S_B}, s{S_T}, s{S_T+1}")
        a(f"s_bfe_u32 s{S_T}, s2, 0x20001")
        a(f"s_lshl_b32 s{S_T}, s{S_T}, 2")
        a(f"s_lshr_b32 s{S_T+1}, s2, 6")
        a(f"s_add_u32 s{S_CG}, s{S_T}, s{S_T+1}")
    elif XMAP == 1:
        a(f"s_and_b32 s{S_T}, s2, 7")
        a(f"s_lshl_b32 s{S_T}, s{S_T}, 1")
        a(f"s_bfe_u32 s{S_T+1}, s2, 0x10003")
        a(f"s_add_u32 s{S_B}, s{S_T}, s{S_T+1}")
        a(f"s_lshr_b32 s{S_CG}, s2, 4")
    elif XMAP == 2:
        a(f"s_and_b32 s{S_T}, s2, 7")
        a(f"s_lshl_b32 s{S_T}, s{S_T}, 1")
        a(f"s_bfe_u32 s{S_T+1}, s2, 0x10003")
        a(f"s_add_u32 s{S_CG}, s{S_T}, s{S_T+1}")
        a(f"s_lshr_b32 s{S_B}, s2, 4")
    elif XMAP == 3:
        a(f"s_and_b32 s{S_T}, s2, 3")
        a(f"s_lshl_b32 s{S_T}, s{S_T}, 2")
        a(f"s_bfe_u32 s{S_T+1}, s2, 0x20003")
        a(f"s_add_u32 s{S_B}, s{S_T}, s{S_T+1}")
        a(f"s_bfe_u32 s{S_T}, s2, 0x10002")
        a(f"s_lshl_b32 s{S_T}, s{S_T}, 3")
        a(f"s_lshr_b32 s{S_T+1}, s2, 5")
        a(f"s_add_u32 s{S_CG}, s{S_T}, s{S_T+1}")
    a(f"s_bfe_u32 s{S_I}, s{S_WAVE}, 0x10001")
    a(f"s_and_b32 s{S_J}, s{S_WAVE}, 1")
    a(f"s_and_b32 s{S_T}, s{S_CG}, 1")
    a(f"s_cmp_lt_u32 s{S_CG}, 12")
    a(f"s_cselect_b32 s{S_T}, s{S_CG}, s{S_T}")
    a(f"s_cselect_b32 s{S_WSTR}, 3840, 64")
    a(f"s_mul_i32 s{S_WCOL}, s{S_T}, 320")
    a(f"s_cselect_b32 s{S_T+1}, 0, 1216")
    a(f"s_add_u32 s{S_WSTR}, s{S_WSTR}, s{S_T+1}")
    a(f"s_lshl_b32 s{S_WSTEP}, s{S_WSTR}, 6")
    a(f"s_mul_i32 s{S_T+2}, s{S_WSTR}, 640")
    a("s_waitcnt lgkmcnt(0)")
    make_srd(a, SRD_X, S_X, S_X + 1, 0, S * D * 2)
    a(f"s_cmp_lt_u32 s{S_CG}, 14")
    a(f"s_cselect_b32 s{SRD_W}, s{S_DRE}, s{S_DIM}")
    a(f"s_cselect_b32 s{SRD_W+1}, s{S_DRE+1}, s{S_DIM+1}")
    a(f"s_cmp_lt_u32 s{S_CG}, 12")
    a(f"s_cselect_b32 s{SRD_W}, s{S_W}, s{SRD_W}")
    a(f"s_cselect_b32 s{SRD_W+1}, s{S_W+1}, s{SRD_W+1}")
    a(f"s_mov_b32 s{SRD_W+2}, s{S_T+2}")
    a(f"s_mov_b32 s{SRD_W+3}, 0x00020000")
    make_srd(a, SRD_WS, S_WS, S_WS + 1, 0, WS_END)
    a(f"s_cmp_lt_u32 s2, 128")
    a(f"s_cselect_b32 s{SRD_SQ}, s4, s6")
    a(f"s_cselect_b32 s{SRD_SQ+1}, s5, s7")
    a(f"s_mov_b32 s{SRD_SQ+2}, {S*S*2}")
    a(f"s_mov_b32 s{SRD_SQ+3}, 0x00020000")
    if STAMP: make_srd(a, 96, S_WS, S_WS + 1, 0x2000000, 0x100000)
    if side:
        a(f"s_cmp_ge_u32 s{S_WAVE}, 8")
        a("s_cbranch_scc1 L_k1_side")
    a(f"s_cmp_ge_u32 s{S_WAVE}, 4")
    a("s_cbranch_scc1 L_k1_loader")
    compute_setup(a)
    copy_setup(a)
    a(f"s_cmp_ge_u32 s{S_CG}, 8")
    a("s_cbranch_scc1 L_k1_c1")
    pre_qk(a)
    compute_loop(a, True)
    epilogue_qk(a)
    a.label("L_k1_c1")
    a(f"s_cmp_ge_u32 s{S_CG}, 12")
    a("s_cbranch_scc1 L_k1_c1d")
    pre_v(a)
    a("s_branch L_k1_c1go")
    a.label("L_k1_c1d")
    pre_d(a)
    a.label("L_k1_c1go")
    compute_loop(a, False)
    a(f"s_cmp_ge_u32 s{S_CG}, 12")
    a("s_cbranch_scc1 L_k1_c2")
    epilogue_v(a)
    a.label("L_k1_c2")
    epilogue_d(a)
    a.label("L_k1_loader")
    loader(a)
    a.label("L_k1_exit")
    a("s_endpgm")
    if side:
        a.label("L_k1_side")
        side(a)
```

```python
from common import *

V_LANE = 1; V_KA = 2; V_VA = 3
V_T0 = 4
Q1 = 10
Q2W = 14
Q2 = {1: 14, 0: 16, 3: 18, 2: 20}
CM = 24
SB = [40, 56]
OA = 72
PR = 88
KB = [96, 100]
K2B = [104, 108]
V0B = [112, 116]
V1B = [120, 124]
V_M = 128
V_KA0 = 129; V_VA0 = 130

S_WS = 4
SRD_Q = 8; SRD_KV = 12; SRD_O = 16
S_WAVE = 52; S_HEAD = 53; S_QB = 54; S_IT = 55; S_BARM = 56; S_FB = 57
S_VMASK = 58
S_T = 60

def mfma32(a, d, A, B, C):
    c = "0" if C is None else vr(C, 16)
    a(f"v_mfma_f32_32x32x16_bf16 {vr(d,16)}, {vr(A,4)}, {vr(B,4)}, {c}")

def k_off(u):  return (u // 4) * 10240 + (u % 4) * 1024
def k2_off(cc): return cc * 10240 + 4096
def v_off(u, i): return (u // 4) * 10240 + (u % 4) * 1280 + i * 640

def exps(a, s, lo, n=4):
    for i in range(lo, lo + n):
        a(f"v_exp_f32 v{s+i}, v{s+i}")
def cvts(a, s, lo):
    for i in (lo, lo + 2):
        a(f"v_cvt_pk_bf16_f32 v{PR+i//2}, v{s+i}, v{s+i+1}")

NOEXEC = 0; NOLDS = 0; NOWAIT = 0; NOBARCHK = 0; ORDER = 0
def tile_body(a, u, bar_points):
    s_cur = SB[u % 2]; s_nxt = SB[(u + 1) % 2]
    nread = 1
    if u % 4 == 2 and not NOBARCHK:
        lab = a.newlabel("nobar")
        a(f"s_bitcmp1_b32 s{S_BARM}, s{S_IT}" if u == 2 else f"s_bitcmp1_b32 s{S_BARM+0}, s{S_T}")
        a(f"s_cbranch_scc0 {lab}")
        a("s_barrier")
        a.label(lab)
    if not NOLDS: a(f"ds_read_b128 {vr(KB[u%2],4)}, v{V_KA} offset:{k_off(u+2)}")
    else: a("s_nop 0")
    if u % 4 == 2:
        cc = u // 4 + 1
        if not NOLDS: a(f"ds_read_b128 {vr(K2B[cc%2],4)}, v{V_KA} offset:{k2_off(cc)}")
        nread = 2
    if not NOWAIT: a(f"s_waitcnt lgkmcnt({nread})")
    else: a("s_nop 0")
    mfma32(a, OA, V1B[(u - 1) % 2], PR + 4, OA)
    def vreads():
        if not NOEXEC: a(f"s_mov_b64 exec, {sr(S_VMASK,2)}")
        if not NOLDS:
            a(f"ds_read_b128 {vr(V0B[(u+1)%2],4)}, v{V_VA} offset:{v_off(u+1,0)}")
            a(f"ds_read_b128 {vr(V1B[(u+1)%2],4)}, v{V_VA} offset:{v_off(u+1,1)}")
        if not NOEXEC: a("s_mov_b64 exec, -1")
    if ORDER == 0:
        vreads()
        exps(a, s_cur, 0); cvts(a, s_cur, 0)
        mfma32(a, s_nxt, KB[(u + 1) % 2], Q1, CM)
        exps(a, s_cur, 4); cvts(a, s_cur, 4)
        mfma32(a, s_nxt, K2B[((u + 1) // 4) % 2], Q2[(u + 1) % 4], s_nxt)
        exps(a, s_cur, 8); cvts(a, s_cur, 8)
        mfma32(a, OA, V0B[u % 2], PR, OA)
        exps(a, s_cur, 12); cvts(a, s_cur, 12)
    elif ORDER == 1:
        def ee_c(lo):
            exps(a, s_cur, lo, 2)
        def c1(i): a(f"v_cvt_pk_bf16_f32 v{PR+i//2}, v{s_cur+i}, v{s_cur+i+1}")
        vreads()
        exps(a, s_cur, 0, 3); c1(0); exps(a, s_cur, 3, 2); c1(2)
        mfma32(a, s_nxt, KB[(u + 1) % 2], Q1, CM)
        exps(a, s_cur, 5, 2); c1(4); exps(a, s_cur, 7, 2); c1(6)
        mfma32(a, s_nxt, K2B[((u + 1) // 4) % 2], Q2[(u + 1) % 4], s_nxt)
        exps(a, s_cur, 9, 2); c1(8); exps(a, s_cur, 11, 2); c1(10)
        mfma32(a, OA, V0B[u % 2], PR, OA)
        exps(a, s_cur, 13, 2); c1(12); exps(a, s_cur, 15, 1); a("s_nop 0"); c1(14)

def max16(a, dst, s, first):
    t = V_T0
    if first:
        a(f"v_max3_f32 v{dst}, v{s}, v{s+1}, v{s+2}")
        rest = list(range(3, 16))
    else:
        rest = list(range(0, 16))
    while len(rest) >= 2:
        x, y = rest.pop(0), rest.pop(0)
        a(f"v_max3_f32 v{dst}, v{dst}, v{s+x}, v{s+y}")
    if rest:
        a(f"v_max_f32 v{dst}, v{dst}, v{s+rest[0]}")

def cross_half_max(a, m):
    t0, t1 = V_T0, V_T0 + 1
    a(f"v_mov_b32 v{t0}, v{m}")
    a(f"v_mov_b32 v{t1}, v{m}")
    a("s_nop 1")
    a(f"v_permlane32_swap_b32 v{t0}, v{t1}")
    a("s_nop 1")
    a(f"v_max_f32 v{m}, v{t0}, v{t1}")

BAR_POINTS = {0: 1, 1: 4, 3: 15}

STAMP = False
AHEAD = 2
PRIO = 3
PT_OLD = 3
PT_YOUNG = 6
S_PT = 79
def stamp(a, idx):
    if STAMP:
        a(f"s_memtime s[{78+2*idx}:{79+2*idx}]")
def stamp_rt(a, idx):
    if STAMP:
        a(f"s_memrealtime s[{78+2*idx}:{79+2*idx}]")
def stamp_store(a, n):
    if not STAMP: return
    a("s_waitcnt lgkmcnt(0)")
    a("s_mov_b64 exec, -1")
    a(f"s_lshl_b32 s{S_T}, s2, 4")
    a(f"s_add_u32 s{S_T}, s{S_T}, s{S_WAVE}")
    a(f"s_lshl_b32 s{S_T}, s{S_T}, 6")
    a(f"s_add_u32 s{S_T}, s{S_T}, 0x400000")
    a(f"v_mov_b32 v2, 0")
    for i in range(n):
        a(f"v_mov_b32 v3, s{78+2*i}")
        a(f"buffer_store_dword v3, v2, s[96:99], s{S_T} offen offset:{4*i}")
def attention_wave(a):
    lab_run = "L_att_run"; lab_loop = "L_att_loop"; lab_epi = "L_att_epi"
    a(f"s_lshr_b32 s{S_T}, s{S_WAVE}, 2")
    a(f"s_lshl_b32 s{S_T+1}, s{S_QB}, 1")
    a(f"s_add_u32 s{S_T}, s{S_T}, s{S_T+1}")
    a(f"s_mul_i32 s{S_T}, s{S_T}, 5120")
    a(f"s_and_b32 s{S_T+1}, s{S_WAVE}, 3")
    a(f"s_lshl_b32 s{S_T+2}, s{S_T+1}, 10")
    a(f"s_add_u32 s{S_T+2}, s{S_T+2}, s{S_T}")
    a(f"v_lshlrev_b32 v{V_KA}, 4, v{V_LANE}")
    a(f"buffer_load_dwordx4 {vr(Q1,4)}, v{V_KA}, {sr(SRD_Q,4)}, s{S_T+2} offen{Cfg.LDF}")
    a(f"s_lshr_b32 s{S_T+3}, s{S_T+1}, 1")
    a(f"s_lshl_b32 s{S_T+3}, s{S_T+3}, 9")
    a(f"s_and_b32 s{S_T+4}, s{S_T+1}, 1")
    a(f"s_lshl_b32 s{S_T+4}, s{S_T+4}, 3")
    a(f"s_add_u32 s{S_T+3}, s{S_T+3}, s{S_T+4}")
    a(f"s_add_u32 s{S_T+3}, s{S_T+3}, s{S_T}")
    a(f"s_add_u32 s{S_T+3}, s{S_T+3}, 4096")
    a(f"v_and_b32 v{V_T0}, 31, v{V_LANE}")
    a(f"v_lshlrev_b32 v{V_T0+1}, 4, v{V_T0}")
    a(f"buffer_load_dwordx2 {vr(V_T0+2,2)}, v{V_T0+1}, {sr(SRD_Q,4)}, s{S_T+3} offen{Cfg.LDF}")
    a(f"v_lshrrev_b32 v{V_T0+4}, 5, v{V_LANE}")
    a(f"v_mad_u32_u24 v{V_VA}, v{V_T0+4}, 20, v{V_T0}")
    a(f"v_lshlrev_b32 v{V_VA}, 4, v{V_VA}")
    a(f"v_add_u32 v{V_VA0}, 5120, v{V_VA}")
    a(f"v_mov_b32 v{V_KA0}, v{V_KA}")
    a(f"v_mov_b32 v{V_T0+5}, 0x3f803f80")
    a(f"v_cmp_eq_u32 vcc, 20, v{V_T0}")
    a("s_nop 1")
    a(f"v_cndmask_b32 v{V_T0+5}, 0, v{V_T0+5}, vcc")
    for r in range(V0B[0], V0B[0] + 16):
        a(f"v_mov_b32 v{r}, v{V_T0+5}")
    a(f"v_cmp_gt_u32 {sr(S_VMASK,2)}, 20, v{V_T0}")
    for r in (0, 1, 4, 5, 8, 9):
        a(f"v_mov_b32 v{Q2W+r}, 0")
    a(f"v_cmp_gt_u32 vcc, 32, v{V_LANE}")
    a("s_waitcnt vmcnt(0)")
    a(f"v_cndmask_b32 v{Q2W+2}, 0, v{V_T0+2}, vcc")
    a(f"v_cndmask_b32 v{Q2W+3}, 0, v{V_T0+3}, vcc")
    a(f"v_cndmask_b32 v{Q2W+6}, v{V_T0+2}, 0, vcc")
    a(f"v_cndmask_b32 v{Q2W+7}, v{V_T0+3}, 0, vcc")
    m = 0
    for p in BAR_POINTS:
        if p % 2 == 0: m |= 1 << (p // 2)
        else: m |= 1 << (16 + p // 2)
    a(f"s_mov_b32 s{S_BARM}, {m}")
    a(f"s_mov_b32 s{S_FB}, 0")
    if PRIO == 3:
        l1 = a.newlabel("pr")
        a(f"s_bitcmp1_b32 s{S_WAVE}, 2")
        a(f"s_cselect_b32 s{S_PT}, {PT_YOUNG}, {PT_OLD}")
        a(f"s_cbranch_scc0 {l1}")
        a("s_setprio 1")
        a.label(l1)
    stamp(a, 1)
    a("s_barrier")
    stamp(a, 2)
    a(f"ds_read_b128 {vr(KB[0],4)}, v{V_KA} offset:{k_off(0)}")
    a(f"ds_read_b128 {vr(K2B[0],4)}, v{V_KA} offset:{k2_off(0)}")
    a("s_waitcnt lgkmcnt(0)")
    mfma32(a, SB[0], KB[0], Q1, None)
    mfma32(a, SB[0], K2B[0], Q2[0], SB[0])
    a("s_nop 15")
    max16(a, V_M, SB[0], True)
    cross_half_max(a, V_M)
    a.label(lab_run)
    a(f"v_mov_b32 v{V_KA}, v{V_KA0}")
    a(f"v_mov_b32 v{V_VA}, v{V_VA0}")
    a(f"ds_read_b128 {vr(KB[0],4)}, v{V_KA} offset:{k_off(0)}")
    a(f"ds_read_b128 {vr(K2B[0],4)}, v{V_KA} offset:{k2_off(0)}")
    a(f"ds_read_b128 {vr(KB[1],4)}, v{V_KA} offset:{k_off(1)}")
    a(f"s_mov_b64 exec, {sr(S_VMASK,2)}")
    a(f"ds_read_b128 {vr(V0B[0],4)}, v{V_VA} offset:{v_off(0,0)}")
    a(f"ds_read_b128 {vr(V1B[0],4)}, v{V_VA} offset:{v_off(0,1)}")
    a("s_mov_b64 exec, -1")
    for i in range(16):
        a(f"v_sub_f32 v{CM+i}, 0, v{V_M}")
    for i in range(16):
        a(f"v_mov_b32 v{OA+i}, 0")
    for i in range(8):
        a(f"v_mov_b32 v{PR+i}, 0")
    a(f"s_mov_b32 s{S_IT}, 0")
    a(f"s_mov_b32 s{S_T}, 16")
    a("s_waitcnt lgkmcnt(0)")
    mfma32(a, SB[0], KB[0], Q1, CM)
    mfma32(a, SB[0], K2B[0], Q2[0], SB[0])
    a("s_nop 7")
    stamp(a, 3)
    a(".p2align 3")
    a.label(lab_loop)
    if PRIO == 3:
        l1 = a.newlabel("pr"); l2 = a.newlabel("pr")
        a(f"s_cmp_lg_u32 s{S_IT}, s{S_PT}")
        a(f"s_cbranch_scc1 {l2}")
        a(f"s_bitcmp1_b32 s{S_WAVE}, 2")
        a(f"s_cbranch_scc1 {l1}")
        a("s_setprio 2")
        a(f"s_branch {l2}")
        a.label(l1)
        a("s_setprio 0")
        a.label(l2)
    for u in range(8):
        if PRIO == 1 and u in (0, 4):
            lab = a.newlabel("prio")
            a(f"s_setprio {0 if u == 0 else 1}")
            a(f"s_bitcmp1_b32 s{S_WAVE}, 2")
            a(f"s_cbranch_scc0 {lab}")
            a(f"s_setprio {1 if u == 0 else 0}")
            a.label(lab)
        if PRIO == 2 and u % 2 == 0:
            lab = a.newlabel("prio")
            a(f"s_setprio {(u//2)%2}")
            a(f"s_bitcmp1_b32 s{S_WAVE}, 2")
            a(f"s_cbranch_scc0 {lab}")
            a(f"s_setprio {1-(u//2)%2}")
            a.label(lab)
        tile_body(a, u, None)
    a(f"v_add_u32 v{V_KA}, 20480, v{V_KA}")
    a(f"v_add_u32 v{V_VA}, 20480, v{V_VA}")
    a(f"s_add_u32 s{S_IT}, s{S_IT}, 1")
    a(f"s_add_u32 s{S_T}, s{S_T}, 1")
    a(f"s_cmp_lt_u32 s{S_IT}, 8")
    a(f"s_cbranch_scc1 {lab_loop}")
    stamp(a, 4)
    stamp_rt(a, 6)
    a("s_waitcnt lgkmcnt(0)")
    mfma32(a, OA, V1B[1], PR + 4, OA)
    a("s_nop 15")
    a("s_nop 3")
    t = V_T0
    a(f"v_add_f32 v{t}, |v{OA}|, |v{OA+1}|")
    for i in range(2, 12):
        a(f"v_add_f32 v{t}, v{t}, |v{OA+i}|")
    a(f"s_mov_b32 s{S_T+1}, 0x7b800000")
    a(f"v_cmp_gt_f32 vcc, s{S_T+1}, v{t}")
    a("s_nop 3")
    a("s_cmp_eq_u64 vcc, exec")
    a(f"s_cbranch_scc1 {lab_epi}")
    a(f"s_cmp_lg_u32 s{S_FB}, 0")
    a(f"s_cbranch_scc1 {lab_epi}")
    a(f"s_mov_b32 s{S_FB}, 1")
    a(f"s_mov_b32 s{S_BARM}, 0")
    a(f"v_mov_b32 v{V_KA}, v{V_KA0}")
    a(f"v_mov_b32 v{V_M}, 0xff800000")
    a(f"s_mov_b32 s{S_IT}, 0")
    a.label("L_att_fbmax")
    a(f"ds_read_b128 {vr(K2B[0],4)}, v{V_KA} offset:{k2_off(0)}")
    for tt in range(4):
        a(f"ds_read_b128 {vr(KB[0],4)}, v{V_KA} offset:{k_off(tt)}")
        a("s_waitcnt lgkmcnt(0)")
        mfma32(a, SB[0], KB[0], Q1, None)
        mfma32(a, SB[0], K2B[0], Q2[tt], SB[0])
        a("s_nop 15")
        a("s_nop 3")
        max16(a, V_M, SB[0], False)
    a(f"v_add_u32 v{V_KA}, 10240, v{V_KA}")
    a(f"s_add_u32 s{S_IT}, s{S_IT}, 1")
    a(f"s_cmp_lt_u32 s{S_IT}, 16")
    a("s_cbranch_scc1 L_att_fbmax")
    cross_half_max(a, V_M)
    a(f"s_branch {lab_run}")
    a.label(lab_epi)
    t0, t1, t2, t3 = V_T0, V_T0 + 1, V_T0 + 2, V_T0 + 3
    a(f"v_mov_b32 v{t0}, v{OA+8}")
    a(f"v_mov_b32 v{t1}, v{OA+8}")
    a("s_nop 1")
    a(f"v_permlane32_swap_b32 v{t0}, v{t1}")
    a("s_nop 1")
    a(f"v_rcp_f32 v{t1}, v{t1}")
    a(f"s_lshr_b32 s{S_T}, s{S_WAVE}, 2")
    a(f"s_lshl_b32 s{S_T+1}, s{S_QB}, 1")
    a(f"s_add_u32 s{S_T}, s{S_T}, s{S_T+1}")
    a(f"s_lshl_b32 s{S_T}, s{S_T}, 6")
    a(f"s_and_b32 s{S_T+1}, s{S_WAVE}, 1")
    a(f"s_lshl_b32 s{S_T+1}, s{S_T+1}, 5")
    a(f"s_add_u32 s{S_T}, s{S_T}, s{S_T+1}")
    a(f"v_and_b32 v{t2}, 31, v{V_LANE}")
    a(f"v_add_u32 v{t2}, s{S_T}, v{t2}")
    a(f"s_bitcmp1_b32 s{S_WAVE}, 1")
    a("s_cbranch_scc0 L_att_direct")
    a(f"v_sub_u32 v{t3}, 2048, v{t2}")
    a(f"v_cmp_eq_u32 vcc, 0, v{t2}")
    a(f"v_mov_b32 v{t2}, 1024")
    a("s_nop 0")
    a(f"v_cndmask_b32 v{t2}, v{t3}, v{t2}, vcc")
    a.label("L_att_direct")
    a(f"v_lshrrev_b32 v{t3}, 4, v{t2}")
    a(f"v_mul_u32_u24 v{t3}, 20480, v{t3}")
    a(f"v_and_b32 v{t2}, 15, v{t2}")
    a(f"v_lshl_add_u32 v{t2}, v{t2}, 4, v{t3}")
    a(f"s_mul_i32 s{S_T+3}, s{S_HEAD}, 5")
    a(f"v_lshrrev_b32 v{t3}, 5, v{V_LANE}")
    a(f"v_add_u32 v{t3}, s{S_T+3}, v{t3}")
    a(f"v_lshrrev_b32 v{t0}, 1, v{t3}")
    a(f"v_lshl_add_u32 v{t2}, v{t0}, 8, v{t2}")
    a(f"v_and_b32 v{t3}, 1, v{t3}")
    a(f"v_lshl_add_u32 v{t2}, v{t3}, 3, v{t2}")
    for i in range(12):
        a(f"v_mul_f32 v{OA+i}, v{OA+i}, v{t1}")
    for i in range(6):
        a(f"v_cvt_pk_bf16_f32 v{PR+i}, v{OA+2*i}, v{OA+2*i+1}")
    a(f"buffer_store_dwordx2 {vr(PR,2)}, v{t2}, {sr(SRD_O,4)}, 0 offen{Cfg.STF2}")
    a(f"buffer_store_dwordx2 {vr(PR+2,2)}, v{t2}, {sr(SRD_O,4)}, 0 offen offset:256{Cfg.STF2}")
    a("s_mov_b64 exec, 0xffffffff")
    a(f"buffer_store_dwordx2 {vr(PR+4,2)}, v{t2}, {sr(SRD_O,4)}, 0 offen offset:512{Cfg.STF2}")
    if STAMP: a("s_waitcnt vmcnt(0)")
    stamp(a, 5)
    stamp_store(a, 8)
    a("s_mov_b64 exec, -1")
    endp(a, "L_B_done")

def helper_dma(a):
    sA, sB = S_T, S_T + 1
    a(f"s_sub_u32 s{sA}, s{S_WAVE}, 8")
    a(f"s_lshl_b32 s{sA}, s{sA}, 10")
    a(f"v_lshlrev_b32 v2, 4, v{V_LANE}")
    def cnt(c): return (10 * (c + 1) + 3) // 4
    needs = [cnt(0)] + [cnt(BAR_POINTS[p]) for p in sorted(BAR_POINTS)]
    issue_upto = [min(40, n + AHEAD) for n in needs]
    issue_upto[-1] = 40
    n = 0
    for need, upto in zip(needs, issue_upto):
        while n < upto:
            x, y = (sA, sB) if n % 2 == 0 else (sB, sA)
            a(f"s_mov_b32 m0, s{x}")
            a(f"s_add_u32 s{y}, s{x}, 4096")
            a(f"buffer_load_dwordx4 v2, {sr(SRD_KV,4)}, s{x} offen{Cfg.LDF} lds")
            n += 1
        a(f"s_waitcnt vmcnt({n - need})")
        a("s_barrier")

def gen_k2(a, name, helper_extra=None, sync=None):
    if not Cfg.MEGA:
        kernel_header(a, name)
        a("s_cmp_ge_u32 s2, 256")
        a("s_cbranch_scc1 L_k2_exit")
    a(f"s_load_dwordx2 {sr(S_WS,2)}, s[0:1], 88")
    a(f"s_load_dwordx2 s[68:69], s[0:1], 0")
    a(f"s_load_dwordx2 s[70:71], s[0:1], 16")
    a(f"s_load_dwordx4 s[72:75], s[0:1], 32")
    a(f"s_load_dwordx2 s[76:77], s[0:1], 64")
    stamp(a, 0)
    stamp_rt(a, 7)
    a(f"v_and_b32 v{V_LANE}, 63, v0")
    a(f"v_lshrrev_b32 v2, 6, v0")
    a("s_nop 0")
    a(f"v_readfirstlane_b32 s{S_WAVE}, v2")
    a(f"s_and_b32 s{S_T}, s2, 7")
    a(f"s_lshl_b32 s{S_T}, s{S_T}, 2")
    a(f"s_lshr_b32 s{S_T+1}, s2, 3")
    a(f"s_and_b32 s{S_T+1}, s{S_T+1}, 3")
    a(f"s_add_u32 s{S_HEAD}, s{S_T}, s{S_T+1}")
    a(f"s_lshr_b32 s{S_QB}, s2, 5")
    a(f"s_mul_i32 s{S_T}, s{S_HEAD}, {Q_HEAD_BYTES}")
    a(f"s_mul_i32 s{S_T+1}, s{S_HEAD}, {KV_HEAD_BYTES}")
    a(f"s_add_u32 s{S_T+1}, s{S_T+1}, {WS_KV}")
    a("s_waitcnt lgkmcnt(0)")
    make_srd(a, SRD_Q, S_WS, S_WS + 1, f"s{S_T}", Q_HEAD_BYTES)
    make_srd(a, SRD_KV, S_WS, S_WS + 1, f"s{S_T+1}", KV_HEAD_BYTES)
    make_srd(a, SRD_O, S_WS, S_WS + 1, WS_O, S * D * 2)
    if STAMP: make_srd(a, 96, S_WS, S_WS + 1, WS_O, 0x1000000)
    if helper_extra: helper_extra.setup(a)
    if sync: sync(a)
    a(f"s_cmp_ge_u32 s{S_WAVE}, 8")
    a("s_cbranch_scc1 L_k2_helper")
    attention_wave(a)
    a.label("L_k2_helper")
    helper_dma(a)
    if helper_extra: helper_extra.body(a)
    a.label("L_k2_exit")
    endp(a, "L_B_done")
```

```python
from common import *
import k2
from k2 import S_WAVE, S_T, S_WS, V_LANE, mfma32
import math, struct
def f32bits(x): return struct.unpack("<I", struct.pack("<f", x))[0]
OOB = 0x40000000
SRD_CS = 20; SRD_SS = 24; SRD_AE = 28; SRD_BO = 32; SRD_Y = 36; SRD_A = 40; SRD_B = 44; SRD_G = 48
ACCP = 8; ACCQ = 24; BUF = 40; DEPTH = 11; HPRIO = 0; EPRIO = 1; DFT_SYNC = None

def setup(a):
    make_srd(a, SRD_A, S_WS, S_WS + 1, WS_CP, 17 * 65536)
    make_srd(a, SRD_B, S_WS, S_WS + 1, WS_SP, 17 * 65536)
    make_srd(a, SRD_AE, S_WS, S_WS + 1, WS_AET, 11 * AEP_ET)
    make_srd(a, SRD_BO, S_WS, S_WS + 1, WS_BOT, 11 * AEP_ET)
    make_srd(a, SRD_Y, S_WS, S_WS + 1, WS_Y, S * D * 2)

PE, PO, QE, QO = 8, 24, 40, 56
def dft2(a):
    L = V_LANE
    BUF = 72
    sTT, sET, sN = S_T + 2, S_T + 3, S_T + 4
    a(f"s_cmp_lg_u32 s{S_WAVE}, 8")
    a("s_cbranch_scc1 L_k2_exit")
    a(f"s_lshr_b32 s{sN}, s2, 3")
    a(f"s_and_b32 s{S_T+1}, s2, 7")
    a(f"s_cmp_ge_u32 s{sN}, 11")
    a(f"s_cselect_b32 s{S_T}, 8, 0")
    a(f"s_cselect_b32 s{sET}, 11, 0")
    a(f"s_add_u32 s{sTT}, s{S_T+1}, s{S_T}")
    a(f"s_sub_u32 s{sET}, s{sN}, s{sET}")
    a(f"s_cmp_lt_u32 s{sN}, 22")
    a("s_cbranch_scc1 L_dft_go")
    a(f"s_sub_u32 s{sET}, s{sN}, 22")
    a(f"s_lshl_b32 s{sET}, s{sET}, 3")
    a(f"s_add_u32 s{sET}, s{sET}, s{S_T+1}")
    a(f"s_mov_b32 s{sTT}, 16")
    a(f"s_cmp_ge_u32 s{sET}, 11")
    a("s_cbranch_scc1 L_k2_exit")
    a.label("L_dft_go")
    if DFT_SYNC: DFT_SYNC(a)
    if HPRIO: a(f"s_setprio {HPRIO}")
    k2.stamp(a, 1)
    vB, vE, vH, vt = 3, 4, 5, 6
    a(f"v_and_b32 v{vt}, 31, v{L}")
    a(f"v_lshrrev_b32 v{vH}, 5, v{L}")
    a(f"s_lshl_b32 s{S_T}, s{sTT}, 5")
    a(f"s_lshl_b32 s{S_T+1}, s{sET}, 5")
    a(f"v_add_u32 v{vE}, s{S_T+1}, v{vt}")
    a(f"s_mul_i32 s{S_T+7}, s{sET}, {AEP_ET}")
    a(f"v_lshlrev_b32 v{vB}, 4, v{L}")
    a(f"s_lshl_b32 s{S_T+5}, s{sTT}, 16")
    a(f"v_lshlrev_b32 v7, 4, v{vt}")
    a(f"s_add_u32 s{S_T+6}, s{S_T+7}, {64*1024}")
    a(f"buffer_load_ushort v7, v7, {sr(SRD_AE,4)}, s{S_T+6} offen{Cfg.LDF}")
    steps = [(SRD_A, SRD_AE, f, PO if f % 2 else PE) for f in range(64)] + [(SRD_B, SRD_BO, f, QO if f % 2 else QE) for f in range(64)]
    def loads(i):
        sa, sb, ks, _ = steps[i]
        b = BUF + 8 * (i % DEPTH)
        if ks % 4 == 0:
            a(f"s_add_u32 s{S_T+6}, s{S_T+7}, {ks*1024}")
            a(f"s_add_u32 s{S_T+4}, s{S_T+5}, {ks*1024}")
        a(f"buffer_load_dwordx4 {vr(b,4)}, v{vB}, {sr(sa,4)}, s{S_T+4} offen offset:{(ks%4)*1024}{Cfg.LDF}")
        a(f"buffer_load_dwordx4 {vr(b+4,4)}, v{vB}, {sr(sb,4)}, s{S_T+6} offen offset:{(ks%4)*1024}{Cfg.LDF}")
    for i in range(DEPTH): loads(i)
    n = len(steps)
    for i in range(n):
        out = min(n, i + DEPTH) - (i + 1)
        a(f"s_waitcnt vmcnt({2*out})")
        b = BUF + 8 * (i % DEPTH)
        acc = steps[i][3]
        mfma32(a, acc, b, b + 4, None if steps[i][2] < 2 else acc)
        if i + DEPTH < n: loads(i + DEPTH)
    k2.stamp(a, 2)
    if EPRIO: a(f"s_setprio {EPRIO}")
    cD, cM, oob, tb = 72, 73, 74, 75
    a(f"v_lshlrev_b32 v7, 16, v7")
    a(f"v_lshlrev_b32 v{cD}, 1, v{vE}")
    a(f"v_sub_u32 v{cM}, 1280, v{cD}")
    a(f"v_mov_b32 v{oob}, {OOB}")
    a(f"v_cmp_lt_u32 vcc, 320, v{vE}")
    a(f"v_add_u32 v76, -1, v{vE}")
    a(f"v_lshl_add_u32 v{tb}, v{vH}, 2, s{S_T}")
    a(f"v_cndmask_b32 v{cD}, v{cD}, v{oob}, vcc")
    a(f"v_cmp_lt_u32 vcc, 318, v76")
    a(f"v_mul_u32_u24 v77, 1280, v{tb}")
    a("s_nop 3")
    a(f"v_cndmask_b32 v{cM}, v{cM}, v{oob}, vcc")
    for r in range(16):
        a(f"v_cndmask_b32 v{QE+r}, v{QE+r}, 0, vcc")
        a(f"v_cndmask_b32 v{QO+r}, v{QO+r}, 0, vcc")
    a(f"v_sub_u32 v78, {(2048-27)*1280}, v77")
    a(f"v_sub_u32 v79, {(1024-27)*1280}, v77")
    a(f"v_add_u32 v80, {1024*1280}, v77")
    AD = {}
    k = 82
    for ri, rb in enumerate((77, 78, 79, 80)):
        for ci, cb in enumerate((cD, cM)):
            a(f"v_add_u32 v{k}, v{rb}, v{cb}"); AD[(ri, ci)] = k; k += 1
    a(f"v_cmp_eq_u32 vcc, 0, v{tb}")
    a("s_nop 1")
    a(f"v_cndmask_b32 v90, v{AD[(3,0)]}, v{oob}, vcc")
    a(f"v_cndmask_b32 v91, v{AD[(3,1)]}, v{oob}, vcc")
    a(f"s_cmp_eq_u32 s{sTT}, 16")
    a("s_cbranch_scc0 L_dft_full")
    a("s_mov_b64 exec, 0xffffffff")
    a.label("L_dft_full")
    for r in range(16):
        c = 8 * (r // 4) + r % 4
        op = 'add' if r % 2 == 0 else 'sub'
        a(f"v_{op}_f32 v{PE+r}, v{PE+r}, v7")
        a(f"v_add_f32 v92, v{PE+r}, v{PO+r}")
        a(f"v_sub_f32 v93, v{PE+r}, v{PO+r}")
        a(f"v_add_f32 v94, v{QE+r}, v{QO+r}")
        a(f"v_sub_f32 v95, v{QO+r}, v{QE+r}")
        a(f"v_sub_f32 v96, v92, v94")
        a(f"v_add_f32 v97, v92, v94")
        a(f"v_sub_f32 v98, v93, v95")
        a(f"v_add_f32 v99, v93, v95")
        p1, p2 = 100 + 2 * (r % 8), 101 + 2 * (r % 8)
        a(f"s_mov_b32 s{S_T+5}, {c*1280}")
        a(f"s_mov_b32 s{S_T+6}, {(27-c)*1280}")
        a(f"v_cvt_pk_bf16_f32 v{p1}, v96, v97")
        a(f"v_cvt_pk_bf16_f32 v{p2}, v98, v99")
        def st(hi, reg, ad, so): a(f"buffer_store_short{'_d16_hi' if hi else ''} v{reg}, v{ad}, {sr(SRD_Y,4)}, s{so} offen{Cfg.STF2}")
        st(0, p1, AD[(0,0)], S_T+5); st(1, p1, AD[(0,1)], S_T+5)
        st(1, p1, AD[(1,0)], S_T+6); st(0, p1, AD[(1,1)], S_T+6)
        if r == 0:
            a(f"s_cmp_eq_u32 s{sTT}, 16")
            a("s_cbranch_scc1 L_dft_end")
        st(0, p2, AD[(2,0)], S_T+6); st(1, p2, AD[(2,1)], S_T+6)
        st(1, p2, 90 if r == 0 else AD[(3,0)], S_T+5); st(0, p2, 91 if r == 0 else AD[(3,1)], S_T+5)
    a.label("L_dft_end")
    a("s_mov_b64 exec, -1")
    k2.stamp(a, 3)
    if k2.STAMP: a("s_waitcnt vmcnt(0)")
    k2.stamp(a, 4)
    k2.stamp_store(a, 8)
    endp(a, "L_B_done")

def gate(a):
    L = V_LANE
    make_srd(a, SRD_A, 68, 69, 0, S * D * 2)
    make_srd(a, SRD_B, 76, 77, 0, D * 2)
    make_srd(a, SRD_G, S_WS, S_WS + 1, WS_G, S * 4)
    a(f"v_lshrrev_b32 v2, 3, v{L}")
    a(f"v_and_b32 v3, 7, v{L}")
    a(f"s_lshl_b32 s{S_T}, s2, 3")
    a(f"v_add_u32 v2, s{S_T}, v2")
    a(f"v_mul_u32_u24 v4, 160, v3")
    a(f"v_mul_u32_u24 v5, 1280, v2")
    a(f"v_add_u32 v5, v5, v4")
    for i in range(10):
        a(f"buffer_load_dwordx4 {vr(8+4*i,4)}, v5, {sr(SRD_A,4)}, 0 offen offset:{16*i}")
        a(f"buffer_load_dwordx4 {vr(48+4*i,4)}, v4, {sr(SRD_B,4)}, 0 offen offset:{16*i}")
    a("v_mov_b32 v6, 0")
    a("v_mov_b32 v7, 0")
    a("s_waitcnt vmcnt(0)")
    for i in range(40):
        d = 6 + (i % 2)
        a(f"v_dot2_f32_bf16 v{d}, v{8+i}, v{48+i}, v{d}")
    a("s_nop 3")
    a("v_add_f32 v6, v6, v7")
    a("s_nop 1")
    a("v_add_f32_dpp v6, v6, v6 quad_perm:[1,0,3,2] row_mask:0xf bank_mask:0xf")
    a("s_nop 1")
    a("v_add_f32_dpp v6, v6, v6 quad_perm:[2,3,0,1] row_mask:0xf bank_mask:0xf")
    a("s_nop 1")
    a("v_add_f32_dpp v6, v6, v6 row_half_mirror row_mask:0xf bank_mask:0xf")
    a(f"v_mul_f32 v6, {f32bits(-math.log2(math.e))}, v6")
    a("v_exp_f32 v6, v6")
    a("s_nop 0")
    a("v_add_f32 v6, 1.0, v6")
    a("v_rcp_f32 v6, v6")
    a("v_lshlrev_b32 v2, 2, v2")
    a("v_cmp_eq_u32 vcc, 0, v3")
    a("s_and_saveexec_b64 s[66:67], vcc")
    a(f"buffer_store_dword v6, v2, {sr(SRD_G,4)}, 0 offen{Cfg.STF2}")
    a("s_mov_b64 exec, -1")
    endp(a, "L_side_done")

CPF3 = 0
def wopack(a):
    L = V_LANE
    if CPF3 and not Cfg.MEGA:
        code_prefetch(a, "outproj_mix_kernel", CPF3, 64, 80, V_LANE)
    make_srd(a, SRD_A, 70, 71, 0, D * D * 2)
    make_srd(a, SRD_B, S_WS, S_WS + 1, WS_WOT, 800 * 1024)
    a(f"v_and_b32 v2, 15, v{L}")
    a(f"v_lshrrev_b32 v3, 4, v{L}")
    a(f"v_mul_u32_u24 v3, {8*1280}, v3")
    a(f"v_lshl_add_u32 v3, v2, 1, v3")
    a(f"v_add_u32 v4, 5120, v3")
    a(f"v_lshlrev_b32 v5, 4, v{L}")
    for m in range(4):
        a(f"s_add_u32 s{S_T}, s2, {256*m}")
        a(f"s_mul_i32 s{S_T+1}, s{S_T}, 3277")
        a(f"s_lshr_b32 s{S_T+1}, s{S_T+1}, 16")
        a(f"s_mul_i32 s{S_T+2}, s{S_T+1}, 20")
        a(f"s_sub_u32 s{S_T+2}, s{S_T}, s{S_T+2}")
        a(f"s_mul_i32 s{S_T+2}, s{S_T+2}, {32*1280}")
        a(f"s_lshl_b32 s{S_T+1}, s{S_T+1}, 5")
        a(f"s_add_u32 s{S_T+2}, s{S_T+2}, s{S_T+1}")
        a(f"s_lshl_b32 s{S_T+3+m}, s{S_T}, 10")
        for jj in range(8):
            r = 24 + 8 * m + jj
            a(f"buffer_load_ushort v{r}, v{3 if jj < 4 else 4}, {sr(SRD_A,4)}, s{S_T+2} offen offset:{(jj%4)*1280}")
    a("s_waitcnt vmcnt(0)")
    for m in range(4):
        for q in range(4):
            a(f"v_lshl_or_b32 v{8+4*m+q}, v{24+8*m+2*q+1}, 16, v{24+8*m+2*q}")
        a(f"buffer_store_dwordx4 {vr(8+4*m,4)}, v5, {sr(SRD_B,4)}, s{S_T+3+m} offen{Cfg.STF2}")
    endp(a, "L_side_done")

def body(a):
    if Cfg.MEGA:
        a(f"s_cmp_ge_u32 s{S_WAVE}, 10")
        a("s_cbranch_scc1 L_k2_exit")
        dft2(a)
        return
    a(f"s_cmp_eq_u32 s{S_WAVE}, 10")
    a("s_cbranch_scc1 L_k2_gate")
    a(f"s_cmp_eq_u32 s{S_WAVE}, 11")
    a("s_cbranch_scc1 L_k2_wopack")
    dft2(a)
    a.label("L_k2_gate")
    gate(a)
    a.label("L_k2_wopack")
    wopack(a)
```

```python
from common import *
S_WS = 4; S_OUT = 6
SRD_O = 8; SRD_W = 12; SRD_Y = 16; SRD_G = 20; SRD_OUT = 24
S_WAVE = 36; S_W4 = 39; S_RB = 37; S_CB = 38; S_T = 44
V_LANE = 1
ACC = 16
OB = 36
WB = 116
YR = 176
NVGPR = 188
STAMP = False
def stamp(a, idx):
    if STAMP: a(f"s_memtime s[{70+2*idx}:{71+2*idx}]")
def stamp_store(a, n=8):
    if not STAMP: return
    a("s_waitcnt vmcnt(0)")
    stamp(a, n - 1)
    a("s_waitcnt lgkmcnt(0)")
    a(f"s_lshl_b32 s{S_T}, s2, 4")
    a(f"s_add_u32 s{S_T}, s{S_T}, s{S_WAVE}")
    a(f"s_lshl_b32 s{S_T}, s{S_T}, 6")
    a(f"v_mov_b32 v2, 0")
    for i in range(n):
        a(f"v_mov_b32 v3, s{70+2*i}")
        a(f"buffer_store_dword v3, v2, s[96:99], s{S_T} offen offset:{4*i}")

def gen_k3(a, name, sync=None):
    L = V_LANE
    if not Cfg.MEGA:
        kernel_header(a, name)
        a("s_cmp_ge_u32 s2, 256")
        a("s_cbranch_scc1 L_k3_exit")
    a(f"s_load_dwordx2 {sr(S_WS,2)}, s[0:1], 88")
    a(f"s_load_dwordx2 {sr(S_OUT,2)}, s[0:1], 72")
    stamp(a, 0)
    a(f"v_and_b32 v{L}, 63, v0")
    a(f"v_lshrrev_b32 v2, 6, v0")
    a("s_nop 0")
    a(f"v_readfirstlane_b32 s{S_WAVE}, v2")
    a(f"s_and_b32 s{S_W4}, s{S_WAVE}, 3")
    a(f"s_and_b32 s{S_T}, s2, 3")
    a(f"s_lshl_b32 s{S_T}, s{S_T}, 3")
    a(f"s_bfe_u32 s{S_T+1}, s2, 0x30003")
    a(f"s_add_u32 s{S_RB}, s{S_T}, s{S_T+1}")
    a(f"s_and_b32 s{S_T}, s2, 4")
    a(f"s_lshr_b32 s{S_T+1}, s2, 6")
    a(f"s_add_u32 s{S_CB}, s{S_T}, s{S_T+1}")
    a(f"v_and_b32 v2, 15, v{L}")
    a(f"v_lshrrev_b32 v3, 4, v{L}")
    a(f"v_lshlrev_b32 v9, 4, v{L}")
    a(f"s_lshl_b32 s{S_T+2}, s{S_RB}, 2")
    a(f"s_add_u32 s{S_T+2}, s{S_T+2}, s{S_W4}")
    a(f"s_lshl_b32 s{S_T+6}, s{S_T+2}, 4")
    a(f"s_mul_i32 s{S_T+2}, s{S_T+2}, 20480")
    a(f"s_mul_i32 s{S_T+3}, s{S_CB}, {100*1024}")
    a(f"s_lshl_b32 s{S_T+4}, s{S_W4}, 10")
    a(f"s_add_u32 s{S_T+3}, s{S_T+3}, s{S_T+4}")
    a(f"s_mul_i32 s{S_T+4}, s{S_W4}, 5120")
    a(f"v_add_u32 v11, s{S_T+6}, v2")
    a(f"v_mul_u32_u24 v10, 1280, v11")
    a(f"s_mul_i32 s{S_T+5}, s{S_CB}, 160")
    a(f"v_lshl_add_u32 v10, v3, 3, v10")
    a(f"v_add_u32 v10, s{S_T+5}, v10")
    a(f"v_lshlrev_b32 v11, 2, v11")
    a(f"v_add_u32 v12, 61440, v9")
    a("s_waitcnt lgkmcnt(0)")
    make_srd(a, SRD_W, S_WS, S_WS + 1, WS_WOT, 800 * 1024)
    make_srd(a, SRD_O, S_WS, S_WS + 1, WS_O, S * D * 2)
    if STAMP: make_srd(a, 96, S_WS, S_WS + 1, 0x2100000, 0x100000)
    stamp(a, 1)
    if Cfg.MEGA:
        a(f"s_cmp_ge_u32 s{S_WAVE}, 8")
        a("s_cbranch_scc0 L_k3_work")
        sync(a)
        a("s_barrier")
        a("s_endpgm")
        a.label("L_k3_work")
    a(f"s_cmp_ge_u32 s{S_WAVE}, 4")
    a("s_cbranch_scc0 L_k3_comp")
    for gq in range(5):
        for ct in range(5):
            a(f"s_add_u32 m0, s{S_T+4}, {gq*20480 + ct*1024}")
            a(f"s_add_u32 s{S_T+7}, s{S_T+3}, {ct*20*1024 + gq*4096}")
            a(f"buffer_load_dwordx4 v9, {sr(SRD_W,4)}, s{S_T+7} offen{Cfg.LDF} lds")
        if gq >= 1 and not Cfg.MEGA:
            a("s_waitcnt vmcnt(5)")
            a("s_barrier")
    a("s_waitcnt vmcnt(0)")
    a("s_barrier")
    a("s_endpgm")
    a.label("L_k3_comp")
    ops = []
    def oload(gq):
        a(f"s_add_u32 s{S_T+7}, s{S_T+2}, {gq*4096}")
        for q in range(4):
            a(f"buffer_load_dwordx4 {vr(OB+4*(4*gq+q),4)}, v9, {sr(SRD_O,4)}, s{S_T+7} offen offset:{q*1024}{Cfg.LDF}")
            ops.append(gq)
    def yload():
        for ct in range(5):
            a(f"buffer_load_dwordx2 {vr(YR+2*ct,2)}, v10, {sr(SRD_Y,4)}, 0 offen offset:{32*ct}{Cfg.LDF}"); ops.append(9)
        a(f"buffer_load_dword v{YR+10}, v11, {sr(SRD_G,4)}, 0 offen{Cfg.LDF}"); ops.append(9)
    if Cfg.MEGA:
        make_srd(a, SRD_Y, S_WS, S_WS + 1, WS_Y, S * D * 2)
        make_srd(a, SRD_G, S_WS, S_WS + 1, WS_G, S * 4)
        make_srd(a, SRD_OUT, S_OUT, S_OUT + 1, 0, S * D * 2)
        a("s_barrier")
    oload(0)
    make_srd(a, SRD_Y, S_WS, S_WS + 1, WS_Y, S * D * 2)
    make_srd(a, SRD_G, S_WS, S_WS + 1, WS_G, S * 4)
    make_srd(a, SRD_OUT, S_OUT, S_OUT + 1, 0, S * D * 2)
    oload(1)
    stamp(a, 2)
    def rd(ks):
        r = []
        for ct in range(5):
            off = (ks * 5 + ct) * 1024
            base = 9 if off < 61440 else 12
            r.append(f"ds_read_b128 {vr(WB+20*(ks%3)+4*ct,4)}, v{base} offset:{off if off < 61440 else off - 61440}")
        return r
    def mm(ks):
        return [f"v_mfma_f32_16x16x32_bf16 {vr(ACC+4*ct,4)}, {vr(WB+20*(ks%3)+4*ct,4)}, {vr(OB+4*ks,4)}, {'0' if ks == 0 else vr(ACC+4*ct,4)}" for ct in range(5)]
    for gq in range(5):
        last = max(i for i, t in enumerate(ops) if t == gq)
        a(f"s_waitcnt vmcnt({len(ops)-1-last})")
        if not Cfg.MEGA: a("s_barrier")
        if gq == 0: stamp(a, 3)
        if gq + 2 < 5: oload(gq + 2)
        if gq == 3: yload()
        for q in range(4):
            ks = 4 * gq + q
            for r_ in rd(ks): a(r_)
            if ks >= 2:
                a("s_waitcnt lgkmcnt(10)")
                for m in mm(ks - 2): a(m)
    a("s_waitcnt lgkmcnt(5)")
    for m in mm(18): a(m)
    a("s_waitcnt lgkmcnt(0)")
    for m in mm(19): a(m)
    stamp(a, 4)
    a("s_waitcnt vmcnt(0)")
    for ct in range(5):
        y0, y1 = YR + 2 * ct, YR + 2 * ct + 1
        t = 36 + 4 * ct
        a(f"v_lshlrev_b32 v{t}, 16, v{y0}")
        a(f"v_and_b32 v{t+1}, 0xffff0000, v{y0}")
        a(f"v_lshlrev_b32 v{t+2}, 16, v{y1}")
        a(f"v_and_b32 v{t+3}, 0xffff0000, v{y1}")
    stamp(a, 5)
    for ct in range(5):
        t = 36 + 4 * ct
        for r in range(4):
            d = ACC + ct * 4 + r
            a(f"v_sub_f32 v{d}, v{d}, v{t+r}")
            a(f"v_fma_f32 v{d}, v{d}, v{YR+10}, v{t+r}")
        d = ACC + ct * 4
        a(f"v_cvt_pk_bf16_f32 v{60+2*ct}, v{d}, v{d+1}")
        a(f"v_cvt_pk_bf16_f32 v{61+2*ct}, v{d+2}, v{d+3}")
        a(f"buffer_store_dwordx2 {vr(60+2*ct,2)}, v10, {sr(SRD_OUT,4)}, 0 offen offset:{32*ct}")
    stamp(a, 6)
    stamp_store(a)
    a.label("L_k3_exit")
    a("s_endpgm")
```

```python
import sys
from common import *
import k1, k2, k2h, k3
mods = {"k1": k1, "k2": k2, "k2h": k2h, "k3": k3}
for arg in sys.argv[2:]:
    k_, v_ = arg.split("=")
    m, n = k_.split(".")
    setattr(mods[m], n, eval(v_))
ref = open("gated_mix__mha_block__spectral_fnet__prompt.s.ref").read().split("\n")
hdr = [l for l in ref if l.startswith(";") and "@launch" not in l and "Override" not in l and "grid=ceil" not in l]
hdr.append("; @launch kernel=qkv_dft1_kernel grid=(256,1,1) block=(512,1,1) lds=159744")
hdr.append("; @launch kernel=attn_dft2_kernel grid=(256,1,1) block=(768,1,1) lds=163840")
hdr.append("; @launch kernel=outproj_mix_kernel grid=(256,1,1) block=(512,1,1) lds=102400")
a = Asm()
k1.gen_k1(a, "qkv_dft1_kernel")
k2.gen_k2(a, "attn_dft2_kernel", k2h)
k3.gen_k3(a, "outproj_mix_kernel")
out = "\n".join(hdr) + '\n.amdgcn_target "amdgcn-amd-amdhsa--gfx950"\n.text\n' + a.text() + '.section .rodata,"a"\n'
out += kernel_desc("qkv_dft1_kernel", 168) + kernel_desc("attn_dft2_kernel", 168) + kernel_desc("outproj_mix_kernel", k3.NVGPR)
open(sys.argv[1], "w").write(out)
```

```python
from common import *
S_WS = 4; S_OUT = 6
SRD_O = 8; SRD_W = 12; SRD_Y = 16; SRD_G = 20; SRD_OUT = 24
S_WAVE = 36; S_W4 = 39; S_RB = 37; S_CB = 38; S_T = 44
V_LANE = 1
ACC = 16
OB = 36
OB = 32
WB = 112
YR = 152
NVGPR = 164
ACC = 12
STAMP = False
def stamp(a, idx):
    if STAMP: a(f"s_memtime s[{70+2*idx}:{71+2*idx}]")
def stamp_store(a, n=8):
    if not STAMP: return
    a("s_waitcnt vmcnt(0)")
    stamp(a, n - 1)
    a("s_waitcnt lgkmcnt(0)")
    a(f"s_lshl_b32 s{S_T}, s2, 4")
    a(f"s_add_u32 s{S_T}, s{S_T}, s{S_WAVE}")
    a(f"s_lshl_b32 s{S_T}, s{S_T}, 6")
    a(f"v_mov_b32 v2, 0")
    for i in range(n):
        a(f"v_mov_b32 v3, s{70+2*i}")
        a(f"buffer_store_dword v3, v2, s[96:99], s{S_T} offen offset:{4*i}")

def gen_k3(a, name, sync=None):
    L = V_LANE
    if not Cfg.MEGA:
        kernel_header(a, name)
        a("s_cmp_ge_u32 s2, 256")
        a("s_cbranch_scc1 L_k3_exit")
    a(f"s_load_dwordx2 {sr(S_WS,2)}, s[0:1], 88")
    a(f"s_load_dwordx2 {sr(S_OUT,2)}, s[0:1], 72")
    stamp(a, 0)
    a(f"v_and_b32 v{L}, 63, v0")
    a(f"v_lshrrev_b32 v2, 6, v0")
    a("s_nop 0")
    a(f"v_readfirstlane_b32 s{S_WAVE}, v2")
    a(f"s_and_b32 s{S_W4}, s{S_WAVE}, 3")
    a(f"s_and_b32 s{S_T}, s2, 3")
    a(f"s_lshl_b32 s{S_T}, s{S_T}, 3")
    a(f"s_bfe_u32 s{S_T+1}, s2, 0x30003")
    a(f"s_add_u32 s{S_RB}, s{S_T}, s{S_T+1}")
    a(f"s_and_b32 s{S_T}, s2, 4")
    a(f"s_lshr_b32 s{S_T+1}, s2, 6")
    a(f"s_add_u32 s{S_CB}, s{S_T}, s{S_T+1}")
    a(f"v_and_b32 v2, 15, v{L}")
    a(f"v_lshrrev_b32 v3, 4, v{L}")
    a(f"v_lshlrev_b32 v9, 4, v{L}")
    a(f"s_lshl_b32 s{S_T+2}, s{S_RB}, 2")
    a(f"s_add_u32 s{S_T+2}, s{S_T+2}, s{S_W4}")
    a(f"s_lshl_b32 s{S_T+6}, s{S_T+2}, 4")
    a(f"s_mul_i32 s{S_T+2}, s{S_T+2}, 20480")
    a(f"s_mul_i32 s{S_T+3}, s{S_CB}, {100*1024}")
    a(f"s_lshl_b32 s{S_T+4}, s{S_W4}, 10")
    a(f"s_add_u32 s{S_T+3}, s{S_T+3}, s{S_T+4}")
    a(f"s_mul_i32 s{S_T+4}, s{S_W4}, 5120")
    a(f"v_add_u32 v11, s{S_T+6}, v2")
    a(f"v_mul_u32_u24 v10, 1280, v11")
    a(f"s_mul_i32 s{S_T+5}, s{S_CB}, 160")
    a(f"v_lshl_add_u32 v10, v3, 3, v10")
    a(f"v_add_u32 v10, s{S_T+5}, v10")
    a(f"v_lshlrev_b32 v11, 2, v11")
    a(f"v_add_u32 v8, 61440, v9")
    a("s_waitcnt lgkmcnt(0)")
    make_srd(a, SRD_W, S_WS, S_WS + 1, WS_WOT, 800 * 1024)
    make_srd(a, SRD_O, S_WS, S_WS + 1, WS_O, S * D * 2)
    if STAMP: make_srd(a, 96, S_WS, S_WS + 1, 0x2100000, 0x100000)
    stamp(a, 1)
    if Cfg.MEGA:
        a(f"s_cmp_ge_u32 s{S_WAVE}, 8")
        a("s_cbranch_scc0 L_k3_work")
        sync(a)
        a("s_barrier")
        a("s_endpgm")
        a.label("L_k3_work")
    a(f"s_cmp_ge_u32 s{S_WAVE}, 4")
    a("s_cbranch_scc0 L_k3_comp")
    for gq in range(5):
        for ct in range(5):
            a(f"s_add_u32 m0, s{S_T+4}, {gq*20480 + ct*1024}")
            a(f"s_add_u32 s{S_T+7}, s{S_T+3}, {ct*20*1024 + gq*4096}")
            a(f"buffer_load_dwordx4 v9, {sr(SRD_W,4)}, s{S_T+7} offen{Cfg.LDF} lds")
        if gq >= 1 and not Cfg.MEGA:
            a("s_waitcnt vmcnt(5)")
            a("s_barrier")
    a("s_waitcnt vmcnt(0)")
    a("s_barrier")
    a("s_endpgm")
    a.label("L_k3_comp")
    ops = []
    def oload(gq):
        a(f"s_add_u32 s{S_T+7}, s{S_T+2}, {gq*4096}")
        for q in range(4):
            a(f"buffer_load_dwordx4 {vr(OB+4*(4*gq+q),4)}, v9, {sr(SRD_O,4)}, s{S_T+7} offen offset:{q*1024}{Cfg.LDF}")
            ops.append(gq)
    def yload():
        for ct in range(5):
            a(f"buffer_load_dwordx2 {vr(YR+2*ct,2)}, v10, {sr(SRD_Y,4)}, 0 offen offset:{32*ct}{Cfg.LDF}"); ops.append(9)
        a(f"buffer_load_dword v{YR+10}, v11, {sr(SRD_G,4)}, 0 offen{Cfg.LDF}"); ops.append(9)
    if Cfg.MEGA:
        make_srd(a, SRD_Y, S_WS, S_WS + 1, WS_Y, S * D * 2)
        make_srd(a, SRD_G, S_WS, S_WS + 1, WS_G, S * 4)
        make_srd(a, SRD_OUT, S_OUT, S_OUT + 1, 0, S * D * 2)
        a("s_barrier")
    oload(0)
    make_srd(a, SRD_Y, S_WS, S_WS + 1, WS_Y, S * D * 2)
    make_srd(a, SRD_G, S_WS, S_WS + 1, WS_G, S * 4)
    make_srd(a, SRD_OUT, S_OUT, S_OUT + 1, 0, S * D * 2)
    oload(1)
    stamp(a, 2)
    def rd(ks):
        r = []
        for ct in range(5):
            off = (ks * 5 + ct) * 1024
            base = 9 if off < 61440 else 8
            r.append(f"ds_read_b128 {vr(WB+20*(ks%2)+4*ct,4)}, v{base} offset:{off if off < 61440 else off - 61440}")
        return r
    def mm(ks):
        return [f"v_mfma_f32_16x16x32_bf16 {vr(ACC+4*ct,4)}, {vr(WB+20*(ks%2)+4*ct,4)}, {vr(OB+4*ks,4)}, {'0' if ks == 0 else vr(ACC+4*ct,4)}" for ct in range(5)]
    for gq in range(5):
        last = max(i for i, t in enumerate(ops) if t == gq)
        a(f"s_waitcnt vmcnt({len(ops)-1-last})")
        if not Cfg.MEGA: a("s_barrier")
        if gq == 0: stamp(a, 3)
        if gq + 2 < 5: oload(gq + 2)
        if gq == 3: yload()
        for q in range(4):
            ks = 4 * gq + q
            for r_ in rd(ks): a(r_)
            if ks >= 1:
                a("s_waitcnt lgkmcnt(5)")
                for m in mm(ks - 1): a(m)
    a("s_waitcnt lgkmcnt(0)")
    for m in mm(19): a(m)
    stamp(a, 4)
    a("s_waitcnt vmcnt(0)")
    for ct in range(5):
        y0, y1 = YR + 2 * ct, YR + 2 * ct + 1
        t = 36 + 4 * ct
        a(f"v_lshlrev_b32 v{t}, 16, v{y0}")
        a(f"v_and_b32 v{t+1}, 0xffff0000, v{y0}")
        a(f"v_lshlrev_b32 v{t+2}, 16, v{y1}")
        a(f"v_and_b32 v{t+3}, 0xffff0000, v{y1}")
    stamp(a, 5)
    for ct in range(5):
        t = 36 + 4 * ct
        for r in range(4):
            d = ACC + ct * 4 + r
            a(f"v_sub_f32 v{d}, v{d}, v{t+r}")
            a(f"v_fma_f32 v{d}, v{d}, v{YR+10}, v{t+r}")
        d = ACC + ct * 4
        a(f"v_cvt_pk_bf16_f32 v{60+2*ct}, v{d}, v{d+1}")
        a(f"v_cvt_pk_bf16_f32 v{61+2*ct}, v{d+2}, v{d+3}")
        a(f"buffer_store_dwordx2 {vr(60+2*ct,2)}, v10, {sr(SRD_OUT,4)}, 0 offen offset:{32*ct}")
    stamp(a, 6)
    stamp_store(a)
    a.label("L_k3_exit")
    a("s_endpgm")
```

```python
import sys
from common import *
import k1, k2, k2h, k3
mods = {"k1": k1, "k2": k2, "k2h": k2h, "k3": k3, "Cfg": Cfg}
for arg in sys.argv[2:]:
    k_, v_ = arg.split("=")
    m, n = k_.split(".")
    setattr(mods[m], n, eval(v_))
ref = open("gated_mix__mha_block__spectral_fnet__prompt.s.ref").read().split("\n")
hdr = [l for l in ref if l.startswith(";") and "@launch" not in l and "Override" not in l and "grid=ceil" not in l]
hdr.append("; @launch kernel=qkv_dft1_kernel grid=(256,1,1) block=(512,1,1) lds=159744")
hdr.append("; @launch kernel=attn_dft2_kernel grid=(256,1,1) block=(768,1,1) lds=163840")
hdr.append("; @launch kernel=outproj_mix_kernel grid=(256,1,1) block=(512,1,1) lds=102400")
doc = """
; ---------------------------------------------------------------------------------------------
; out = g * MHA(x) + (1-g) * Re(DFT_seq(DFT_hid(x))),  g = sigmoid(x . gate_w)      (generated by gen/*.py)
; K1 qkv_dft1_kernel : one GEMM x[2048x640] * [wqkv | cos_hid | sin_hid] (128x160 tiles, LDS-DMA ring, MFMA 16x16x32).
;      Rows are processed as (s, 2048-s) pairs so the real-DFT even/odd fold over the sequence is done in fp32
;      registers.  Q (pre-scaled by log2(e)/sqrt(20)), K, V are written in MFMA-fragment order.  Loader waves also
;      emit the constant sequence-DFT twiddle fragments (rows 0..543).
; K2 attn_dft2_kernel: per (head, 256 queries): whole K/V of the head resident in LDS, S^T = K Q^T - m via the MFMA
;      C operand, exp2, P^T fed straight back as MFMA B operand, row sums through a ones row of V^T.
;      m is the true max of the first key tile; softmax is shift invariant, so the result is exact unless the
;      un-normalised sums overflow -- that is checked at run time and the wave then recomputes with the true row
;      max over all keys.  Helper waves: K/V DMA, sequence DFT (even/odd radix-2 split + real symmetries), gate,
;      wo fragment packing.
; K3 outproj_mix_kernel: o * wo (64x80 tiles) fused with the gated mix.
; ---------------------------------------------------------------------------------------------
""".strip("\n").split("\n")
hdr += doc
a = Asm()
k1.gen_k1(a, "qkv_dft1_kernel")
k2.gen_k2(a, "attn_dft2_kernel", k2h)
k3.gen_k3(a, "outproj_mix_kernel")
out = "\n".join(hdr) + '\n.amdgcn_target "amdgcn-amd-amdhsa--gfx950"\n.text\n' + a.text() + '.section .rodata,"a"\n'
out += kernel_desc("qkv_dft1_kernel", 176) + kernel_desc("attn_dft2_kernel", 168) + kernel_desc("outproj_mix_kernel", k3.NVGPR)
open(sys.argv[1], "w").write(out)
```

```python
S = 2048; D = 640; H = 32; DH = 20

WS_Q   = 0x000000
WS_KV  = 0x280000
WS_AET = 0x780000
WS_BOT = 0x840000
WS_Y   = 0x900000
WS_O   = 0xB80000
WS_G   = 0xE00000
WS_WOT = 0xE10000
WS_CP  = 0x1000000
WS_SP  = 0x1000000 + 17 * 65536
WS_END = 0x1400000
AET_STRIDE = 2112
AEP_ET = 66 * 1024
Q_HEAD_BYTES = 16 * 5120
KV_HEAD_BYTES = 16 * 10240

class Asm:
    def __init__(self):
        self.lines = []
        self.uid = 0
    def __call__(self, s):
        for l in s.strip("\n").split("\n"):
            self.lines.append("    " + l.strip() if not l.strip().endswith(":") else l.strip())
    def label(self, name):
        self.lines.append(name + ":")
    def newlabel(self, base):
        self.uid += 1
        return f"L_{base}_{self.uid}"
    def comment(self, s):
        self.lines.append("    ; " + s)
    def text(self):
        return "\n".join(self.lines) + "\n"

def vr(a, n=1):
    return f"v{a}" if n == 1 else f"v[{a}:{a+n-1}]"
def sr(a, n=1):
    return f"s{a}" if n == 1 else f"s[{a}:{a+n-1}]"

def kernel_header(a, name):
    a.lines.append(f".globl {name}")
    a.lines.append(".p2align 8")
    a.lines.append(f".type {name},@function")
    a.lines.append(f"{name}:")

def kernel_desc(name, nvgpr, nsgpr=102):
    acc = (nvgpr + 3) // 4 * 4
    return f""".p2align 6
.amdhsa_kernel {name}
  .amdhsa_next_free_vgpr {nvgpr}
  .amdhsa_next_free_sgpr {nsgpr}
  .amdhsa_accum_offset {acc}
  .amdhsa_group_segment_fixed_size 0
  .amdhsa_kernarg_size 96
  .amdhsa_user_sgpr_count 2
  .amdhsa_user_sgpr_kernarg_segment_ptr 1
  .amdhsa_system_sgpr_workgroup_id_x 1
.end_amdhsa_kernel
"""

def make_srd(a, d, base_lo, base_hi, off, size):
    if off == 0:
        a(f"s_mov_b32 s{d}, s{base_lo}")
        a(f"s_mov_b32 s{d+1}, s{base_hi}")
    else:
        a(f"s_add_u32 s{d}, s{base_lo}, {off}")
        a(f"s_addc_u32 s{d+1}, s{base_hi}, 0")
    a(f"s_mov_b32 s{d+2}, {size}")
    a(f"s_mov_b32 s{d+3}, 0x00020000")

class Cfg:
    MEGA = False
    LDF = ""
    STF2 = ""
def endp(a, label):
    if Cfg.MEGA: a(f"s_branch {label}")
    else: a("s_endpgm")

def code_prefetch(a, target, nkb, sreg, vreg, lane):
    here = a.newlabel("pc")
    a(f"s_getpc_b64 s[{sreg}:{sreg+1}]")
    a.label(here)
    a(f"s_add_u32 s{sreg}, s{sreg}, {target}-{here}")
    a(f"s_addc_u32 s{sreg+1}, s{sreg+1}, 0")
    a(f"v_lshlrev_b32 v{vreg}, 4, v{lane}")
    for i in range(nkb):
        if i and i % 4 == 0:
            a(f"s_add_u32 s{sreg}, s{sreg}, 4096")
            a(f"s_addc_u32 s{sreg+1}, s{sreg+1}, 0")
        a(f"global_load_dwordx4 v[{vreg+2}:{vreg+5}], v{vreg}, s[{sreg}:{sreg+1}] offset:{(i%4)*1024}")
```

```python
from common import *
import math, struct

STAGE = 36864; WOFF = 16384; NSLOT = 4; NST = 10
S_X = 24; S_W = 26; S_DRE = 28; S_DIM = 30; S_WS = 32
SRD_X = 8; SRD_W = 12; SRD_SQ = 16; SRD_WS = 20
S_WAVE = 36; S_B = 37; S_CG = 38; S_I = 39; S_J = 40; S_WSTR = 41; S_WCOL = 42
S_T = 44
S_SX = 61; S_SW = 62; S_WSTEP = 63; S_DELTA = 64; S_CNT = 65; S_SLOT = 66
V_LANE = 1
QSCALE = math.log2(math.e) / math.sqrt(20.0)
def f32bits(x): return struct.unpack("<I", struct.pack("<f", x))[0]
OOB = 0x40000000
STAMP = False
def stamp(a, idx):
    if STAMP: a(f"s_memtime s[{70+2*idx}:{71+2*idx}]")
def stamp_store(a, n=12):
    if not STAMP: return
    a("s_waitcnt vmcnt(0)")
    stamp(a, n - 1)
    a("s_waitcnt lgkmcnt(0)")
    a("s_mov_b64 exec, -1")
    a(f"s_lshl_b32 s{S_T}, s2, 4")
    a(f"s_add_u32 s{S_T}, s{S_T}, s{S_WAVE}")
    a(f"s_lshl_b32 s{S_T}, s{S_T}, 6")
    a(f"v_mov_b32 v2, 0")
    for i in range(n):
        a(f"v_mov_b32 v3, s{70+2*i}")
        a(f"buffer_store_dword v3, v2, s[96:99], s{S_T} offen offset:{4*i}")

STF = ' sc1'
ROT = 1
CPF = 0
PACK0 = 3
XMAP = 0
S_KST = 69
NDMA = 9
def loader(a):
    VX, VW = 20, 24
    L = V_LANE
    a(f"s_sub_u32 s{S_J}, s{S_WAVE}, 4")
    if ROT == 0: a(f"s_mov_b32 s{S_KST}, 0")
    else:
        if ROT == 1: a(f"s_mov_b32 s{S_KST}, s{S_CG}")
        elif ROT == 2: a(f"s_add_u32 s{S_KST}, s{S_CG}, s{S_B}")
        elif ROT == 3: a(f"s_mul_i32 s{S_KST}, s{S_CG}, 3")
        elif ROT == 4: a(f"s_mov_b32 s{S_KST}, s{S_B}")
        a(f"s_mul_i32 s{S_T}, s{S_KST}, 205")
        a(f"s_lshr_b32 s{S_T}, s{S_T}, 11")
        a(f"s_mul_i32 s{S_T}, s{S_T}, 10")
        a(f"s_sub_u32 s{S_KST}, s{S_KST}, s{S_T}")
    a(f"v_lshrrev_b32 v2, 3, v{L}")
    a(f"v_and_b32 v3, 7, v{L}")
    a(f"v_lshrrev_b32 v4, 4, v{L}")
    a(f"v_xor_b32 v3, v3, v4")
    a(f"s_lshl_b32 s{S_T}, s{S_B}, 6")
    a(f"s_and_b32 s{S_T+1}, s{S_J}, 1")
    a(f"s_lshl_b32 s{S_T+1}, s{S_T+1}, 5")
    a(f"s_add_u32 s{S_T}, s{S_T}, s{S_T+1}")
    a(f"v_add_u32 v5, s{S_T}, v2")
    a(f"s_cmp_ge_u32 s{S_J}, 2")
    a(f"s_movk_i32 s{S_T+2}, 1280")
    a(f"s_cselect_b32 s{S_T+2}, {(-1280) & 0xffffffff}, s{S_T+2}")
    a(f"s_cselect_b32 s{S_T+3}, {2048*1280}, 0")
    a(f"v_mul_lo_u32 v6, v5, s{S_T+2}")
    a(f"v_add_u32 v6, s{S_T+3}, v6")
    a(f"s_lshl_b32 s{S_T+2}, s{S_T+2}, 3")
    a(f"v_lshl_add_u32 v{VX}, v3, 4, v6")
    a(f"v_xor_b32 v3, 4, v3")
    a(f"v_add_u32 v6, s{S_T+2}, v6")
    a(f"v_lshl_add_u32 v{VX+1}, v3, 4, v6")
    a(f"s_lshl_b32 s{S_T+2}, s{S_T+2}, 1")
    a(f"v_add_u32 v{VX+2}, s{S_T+2}, v{VX}")
    a(f"v_add_u32 v{VX+3}, s{S_T+2}, v{VX+1}")
    a(f"v_subrev_u32 v7, {1024*1280}, v{VX}")
    a(f"v_cmp_le_u32 vcc, {2048*1280}, v{VX}")
    a(f"s_lshl_b32 s{S_T+4}, s{S_J}, 12")
    a(f"s_mul_i32 s{S_T+5}, s{S_J}, 5120")
    a(f"v_cndmask_b32 v{VX}, v{VX}, v7, vcc")
    a(f"s_add_u32 s{S_T+5}, s{S_T+5}, {WOFF}")
    def issue_x(stage):
        slot = (stage % NSLOT) * STAGE
        a(f"s_lshl_b32 s{S_SX}, s{S_KST}, 7")
        for t in range(4):
            a(f"s_add_u32 m0, s{S_T+4}, {slot + t*1024}")
            a("s_nop 0")
            a(f"buffer_load_dwordx4 v{VX+t}, {sr(SRD_X,4)}, s{S_SX} offen lds")
    def issue_w(stage):
        slot = (stage % NSLOT) * STAGE
        a(f"s_mul_i32 s{S_SW}, s{S_WSTEP}, s{S_KST}")
        for t in range(5):
            a(f"s_add_u32 m0, s{S_T+5}, {slot + t*1024}")
            a("s_nop 0")
            a(f"buffer_load_dwordx4 v{VW+t}, {sr(SRD_W,4)}, s{S_SW} offen lds")
        a(f"s_add_u32 s{S_KST}, s{S_KST}, 1")
        a(f"s_cmp_eq_u32 s{S_KST}, {NST}")
        a(f"s_cselect_b32 s{S_KST}, 0, s{S_KST}")
    stamp(a, 1)
    issue_x(0)
    a(f"s_mul_i32 s{S_T+6}, s{S_J}, 320")
    a(f"s_movk_i32 s{S_T+7}, 3277")
    for t in range(5):
        a(f"v_add_u32 v2, s{S_T+6}, v{L}")
        if t: a(f"v_add_u32 v2, {64*t}, v2")
        a(f"v_mul_u32_u24 v3, s{S_T+7}, v2")
        a(f"v_lshrrev_b32 v3, 16, v3")
        a(f"v_mul_u32_u24 v4, 20, v3")
        a(f"v_sub_u32 v4, v2, v4")
        a(f"v_bfe_u32 v5, v3, 3, 1")
        a(f"v_lshlrev_b32 v5, 1, v5")
        a(f"v_xor_b32 v4, v4, v5")
        a(f"v_mul_lo_u32 v6, v3, s{S_WSTR}")
        a(f"v_lshl_add_u32 v6, v4, 4, v6")
        a(f"v_add_u32 v{VW+t}, s{S_WCOL}, v6")
    issue_w(0)
    issue_x(1); issue_w(1)
    a(f"v_and_b32 v2, 15, v{L}")
    a(f"s_lshl_b32 s{S_T+6}, s{S_J}, 4")
    a(f"v_add_u32 v4, s{S_T+6}, v2")
    a(f"v_bfe_u32 v5, v4, 3, 1")
    a(f"v_mul_u32_u24 v30, 320, v4")
    a(f"v_lshl_add_u32 v30, v5, 5, v30")
    a(f"v_add_u32 v30, {WOFF}, v30")
    a(f"v_and_b32 v6, 1, v4")
    a(f"v_lshlrev_b32 v6, 15, v6")
    a(f"v_or_b32 v31, 0x3f80, v6")
    def patch(stage):
        lab = a.newlabel("nopatch")
        a(f"s_cmp_lg_u32 s{S_CG}, 14")
        a(f"s_cbranch_scc1 {lab}")
        a("s_mov_b64 exec, 0xffff")
        slot = (stage % NSLOT) * STAGE
        a(f"v_add_u32 v2, {slot}, v30")
        a(f"ds_write_b16 v2, v31")
        a("s_mov_b64 exec, -1")
        a("s_waitcnt lgkmcnt(0)")
        a.label(lab)
    stamp(a, 2)
    issued = 2
    ops = [0] * NDMA + [1] * NDMA
    for n in range(NST):
        last = max(i for i, t in enumerate(ops) if t == n)
        a(f"s_waitcnt vmcnt({len(ops) - 1 - last})")
        patch(n)
        if n in (0, 1, 2, 5, 9): stamp(a, {0:3, 1:4, 2:5, 5:6, 9:7}[n])
        a("s_barrier")
        k = 2 if n == 0 else 1
        for _ in range(k):
            if issued < NST:
                issue_x(issued); issue_w(issued); ops += [issued] * NDMA; issued += 1
        if n == 1: copy_setup(a)
        if n == 8 and CPF and not Cfg.MEGA:
            lab = a.newlabel("nopf")
            a(f"s_lshr_b32 s{S_T+15}, s2, 5")
            a(f"s_cmp_lg_u32 s{S_T+15}, s{S_J}")
            a(f"s_cbranch_scc1 {lab}")
            code_prefetch(a, "attn_dft2_kernel", CPF, 4, 80, V_LANE)
            a("s_waitcnt vmcnt(0)")
            a.label(lab)
        if n == PACK0 - 1: pack_setup(a)
        if PACK0 <= n < PACK0 + 4:
            pack_frag(a, n - PACK0); ops.append(-1)
    copy_out(a)

ACC = 88
FS = [16, 52]
V_XA = [2, 3]
V_WA = [4, 5]
VE = 8

def acc(a_, ct): return ACC + (a_ * 5 + ct) * 4

def frag_reads(ks, fs):
    r = []
    xs = []
    for a_ in range(4):
        rt_rel = (a_ & 1) + 4 * (a_ >> 1)
        xs.append(f"ds_read_b128 {vr(fs+4*a_,4)}, v{V_XA[ks]} offset:{rt_rel*2048}")
    ws = []
    for ct in range(5):
        for h2 in range(2):
            krow = 4 * h2 + 32 * ks
            ws.append(f"ds_read_b64_tr_b16 {vr(fs+16+4*ct+2*h2,2)}, v{V_WA[ct%2]} offset:{krow*320 + ct*32}")
    return ws[:2] + xs + ws[2:]

def mfmas(tr, fs):
    r = []
    for ct in range(5):
        for a_ in range(4):
            X = vr(fs + 4 * a_, 4); W = vr(fs + 16 + 4 * ct, 4)
            A, B = (W, X) if tr else (X, W)
            r.append(f"v_mfma_f32_16x16x32_bf16 {vr(acc(a_,ct),4)}, {A}, {B}, {vr(acc(a_,ct),4)}")
    return r

RPM = 1
def interleave(a, ms, rs):
    k = 0
    for m in ms:
        a(m)
        for _ in range(RPM):
            if k < len(rs):
                a(rs[k]); k += 1
    while k < len(rs):
        a(rs[k]); k += 1

def compute_setup(a):
    L = V_LANE
    t = VE
    a(f"v_and_b32 v{t}, 15, v{L}")
    a(f"v_lshrrev_b32 v{t+1}, 4, v{L}")
    a(f"v_lshrrev_b32 v{t+2}, 1, v{t}")
    a(f"v_xor_b32 v{t+3}, v{t+1}, v{t+2}")
    a(f"s_lshl_b32 s{S_T}, s{S_I}, 12")
    a(f"v_lshlrev_b32 v{t+4}, 7, v{t}")
    a(f"v_add_u32 v{t+4}, s{S_T}, v{t+4}")
    a(f"v_lshl_add_u32 v{V_XA[0]}, v{t+3}, 4, v{t+4}")
    a(f"v_xor_b32 v{V_XA[1]}, 64, v{V_XA[0]}")
    a(f"v_lshrrev_b32 v{t+2}, 2, v{t}")
    a(f"v_and_b32 v{t+3}, 3, v{t}")
    a(f"v_lshl_add_u32 v{t+4}, v{t+1}, 3, v{t+2}")
    a(f"v_mul_u32_u24 v{t+4}, 320, v{t+4}")
    a(f"v_lshl_add_u32 v{t+4}, v{t+3}, 3, v{t+4}")
    a(f"s_mul_i32 s{S_T}, s{S_J}, 160")
    a(f"s_add_u32 s{S_T}, s{S_T}, {WOFF}")
    a(f"v_add_u32 v{t+4}, s{S_T}, v{t+4}")
    a(f"v_and_b32 v{t+5}, 1, v{t+1}")
    a(f"v_lshlrev_b32 v{t+5}, 5, v{t+5}")
    a(f"v_add_u32 v{t+6}, v{t+4}, v{t+5}")
    a(f"v_sub_u32 v{t+7}, v{t+4}, v{t+5}")
    a(f"s_cmp_eq_u32 s{S_J}, 0")
    a(f"s_cselect_b64 vcc, -1, 0")
    a(f"v_cndmask_b32 v{V_WA[0]}, v{t+7}, v{t+6}, vcc")
    a(f"v_cndmask_b32 v{V_WA[1]}, v{t+6}, v{t+7}, vcc")
    for r in range(80):
        a(f"v_mov_b32 v{ACC+r}, 0")
    for r in range(12):
        a(f"v_mov_b32 v{EA+r}, 0")
    a(f"s_mov_b32 s{S_CNT}, 0")
    a(f"s_mov_b32 s{S_SLOT}, 0")

def pack_setup(a):
    L = V_LANE
    a(f"s_lshl_b32 s{S_T+8}, s2, 2")
    a(f"s_add_u32 s{S_T+8}, s{S_T+8}, s{S_J}")
    a(f"s_cmp_ge_u32 s{S_T+8}, 272")
    a(f"s_cselect_b32 s{S_T+12}, {f32bits(0.25)}, 0")
    a(f"s_cselect_b32 s{S_T+9}, 272, 0")
    a(f"s_sub_u32 s{S_T+9}, s{S_T+8}, s{S_T+9}")
    a(f"s_and_b32 s{S_T+10}, s{S_T+9}, 15")
    a(f"s_lshr_b32 s{S_T+9}, s{S_T+9}, 4")
    a(f"s_lshl_b32 s{S_T+9}, s{S_T+9}, 5")
    a(f"s_lshl_b32 s{S_T+10}, s{S_T+10}, 6")
    a(f"v_and_b32 v60, 31, v{L}")
    a(f"v_add_u32 v60, s{S_T+9}, v60")
    a(f"v_lshrrev_b32 v61, 5, v{L}")
    a(f"v_lshl_add_u32 v61, v61, 4, s{S_T+10}")
    a(f"v_mul_u32_u24 v62, v60, v61")
    a(f"v_and_b32 v62, 2047, v62")
    a(f"v_cvt_f32_u32 v62, v62")
    a(f"v_cvt_f32_u32 v63, v60")
    a(f"s_mov_b32 s{S_T+11}, {f32bits(1.0/2048)}")
    a(f"v_mul_f32 v62, s{S_T+11}, v62")
    a(f"v_mul_f32 v63, s{S_T+11}, v63")
    a(f"v_add_f32 v62, s{S_T+12}, v62")
    a(f"v_add_f32 v64, v63, v63")
    a(f"s_lshl_b32 s{S_T+14}, s{S_T+8}, 12")
    a(f"s_add_u32 s{S_T+14}, s{S_T+14}, {WS_CP}")
    a(f"s_cmp_lt_u32 s{S_T+8}, 544")
    a(f"s_cselect_b32 s{S_T+14}, s{S_T+14}, {OOB}")
    a(f"v_lshlrev_b32 v65, 4, v{L}")

def pack_frag(a, q):
    jj, p = q // 2, q % 2
    off = 32 * jj + p
    if off == 0: a("v_mov_b32 v74, v62")
    elif off == 1: a("v_add_f32 v74, v62, v63")
    else:
        a(f"v_mov_b32 v75, {f32bits(float(off))}")
        a("v_fma_f32 v74, v63, v75, v62")
    for m in range(8):
        a(f"v_fract_f32 v74, v74")
        a(f"v_cos_f32 v{66+m}, v74")
        a(f"v_add_f32 v74, v74, v64")
    for qq in range(4):
        a(f"v_cvt_pk_bf16_f32 v{40+4*q+qq}, v{66+2*qq}, v{67+2*qq}")
    a(f"buffer_store_dwordx4 {vr(40+4*q,4)}, v65, {sr(SRD_WS,4)}, s{S_T+14} offen offset:{q*1024}{STF}")

def compute_loop(a, tr):
    regs = V_XA + V_WA
    lab = f"L_k1_loop{int(tr)}"
    a(f"s_mul_i32 s{S_T}, s{S_WAVE}, 3072")
    a(f"s_add_u32 s{S_T}, s{S_T}, {NSLOT*STAGE}")
    a(f"v_lshl_add_u32 v6, v{V_LANE}, 2, s{S_T}")
    for r in range(12): a(f"ds_write_b32 v6, v{EA+r} offset:{256*r}")
    a("s_waitcnt lgkmcnt(0)")
    stamp(a, 1)
    a("s_barrier")
    stamp(a, 2)
    for r in frag_reads(0, FS[0]): a(r)
    a.label(lab)
    a("s_waitcnt lgkmcnt(0)")
    interleave(a, mfmas(tr, FS[0]), frag_reads(1, FS[1]))
    a(f"s_add_u32 s{S_CNT}, s{S_CNT}, 1")
    a(f"s_cmp_eq_u32 s{S_CNT}, {NST}")
    a(f"s_cbranch_scc1 {lab}_last")
    a(f"s_add_u32 s{S_SLOT}, s{S_SLOT}, 1")
    a(f"s_mov_b32 s{S_DELTA}, {STAGE}")
    a(f"s_cmp_eq_u32 s{S_SLOT}, {NSLOT}")
    a(f"s_cselect_b32 s{S_DELTA}, {(-(NSLOT-1)*STAGE) & 0xffffffff}, s{S_DELTA}")
    a(f"s_cselect_b32 s{S_SLOT}, 0, s{S_SLOT}")
    for r in regs:
        a(f"v_add_u32 v{r}, s{S_DELTA}, v{r}")
    a("s_waitcnt lgkmcnt(0)")
    a("s_barrier")
    interleave(a, mfmas(tr, FS[1]), frag_reads(0, FS[0]))
    a(f"s_branch {lab}")
    a.label(f"{lab}_last")
    a("s_waitcnt lgkmcnt(0)")
    ms = mfmas(tr, FS[1])
    for m in ms: a(m)
    for r in range(12): a(f"ds_read_b32 v{EA2+r}, v6 offset:{256*r}")
    a("s_waitcnt lgkmcnt(0)")
    stamp(a, 3)

IMG = 2 * STAGE
S_GB = 67
S_NP = 68
EA2 = 72
EA = 60

def pre_qk(a):
    L = V_LANE; t = 8
    a(f"v_and_b32 v{t}, 15, v{L}")
    a(f"v_lshrrev_b32 v{t+1}, 4, v{L}")
    a(f"s_lshl_b32 s{S_T+2}, s{S_I}, 10")
    a(f"s_lshl_b32 s{S_T+3}, s{S_I}, 3")
    a(f"s_add_u32 s{S_T+3}, s{S_T+3}, 4096")
    a(f"s_mul_i32 s{S_T+6}, s{S_J}, 20")
    a(f"v_lshlrev_b32 v{t+10}, 4, v{t}")
    a(f"v_add_u32 v{t+10}, {IMG}, v{t+10}")
    a(f"v_add_u32 v{t+1}, s{S_T+6}, v{t+1}")
    a(f"v_mov_b32 v{t+7}, s{S_T+3}")
    a(f"v_mov_b32 v{t+9}, 512")
    for ct in range(5):
        A0, A1 = EA + 2 * ct, EA + 2 * ct + 1
        if ct: a(f"v_add_u32 v{t+1}, 4, v{t+1}")
        a(f"v_mul_u32_u24 v{t+3}, 205, v{t+1}")
        a(f"v_lshrrev_b32 v{t+3}, 10, v{t+3}")
        a(f"v_mul_u32_u24 v{t+4}, 5, v{t+3}")
        a(f"v_sub_u32 v{t+6}, v{t+1}, v{t+4}")
        a(f"v_mul_u32_u24 v{t+3}, 5120, v{t+3}")
        a(f"v_add_u32 v{t+3}, v{t+3}, v{t+10}")
        a(f"v_lshrrev_b32 v{t+4}, 1, v{t+6}")
        a(f"v_lshlrev_b32 v{t+4}, 9, v{t+4}")
        a(f"v_and_b32 v{t+5}, 1, v{t+6}")
        a(f"v_lshl_add_u32 v{t+4}, v{t+5}, 3, v{t+4}")
        a(f"v_cmp_eq_u32 vcc, 4, v{t+6}")
        a(f"v_add_u32 v{t+4}, s{S_T+2}, v{t+4}")
        a(f"v_mov_b32 v{t+8}, 2048")
        a(f"v_cndmask_b32 v{t+4}, v{t+4}, v{t+7}, vcc")
        a(f"v_cndmask_b32 v{t+8}, v{t+8}, v{t+9}, vcc")
        a(f"v_add_u32 v{A0}, v{t+3}, v{t+4}")
        a(f"v_add_u32 v{A1}, v{A0}, v{t+8}")

def pre_v(a):
    L = V_LANE; t = 8
    a(f"v_and_b32 v{t}, 15, v{L}")
    a(f"v_lshrrev_b32 v{t+1}, 4, v{L}")
    a(f"s_mul_i32 s{S_T+1}, s{S_I}, 1280")
    a(f"s_add_u32 s{S_T+1}, s{S_T+1}, {IMG}")
    a(f"v_and_b32 v{t+2}, 1, v{t+1}")
    a(f"v_mul_u32_u24 v{t+2}, 320, v{t+2}")
    a(f"v_lshrrev_b32 v{t+3}, 1, v{t+1}")
    a(f"v_lshl_add_u32 v{t+2}, v{t+3}, 3, v{t+2}")
    a(f"v_add_u32 v{t+2}, s{S_T+1}, v{t+2}")
    a(f"s_mul_i32 s{S_T+6}, s{S_J}, 80")
    a(f"v_add_u32 v{t}, s{S_T+6}, v{t}")
    a(f"s_movk_i32 s{S_T+7}, 3277")
    for ct in range(5):
        if ct: a(f"v_add_u32 v{t}, 16, v{t}")
        a(f"v_mul_u32_u24 v{t+3}, s{S_T+7}, v{t}")
        a(f"v_lshrrev_b32 v{t+3}, 16, v{t+3}")
        a(f"v_mul_u32_u24 v{t+4}, 20, v{t+3}")
        a(f"v_sub_u32 v{t+4}, v{t}, v{t+4}")
        a(f"v_mul_u32_u24 v{t+3}, 5120, v{t+3}")
        a(f"v_lshl_add_u32 v{t+4}, v{t+4}, 4, v{t+2}")
        a(f"v_add_u32 v{EA+ct}, v{t+4}, v{t+3}")

def pre_d(a):
    L = V_LANE; t = 8
    a(f"v_and_b32 v{t}, 15, v{L}")
    a(f"v_lshrrev_b32 v{t+1}, 4, v{L}")
    a(f"s_lshl_b32 s{S_T+1}, s{S_I}, 11")
    a(f"s_add_u32 s{S_T+1}, s{S_T+1}, {IMG}")
    a(f"v_lshl_add_u32 v{t+2}, v{t+1}, 2, s{S_T+1}")
    a(f"s_mul_i32 s{S_T+6}, s{S_J}, 80")
    a(f"v_add_u32 v{t}, s{S_T+6}, v{t}")
    a(f"s_cmp_lt_u32 s{S_CG}, 14")
    a(f"s_mov_b32 s{S_T+3}, {WS_BOT}")
    a(f"s_cselect_b32 s{S_T+3}, {WS_AET}, s{S_T+3}")
    a(f"s_cselect_b32 s{S_T+5}, 1.0, -1.0")
    a(f"s_and_b32 s{S_T+2}, s{S_CG}, 1")
    a(f"s_mul_i32 s{S_T+2}, s{S_T+2}, {5*AEP_ET}")
    a(f"s_add_u32 s{S_T+3}, s{S_T+3}, s{S_T+2}")
    a(f"s_add_u32 s{S_T+3}, s{S_T+3}, {64*1024}")
    a(f"s_mov_b32 s{S_T+4}, {AEP_ET}")
    for ct in range(5):
        if ct: a(f"v_add_u32 v{t}, 16, v{t}")
        a(f"v_lshrrev_b32 v{t+3}, 5, v{t}")
        a(f"v_and_b32 v{t+4}, 31, v{t}")
        a(f"v_lshlrev_b32 v{t+4}, 4, v{t+4}")
        a(f"v_lshl_add_u32 v{t+5}, v{t+3}, 12, v{t+4}")
        a(f"v_add_u32 v{EA+ct}, v{t+5}, v{t+2}")
        a(f"v_mul_lo_u32 v{t+5}, v{t+3}, s{S_T+4}")
        a(f"v_add3_u32 v{EA+5+ct}, v{t+5}, v{t+4}, s{S_T+3}")
    a(f"v_mov_b32 v{EA+10}, s{S_T+5}")
    a(f"v_mov_b32 v{EA+11}, s{S_T+5}")

def copy_setup(a):
    lab_d = a.newlabel("cpd"); lab_e = a.newlabel("cpe")
    a(f"s_cmp_ge_u32 s{S_CG}, 12")
    a(f"s_cbranch_scc1 {lab_d}")
    a(f"s_and_b32 s{S_T}, s{S_CG}, 3")
    a(f"s_lshl_b32 s{S_T}, s{S_T}, 3")
    a(f"s_add_u32 s{S_T}, s{S_T}, s{S_WAVE}")
    a(f"s_mul_i32 s{S_T}, s{S_T}, {Q_HEAD_BYTES}")
    a(f"s_mul_i32 s{S_T+1}, s{S_B}, 5120")
    a(f"s_add_u32 s{S_GB}, s{S_T}, s{S_T+1}")
    a(f"s_mov_b32 s{S_NP}, 5")
    a(f"s_cmp_lt_u32 s{S_CG}, 4")
    a(f"s_cbranch_scc1 {lab_e}")
    a(f"s_lshl_b32 s{S_GB}, s{S_GB}, 1")
    a(f"s_add_u32 s{S_GB}, s{S_GB}, {WS_KV}")
    a(f"s_cmp_lt_u32 s{S_CG}, 8")
    a(f"s_cbranch_scc1 {lab_e}")
    a(f"s_add_u32 s{S_GB}, s{S_GB}, 5120")
    a(f"s_branch {lab_e}")
    a.label(lab_d)
    a(f"s_cmp_lt_u32 s{S_CG}, 14")
    a(f"s_mov_b32 s{S_T+3}, {WS_BOT}")
    a(f"s_cselect_b32 s{S_T+3}, {WS_AET}, s{S_T+3}")
    a(f"s_and_b32 s{S_T}, s{S_CG}, 1")
    a(f"s_mul_i32 s{S_T}, s{S_T}, 5")
    a(f"s_add_u32 s{S_T}, s{S_T}, s{S_WAVE}")
    a(f"s_mul_i32 s{S_T}, s{S_T}, {AEP_ET}")
    a(f"s_lshl_b32 s{S_T+1}, s{S_B}, 12")
    a(f"s_add_u32 s{S_GB}, s{S_T}, s{S_T+1}")
    a(f"s_add_u32 s{S_GB}, s{S_GB}, s{S_T+3}")
    a(f"s_cmp_lt_u32 s{S_WAVE}, 5")
    a(f"s_cselect_b32 s{S_NP}, 4, 0")
    a.label(lab_e)

def copy_out(a):
    a.label("L_k1_copy")
    a("s_waitcnt lgkmcnt(0)")
    a("s_barrier")
    a(f"s_cmp_eq_u32 s{S_NP}, 0")
    a("s_cbranch_scc1 L_k1_done")
    a(f"s_mul_i32 s{S_T}, s{S_WAVE}, s{S_NP}")
    a(f"s_lshl_b32 s{S_T}, s{S_T}, 10")
    a(f"s_add_u32 s{S_T}, s{S_T}, {IMG}")
    a(f"v_lshlrev_b32 v2, 4, v{V_LANE}")
    a(f"v_add_u32 v3, s{S_T}, v2")
    for p in range(5):
        a(f"ds_read_b128 {vr(4+4*p,4)}, v3 offset:{p*1024}")
    for p in range(4):
        a(f"s_waitcnt lgkmcnt({4-p})")
        a(f"buffer_store_dwordx4 {vr(4+4*p,4)}, v2, {sr(SRD_WS,4)}, s{S_GB} offen offset:{p*1024}{STF}")
    a(f"s_cmp_eq_u32 s{S_NP}, 4")
    a("s_cbranch_scc1 L_k1_done")
    a(f"s_add_u32 s{S_GB}, s{S_GB}, 4096")
    a("s_waitcnt lgkmcnt(0)")
    a(f"buffer_store_dwordx4 {vr(20,4)}, v2, {sr(SRD_WS,4)}, s{S_GB} offen{STF}")
    a.label("L_k1_done")
    stamp(a, 4)
    stamp_store(a)
    endp(a, "L_A_done")

def epilogue_qk(a):
    lab = a.newlabel("noscale")
    a(f"s_cmp_ge_u32 s{S_CG}, 4")
    a(f"s_mov_b32 s{S_T+4}, {f32bits(QSCALE)}")
    a("s_nop 5")
    a(f"s_cbranch_scc1 {lab}")
    for r in range(80): a(f"v_mul_f32 v{ACC+r}, s{S_T+4}, v{ACC+r}")
    a.label(lab)
    pk = 20
    for ct in range(5):
        for a_ in range(4):
            c = acc(a_, ct)
            p = pk + 2 * (ct * 4 + a_)
            a(f"v_cvt_pk_bf16_f32 v{p}, v{c}, v{c+1}")
            a(f"v_cvt_pk_bf16_f32 v{p+1}, v{c+2}, v{c+3}")
            a(f"ds_write_b64 v{EA2+2*ct+(a_>>1)}, {vr(p,2)} offset:{(a_&1)*256}")
    a("s_branch L_k1_copy")

def epilogue_v(a):
    a("s_nop 7")
    pk = 20
    for ct in range(5):
        for a_ in range(4):
            c = acc(a_, ct)
            p = pk + 2 * (ct * 4 + a_)
            a(f"v_cvt_pk_bf16_f32 v{p}, v{c}, v{c+1}")
            a(f"v_cvt_pk_bf16_f32 v{p+1}, v{c+2}, v{c+3}")
            a(f"ds_write_b64 v{EA2+ct}, {vr(p,2)} offset:{(a_>>1)*2560 + (a_&1)*640}")
    a("s_branch L_k1_copy")

def epilogue_d(a):
    spec = a.newlabel("spec"); nospec = a.newlabel("nospec")
    a(f"s_lshl_b32 s{S_T+6}, s{S_J}, 4")
    a(f"s_add_u32 s{S_T+6}, s{S_T+6}, s{S_CG}")
    a(f"v_and_b32 v2, 15, v{V_LANE}")
    a(f"s_cmp_lg_u32 s{S_T+6}, 14")
    a(f"s_cbranch_scc1 {nospec}")
    a(f"v_cmp_eq_u32 vcc, 0, v2")
    a(f"v_mov_b32 v3, {WS_AET + 10*AEP_ET + 64*1024}")
    a("s_nop 0")
    a(f"v_cndmask_b32 v{EA2+5}, v{EA2+5}, v3, vcc")
    a(f"v_cndmask_b32 v{EA2+10}, v{EA2+10}, 1.0, vcc")
    a.label(nospec)
    lab = a.newlabel("nos0")
    a(f"s_or_b32 s{S_T+7}, s{S_B}, s{S_I}")
    a(f"s_cmp_lg_u32 s{S_T+7}, 0")
    a("s_nop 3")
    a(f"s_cbranch_scc1 {lab}")
    a("s_mov_b64 exec, 0xffff")
    for k in range(1, 4): a(f"v_mov_b32 v{8+k}, 0")
    for k in range(4): a(f"v_mov_b32 v{12+k}, 0")
    for ct in range(5):
        cm = acc(2, ct)
        a(f"v_cvt_pk_bf16_f32 v8, v{cm}, 0")
        a(f"v_mov_b32 v{cm}, 0")
        a(f"buffer_store_dwordx4 v[8:11], v{EA2+5+ct}, {sr(SRD_WS,4)}, 0 offen{STF}")
        a(f"buffer_store_dwordx4 v[12:15], v{EA2+5+ct}, {sr(SRD_WS,4)}, 0 offen offset:512{STF}")
        a("s_nop 1")
    a("s_mov_b64 exec, -1")
    a.label(lab)
    pk = 20
    for ct in range(5):
        for a_ in range(2):
            cs, cm = acc(a_, ct), acc(a_ + 2, ct)
            for r in range(4):
                a(f"v_fma_f32 v{cs+r}, v{cm+r}, v{EA2+10 if ct == 0 else EA2+11}, v{cs+r}")
            p = pk + 2 * (ct * 2 + a_)
            a(f"v_cvt_pk_bf16_f32 v{p}, v{cs}, v{cs+2}")
            a(f"v_cvt_pk_bf16_f32 v{p+1}, v{cs+1}, v{cs+3}")
            a(f"ds_write_b32 v{EA2+ct}, v{p} offset:{a_*512}")
            a(f"ds_write_b32 v{EA2+ct}, v{p+1} offset:{a_*512+1024}")
    a(f"s_cmp_lg_u32 s{S_T+6}, 14")
    a("s_cbranch_scc1 L_k1_copy")
    a(f"v_lshrrev_b32 v3, 4, v{V_LANE}")
    a(f"v_lshlrev_b32 v4, 2, v3")
    a(f"s_lshl_b32 s{S_T}, s{S_B}, 12")
    a(f"s_lshl_b32 s{S_T+1}, s{S_I}, 11")
    a(f"s_add_u32 s{S_T}, s{S_T}, s{S_T+1}")
    a(f"s_add_u32 s{S_T}, s{S_T}, {WS_AET + 10*AEP_ET}")
    a(f"v_cmp_eq_u32 vcc, 0, v2")
    a("s_and_saveexec_b64 s[58:59], vcc")
    for a_ in range(2):
        a(f"buffer_store_dword v{pk+2*a_}, v4, {sr(SRD_WS,4)}, s{S_T} offen offset:{a_*512}{STF}")
        a(f"buffer_store_dword v{pk+2*a_+1}, v4, {sr(SRD_WS,4)}, s{S_T} offen offset:{a_*512+1024}{STF}")
    a("s_mov_b64 exec, -1")
    a("s_branch L_k1_copy")

def gen_k1(a, name, side=None):
    kernel_header(a, name)
    a("s_cmp_ge_u32 s2, 256")
    a("s_cbranch_scc1 L_k1_exit")
    a(f"s_load_dwordx4 {sr(S_X,4)}, s[0:1], 0")
    a(f"s_load_dwordx4 {sr(S_DRE,4)}, s[0:1], 48")
    a(f"s_load_dwordx2 {sr(S_WS,2)}, s[0:1], 88")
    a(f"s_load_dwordx4 s[4:7], s[0:1], 32")
    stamp(a, 0)
    a(f"v_and_b32 v{V_LANE}, 63, v0")
    a(f"v_lshrrev_b32 v2, 6, v0")
    a("s_nop 0")
    a(f"v_readfirstlane_b32 s{S_WAVE}, v2")
    if XMAP == 0:
        a(f"s_and_b32 s{S_T}, s2, 1")
        a(f"s_lshl_b32 s{S_T}, s{S_T}, 3")
        a(f"s_bfe_u32 s{S_T+1}, s2, 0x30003")
        a(f"s_add_u32 s{S_B}, s{S_T}, s{S_T+1}")
        a(f"s_bfe_u32 s{S_T}, s2, 0x20001")
        a(f"s_lshl_b32 s{S_T}, s{S_T}, 2")
        a(f"s_lshr_b32 s{S_T+1}, s2, 6")
        a(f"s_add_u32 s{S_CG}, s{S_T}, s{S_T+1}")
    elif XMAP == 1:
        a(f"s_and_b32 s{S_T}, s2, 7")
        a(f"s_lshl_b32 s{S_T}, s{S_T}, 1")
        a(f"s_bfe_u32 s{S_T+1}, s2, 0x10003")
        a(f"s_add_u32 s{S_B}, s{S_T}, s{S_T+1}")
        a(f"s_lshr_b32 s{S_CG}, s2, 4")
    elif XMAP == 2:
        a(f"s_and_b32 s{S_T}, s2, 7")
        a(f"s_lshl_b32 s{S_T}, s{S_T}, 1")
        a(f"s_bfe_u32 s{S_T+1}, s2, 0x10003")
        a(f"s_add_u32 s{S_CG}, s{S_T}, s{S_T+1}")
        a(f"s_lshr_b32 s{S_B}, s2, 4")
    elif XMAP == 3:
        a(f"s_and_b32 s{S_T}, s2, 3")
        a(f"s_lshl_b32 s{S_T}, s{S_T}, 2")
        a(f"s_bfe_u32 s{S_T+1}, s2, 0x20003")
        a(f"s_add_u32 s{S_B}, s{S_T}, s{S_T+1}")
        a(f"s_bfe_u32 s{S_T}, s2, 0x10002")
        a(f"s_lshl_b32 s{S_T}, s{S_T}, 3")
        a(f"s_lshr_b32 s{S_T+1}, s2, 5")
        a(f"s_add_u32 s{S_CG}, s{S_T}, s{S_T+1}")
    a(f"s_bfe_u32 s{S_I}, s{S_WAVE}, 0x10001")
    a(f"s_and_b32 s{S_J}, s{S_WAVE}, 1")
    a(f"s_and_b32 s{S_T}, s{S_CG}, 1")
    a(f"s_cmp_lt_u32 s{S_CG}, 12")
    a(f"s_cselect_b32 s{S_T}, s{S_CG}, s{S_T}")
    a(f"s_cselect_b32 s{S_WSTR}, 3840, 64")
    a(f"s_mul_i32 s{S_WCOL}, s{S_T}, 320")
    a(f"s_cselect_b32 s{S_T+1}, 0, 1216")
    a(f"s_add_u32 s{S_WSTR}, s{S_WSTR}, s{S_T+1}")
    a(f"s_lshl_b32 s{S_WSTEP}, s{S_WSTR}, 6")
    a(f"s_mul_i32 s{S_T+2}, s{S_WSTR}, 640")
    a("s_waitcnt lgkmcnt(0)")
    make_srd(a, SRD_X, S_X, S_X + 1, 0, S * D * 2)
    a(f"s_cmp_lt_u32 s{S_CG}, 14")
    a(f"s_cselect_b32 s{SRD_W}, s{S_DRE}, s{S_DIM}")
    a(f"s_cselect_b32 s{SRD_W+1}, s{S_DRE+1}, s{S_DIM+1}")
    a(f"s_cmp_lt_u32 s{S_CG}, 12")
    a(f"s_cselect_b32 s{SRD_W}, s{S_W}, s{SRD_W}")
    a(f"s_cselect_b32 s{SRD_W+1}, s{S_W+1}, s{SRD_W+1}")
    a(f"s_mov_b32 s{SRD_W+2}, s{S_T+2}")
    a(f"s_mov_b32 s{SRD_W+3}, 0x00020000")
    make_srd(a, SRD_WS, S_WS, S_WS + 1, 0, WS_END)
    a(f"s_cmp_lt_u32 s2, 128")
    a(f"s_cselect_b32 s{SRD_SQ}, s4, s6")
    a(f"s_cselect_b32 s{SRD_SQ+1}, s5, s7")
    a(f"s_mov_b32 s{SRD_SQ+2}, {S*S*2}")
    a(f"s_mov_b32 s{SRD_SQ+3}, 0x00020000")
    if STAMP: make_srd(a, 96, S_WS, S_WS + 1, 0x2000000, 0x100000)
    if side:
        a(f"s_cmp_ge_u32 s{S_WAVE}, 8")
        a("s_cbranch_scc1 L_k1_side")
    a(f"s_cmp_ge_u32 s{S_WAVE}, 4")
    a("s_cbranch_scc1 L_k1_loader")
    compute_setup(a)
    copy_setup(a)
    a(f"s_cmp_ge_u32 s{S_CG}, 8")
    a("s_cbranch_scc1 L_k1_c1")
    pre_qk(a)
    compute_loop(a, True)
    epilogue_qk(a)
    a.label("L_k1_c1")
    a(f"s_cmp_ge_u32 s{S_CG}, 12")
    a("s_cbranch_scc1 L_k1_c1d")
    pre_v(a)
    a("s_branch L_k1_c1go")
    a.label("L_k1_c1d")
    pre_d(a)
    a.label("L_k1_c1go")
    compute_loop(a, False)
    a(f"s_cmp_ge_u32 s{S_CG}, 12")
    a("s_cbranch_scc1 L_k1_c2")
    epilogue_v(a)
    a.label("L_k1_c2")
    epilogue_d(a)
    a.label("L_k1_loader")
    loader(a)
    a.label("L_k1_exit")
    a("s_endpgm")
    if side:
        a.label("L_k1_side")
        side(a)
```

```python
S = 2048; D = 640; H = 32; DH = 20

WS_Q   = 0x000000
WS_KV  = 0x280000
WS_AET = 0x780000
WS_BOT = 0x840000
WS_Y   = 0x900000
YHALF = 33 * 40960
WS_YQ  = 0xA50000
WS_O   = 0xBA0000
WS_G   = 0xE20000
WS_WOT = 0xE30000
WS_CP  = 0x1000000
WS_SP  = 0x1000000 + 17 * 65536
WS_END = 0x1400000
AET_STRIDE = 2112
AEP_ET = 66 * 1024
Q_HEAD_BYTES = 16 * 5120
KV_HEAD_BYTES = 16 * 10240

class Asm:
    def __init__(self):
        self.lines = []
        self.uid = 0
    def __call__(self, s):
        for l in s.strip("\n").split("\n"):
            self.lines.append("    " + l.strip() if not l.strip().endswith(":") else l.strip())
    def label(self, name):
        self.lines.append(name + ":")
    def newlabel(self, base):
        self.uid += 1
        return f"L_{base}_{self.uid}"
    def comment(self, s):
        self.lines.append("    ; " + s)
    def text(self):
        return "\n".join(self.lines) + "\n"

def vr(a, n=1):
    return f"v{a}" if n == 1 else f"v[{a}:{a+n-1}]"
def sr(a, n=1):
    return f"s{a}" if n == 1 else f"s[{a}:{a+n-1}]"

def kernel_header(a, name):
    a.lines.append(f".globl {name}")
    a.lines.append(".p2align 8")
    a.lines.append(f".type {name},@function")
    a.lines.append(f"{name}:")

def kernel_desc(name, nvgpr, nsgpr=102):
    acc = (nvgpr + 3) // 4 * 4
    return f""".p2align 6
.amdhsa_kernel {name}
  .amdhsa_next_free_vgpr {nvgpr}
  .amdhsa_next_free_sgpr {nsgpr}
  .amdhsa_accum_offset {acc}
  .amdhsa_group_segment_fixed_size 0
  .amdhsa_kernarg_size 96
  .amdhsa_user_sgpr_count 2
  .amdhsa_user_sgpr_kernarg_segment_ptr 1
  .amdhsa_system_sgpr_workgroup_id_x 1
.end_amdhsa_kernel
"""

def make_srd(a, d, base_lo, base_hi, off, size):
    if off == 0:
        a(f"s_mov_b32 s{d}, s{base_lo}")
        a(f"s_mov_b32 s{d+1}, s{base_hi}")
    else:
        a(f"s_add_u32 s{d}, s{base_lo}, {off}")
        a(f"s_addc_u32 s{d+1}, s{base_hi}, 0")
    a(f"s_mov_b32 s{d+2}, {size}")
    a(f"s_mov_b32 s{d+3}, 0x00020000")

class Cfg:
    MEGA = False
    LDF = ""
    STF2 = ""
def endp(a, label):
    if Cfg.MEGA: a(f"s_branch {label}")
    else: a("s_endpgm")

def code_prefetch(a, target, nkb, sreg, vreg, lane):
    here = a.newlabel("pc")
    a(f"s_getpc_b64 s[{sreg}:{sreg+1}]")
    a.label(here)
    a(f"s_add_u32 s{sreg}, s{sreg}, {target}-{here}")
    a(f"s_addc_u32 s{sreg+1}, s{sreg+1}, 0")
    a(f"v_lshlrev_b32 v{vreg}, 4, v{lane}")
    for i in range(nkb):
        if i and i % 4 == 0:
            a(f"s_add_u32 s{sreg}, s{sreg}, 4096")
            a(f"s_addc_u32 s{sreg+1}, s{sreg+1}, 0")
        a(f"global_load_dwordx4 v[{vreg+2}:{vreg+5}], v{vreg}, s[{sreg}:{sreg+1}] offset:{(i%4)*1024}")
```

```python
from common import *
import k2
from k2 import S_WAVE, S_T, S_WS, V_LANE, mfma32
import math, struct
def f32bits(x): return struct.unpack("<I", struct.pack("<f", x))[0]
OOB = 0x40000000
SRD_CS = 20; SRD_SS = 24; SRD_AE = 28; SRD_BO = 32; SRD_Y = 36; SRD_A = 40; SRD_B = 44; SRD_G = 48
ACCP = 8; ACCQ = 24; BUF = 40; DEPTH = 14; HPRIO = 0; EPRIO = 1; DFT_SYNC = None

def setup(a):
    make_srd(a, SRD_A, S_WS, S_WS + 1, WS_CP, 17 * 65536)
    make_srd(a, SRD_B, S_WS, S_WS + 1, WS_SP, 17 * 65536)
    make_srd(a, SRD_AE, S_WS, S_WS + 1, WS_AET, 11 * AEP_ET)
    make_srd(a, SRD_BO, S_WS, S_WS + 1, WS_BOT, 11 * AEP_ET)
    make_srd(a, SRD_Y, S_WS, S_WS + 1, WS_Y, 2 * YHALF - 8)

AE_, AO_ = 8, 24
def dft2(a):
    L = V_LANE
    BUF = 40
    sTT, sET, sN = S_T + 2, S_T + 3, S_T + 4
    a(f"s_lshr_b32 s{sN}, s2, 3")
    a(f"s_and_b32 s{S_T+1}, s2, 7")
    a(f"s_cmp_ge_u32 s{sN}, 11")
    a(f"s_cselect_b32 s{S_T}, 8, 0")
    a(f"s_cselect_b32 s{sET}, 11, 0")
    a(f"s_add_u32 s{sTT}, s{S_T+1}, s{S_T}")
    a(f"s_sub_u32 s{sET}, s{sN}, s{sET}")
    a(f"s_cmp_lt_u32 s{sN}, 22")
    a("s_cbranch_scc1 L_dft_go")
    a(f"s_sub_u32 s{sET}, s{sN}, 22")
    a(f"s_lshl_b32 s{sET}, s{sET}, 3")
    a(f"s_add_u32 s{sET}, s{sET}, s{S_T+1}")
    a(f"s_mov_b32 s{sTT}, 16")
    a(f"s_cmp_ge_u32 s{sET}, 11")
    a("s_cbranch_scc1 L_k2_exit")
    a.label("L_dft_go")
    if DFT_SYNC: DFT_SYNC(a)
    if HPRIO: a(f"s_setprio {HPRIO}")
    k2.stamp(a, 1)
    a(f"s_cmp_eq_u32 s{S_WAVE}, 8")
    a("s_cbranch_scc1 L_dft_isP")
    for d_, s_ in ((SRD_A, SRD_B), (SRD_AE, SRD_BO)):
        a(f"s_mov_b32 s{d_}, s{s_}")
        a(f"s_mov_b32 s{d_+1}, s{s_+1}")
    a(f"s_add_u32 s{SRD_Y}, s{SRD_Y}, 8")
    a(f"s_addc_u32 s{SRD_Y+1}, s{SRD_Y+1}, 0")
    a.label("L_dft_isP")
    vB, vE, vH, vt = 3, 4, 5, 6
    a(f"v_and_b32 v{vt}, 31, v{L}")
    a(f"v_lshrrev_b32 v{vH}, 5, v{L}")
    a(f"s_lshl_b32 s{S_T}, s{sTT}, 5")
    a(f"s_lshl_b32 s{S_T+1}, s{sET}, 5")
    a(f"v_add_u32 v{vE}, s{S_T+1}, v{vt}")
    a(f"s_mul_i32 s{S_T+7}, s{sET}, {AEP_ET}")
    a(f"v_lshlrev_b32 v{vB}, 4, v{L}")
    a(f"s_lshl_b32 s{S_T+5}, s{sTT}, 16")
    a(f"v_lshlrev_b32 v7, 4, v{vt}")
    a(f"s_add_u32 s{S_T+6}, s{S_T+7}, {64*1024}")
    a(f"buffer_load_ushort v7, v7, {sr(SRD_AE,4)}, s{S_T+6} offen{Cfg.LDF}")
    def loads(i):
        b = BUF + 8 * (i % DEPTH)
        if i % 4 == 0:
            a(f"s_add_u32 s{S_T+6}, s{S_T+7}, {i*1024}")
            a(f"s_add_u32 s{S_T+4}, s{S_T+5}, {i*1024}")
        a(f"buffer_load_dwordx4 {vr(b,4)}, v{vB}, {sr(SRD_A,4)}, s{S_T+4} offen offset:{(i%4)*1024}{Cfg.LDF}")
        a(f"buffer_load_dwordx4 {vr(b+4,4)}, v{vB}, {sr(SRD_AE,4)}, s{S_T+6} offen offset:{(i%4)*1024}{Cfg.LDF}")
    for i in range(DEPTH): loads(i)
    n = 64
    for i in range(n):
        out = min(n, i + DEPTH) - (i + 1)
        a(f"s_waitcnt vmcnt({2*out})")
        b = BUF + 8 * (i % DEPTH)
        acc = AO_ if i % 2 else AE_
        mfma32(a, acc, b, b + 4, None if i < 2 else acc)
        if i + DEPTH < n: loads(i + DEPTH)
    k2.stamp(a, 2)
    if EPRIO: a(f"s_setprio {EPRIO}")
    cD, cM, oob, tb = 40, 41, 42, 43
    a(f"v_lshlrev_b32 v7, 16, v7")
    def colpart(dst, c):
        a(f"v_lshrrev_b32 v45, 4, v{c}")
        a(f"v_lshlrev_b32 v45, 10, v45")
        a(f"v_bfe_u32 v46, v{c}, 2, 2")
        a(f"v_lshl_add_u32 v45, v46, 8, v45")
        a(f"v_and_b32 v46, 3, v{c}")
        a(f"v_lshl_add_u32 v{dst}, v46, 1, v45")
    a(f"v_sub_u32 v47, 640, v{vE}")
    colpart(cD, vE); colpart(cM, 47)
    a(f"v_mov_b32 v{oob}, {OOB}")
    a(f"v_cmp_lt_u32 vcc, 320, v{vE}")
    a(f"v_add_u32 v44, -1, v{vE}")
    a(f"s_mul_i32 s{S_T+1}, s{sTT}, {2*40960}")
    a(f"v_cndmask_b32 v{cD}, v{cD}, v{oob}, vcc")
    a(f"v_cmp_lt_u32 vcc, 318, v44")
    a(f"v_lshl_add_u32 v45, v{vH}, 6, s{S_T+1}")
    a("s_nop 0")
    a(f"v_cndmask_b32 v{cM}, v{cM}, v{oob}, vcc")
    a(f"v_add_u32 v48, v45, v{cD}")
    a(f"v_add_u32 v49, v45, v{cM}")
    a(f"s_cmp_eq_u32 s{sTT}, 16")
    a("s_cbranch_scc0 L_dft_full")
    a("s_mov_b64 exec, 0xffffffff")
    a.label("L_dft_full")
    def st(hi, reg, ad, so): a(f"buffer_store_short{'_d16_hi' if hi else ''} v{reg}, v{ad}, {sr(SRD_Y,4)}, s{so} offen{Cfg.STF2}")
    a(f"s_cmp_lg_u32 s{S_WAVE}, 8")
    a("s_cbranch_scc1 L_dft_Q")
    for r in range(16):
        c = 8 * (r // 4) + r % 4
        op = 'add' if r % 2 == 0 else 'sub'
        p1 = 56 + (r % 8)
        a(f"v_{op}_f32 v{AE_+r}, v{AE_+r}, v7")
        a(f"s_mov_b32 s{S_T+5}, {(r//8)*40960 + (8*((r//4)%2) + r%4)*16}")
        a(f"v_add_f32 v52, v{AE_+r}, v{AO_+r}")
        a(f"v_sub_f32 v53, v{AE_+r}, v{AO_+r}")
        a(f"s_mov_b32 s{S_T+6}, {YHALF + (r//8)*40960 + (8*((r//4)%2) + r%4)*16}")
        a(f"v_cvt_pk_bf16_f32 v{p1}, v52, v53")
        st(0, p1, 48, S_T+5); st(0, p1, 49, S_T+5)
        if r == 0:
            a(f"s_cmp_eq_u32 s{sTT}, 16")
            a("s_cbranch_scc1 L_dft_end")
        st(1, p1, 48, S_T+6); st(1, p1, 49, S_T+6)
    a("s_branch L_dft_end")
    a.label("L_dft_Q")
    for r in range(16):
        c = 8 * (r // 4) + r % 4
        p1, p2 = 56 + 2 * (r % 8), 57 + 2 * (r % 8)
        a(f"s_mov_b32 s{S_T+5}, {(r//8)*40960 + (8*((r//4)%2) + r%4)*16}")
        a(f"v_add_f32 v52, v{AE_+r}, v{AO_+r}")
        a(f"v_sub_f32 v53, v{AO_+r}, v{AE_+r}")
        a(f"s_mov_b32 s{S_T+6}, {YHALF + (r//8)*40960 + (8*((r//4)%2) + r%4)*16}")
        a(f"v_cvt_pk_bf16_f32 v{p1}, v52, v53")
        a(f"v_cndmask_b32 v{p1}, v{p1}, 0, vcc")
        a(f"v_xor_b32 v{p2}, 0x80008000, v{p1}")
        st(0, p1, 48, S_T+5); st(0, p2, 49, S_T+5)
        if r == 0:
            a(f"s_cmp_eq_u32 s{sTT}, 16")
            a("s_cbranch_scc1 L_dft_end")
        st(1, p1, 48, S_T+6); st(1, p2, 49, S_T+6)
    a.label("L_dft_end")
    a("s_mov_b64 exec, -1")
    k2.stamp(a, 3)
    if k2.STAMP: a("s_waitcnt vmcnt(0)")
    k2.stamp(a, 4)
    k2.stamp_store(a, 8)
    endp(a, "L_B_done")

def gate(a):
    L = V_LANE
    make_srd(a, SRD_A, 68, 69, 0, S * D * 2)
    make_srd(a, SRD_B, 76, 77, 0, D * 2)
    make_srd(a, SRD_G, S_WS, S_WS + 1, WS_G, S * 4)
    a(f"v_lshrrev_b32 v2, 3, v{L}")
    a(f"v_and_b32 v3, 7, v{L}")
    a(f"s_lshl_b32 s{S_T}, s2, 3")
    a(f"v_add_u32 v2, s{S_T}, v2")
    a(f"v_mul_u32_u24 v4, 160, v3")
    a(f"v_mul_u32_u24 v5, 1280, v2")
    a(f"v_add_u32 v5, v5, v4")
    for i in range(10):
        a(f"buffer_load_dwordx4 {vr(8+4*i,4)}, v5, {sr(SRD_A,4)}, 0 offen offset:{16*i}")
        a(f"buffer_load_dwordx4 {vr(48+4*i,4)}, v4, {sr(SRD_B,4)}, 0 offen offset:{16*i}")
    a("v_mov_b32 v6, 0")
    a("v_mov_b32 v7, 0")
    a("s_waitcnt vmcnt(0)")
    for i in range(40):
        d = 6 + (i % 2)
        a(f"v_dot2_f32_bf16 v{d}, v{8+i}, v{48+i}, v{d}")
    a("s_nop 3")
    a("v_add_f32 v6, v6, v7")
    a("s_nop 1")
    a("v_add_f32_dpp v6, v6, v6 quad_perm:[1,0,3,2] row_mask:0xf bank_mask:0xf")
    a("s_nop 1")
    a("v_add_f32_dpp v6, v6, v6 quad_perm:[2,3,0,1] row_mask:0xf bank_mask:0xf")
    a("s_nop 1")
    a("v_add_f32_dpp v6, v6, v6 row_half_mirror row_mask:0xf bank_mask:0xf")
    a(f"v_mul_f32 v6, {f32bits(-math.log2(math.e))}, v6")
    a("v_exp_f32 v6, v6")
    a("s_nop 0")
    a("v_add_f32 v6, 1.0, v6")
    a("v_rcp_f32 v6, v6")
    a("v_lshlrev_b32 v2, 2, v2")
    a("v_cmp_eq_u32 vcc, 0, v3")
    a("s_and_saveexec_b64 s[66:67], vcc")
    a(f"buffer_store_dword v6, v2, {sr(SRD_G,4)}, 0 offen{Cfg.STF2}")
    a("s_mov_b64 exec, -1")
    endp(a, "L_side_done")

CPF3 = 0
def wopack(a):
    L = V_LANE
    if CPF3 and not Cfg.MEGA:
        code_prefetch(a, "outproj_mix_kernel", CPF3, 64, 80, V_LANE)
    make_srd(a, SRD_A, 70, 71, 0, D * D * 2)
    make_srd(a, SRD_B, S_WS, S_WS + 1, WS_WOT, 800 * 1024)
    a(f"v_and_b32 v2, 15, v{L}")
    a(f"v_lshrrev_b32 v3, 4, v{L}")
    a(f"v_mul_u32_u24 v3, {8*1280}, v3")
    a(f"v_lshl_add_u32 v3, v2, 1, v3")
    a(f"v_add_u32 v4, 5120, v3")
    a(f"v_lshlrev_b32 v5, 4, v{L}")
    for m in range(4):
        a(f"s_add_u32 s{S_T}, s2, {256*m}")
        a(f"s_mul_i32 s{S_T+1}, s{S_T}, 3277")
        a(f"s_lshr_b32 s{S_T+1}, s{S_T+1}, 16")
        a(f"s_mul_i32 s{S_T+2}, s{S_T+1}, 20")
        a(f"s_sub_u32 s{S_T+2}, s{S_T}, s{S_T+2}")
        a(f"s_mul_i32 s{S_T+2}, s{S_T+2}, {32*1280}")
        a(f"s_lshl_b32 s{S_T+1}, s{S_T+1}, 5")
        a(f"s_add_u32 s{S_T+2}, s{S_T+2}, s{S_T+1}")
        a(f"s_lshl_b32 s{S_T+3+m}, s{S_T}, 10")
        for jj in range(8):
            r = 24 + 8 * m + jj
            a(f"buffer_load_ushort v{r}, v{3 if jj < 4 else 4}, {sr(SRD_A,4)}, s{S_T+2} offen offset:{(jj%4)*1280}")
    a("s_waitcnt vmcnt(0)")
    for m in range(4):
        for q in range(4):
            a(f"v_lshl_or_b32 v{8+4*m+q}, v{24+8*m+2*q+1}, 16, v{24+8*m+2*q}")
        a(f"buffer_store_dwordx4 {vr(8+4*m,4)}, v5, {sr(SRD_B,4)}, s{S_T+3+m} offen{Cfg.STF2}")
    endp(a, "L_side_done")

def body(a):
    if Cfg.MEGA:
        a(f"s_cmp_ge_u32 s{S_WAVE}, 10")
        a("s_cbranch_scc1 L_k2_exit")
        dft2(a)
        return
    a(f"s_cmp_eq_u32 s{S_WAVE}, 10")
    a("s_cbranch_scc1 L_k2_gate")
    a(f"s_cmp_eq_u32 s{S_WAVE}, 11")
    a("s_cbranch_scc1 L_k2_wopack")
    dft2(a)
    a.label("L_k2_gate")
    gate(a)
    a.label("L_k2_wopack")
    wopack(a)
```

```python
from common import *
S_WS = 4; S_OUT = 6
SRD_O = 8; SRD_W = 12; SRD_Y = 16; SRD_G = 20; SRD_OUT = 24
S_WAVE = 36; S_W4 = 39; S_RB = 37; S_CB = 38; S_T = 44
V_LANE = 1
ACC = 16
OB = 36
OB = 32
WB = 112
YR = 152
YR2 = 164
NVGPR = 184
ACC = 12
STAMP = False
def stamp(a, idx):
    if STAMP: a(f"s_memtime s[{70+2*idx}:{71+2*idx}]")
def stamp_store(a, n=8):
    if not STAMP: return
    a("s_waitcnt vmcnt(0)")
    stamp(a, n - 1)
    a("s_waitcnt lgkmcnt(0)")
    a(f"s_lshl_b32 s{S_T}, s2, 4")
    a(f"s_add_u32 s{S_T}, s{S_T}, s{S_WAVE}")
    a(f"s_lshl_b32 s{S_T}, s{S_T}, 6")
    a(f"v_mov_b32 v2, 0")
    for i in range(n):
        a(f"v_mov_b32 v3, s{70+2*i}")
        a(f"buffer_store_dword v3, v2, s[96:99], s{S_T} offen offset:{4*i}")

def gen_k3(a, name, sync=None):
    L = V_LANE
    if not Cfg.MEGA:
        kernel_header(a, name)
        a("s_cmp_ge_u32 s2, 256")
        a("s_cbranch_scc1 L_k3_exit")
    a(f"s_load_dwordx2 {sr(S_WS,2)}, s[0:1], 88")
    a(f"s_load_dwordx2 {sr(S_OUT,2)}, s[0:1], 72")
    stamp(a, 0)
    a(f"v_and_b32 v{L}, 63, v0")
    a(f"v_lshrrev_b32 v2, 6, v0")
    a("s_nop 0")
    a(f"v_readfirstlane_b32 s{S_WAVE}, v2")
    a(f"s_and_b32 s{S_W4}, s{S_WAVE}, 3")
    a(f"s_and_b32 s{S_T}, s2, 3")
    a(f"s_lshl_b32 s{S_T}, s{S_T}, 3")
    a(f"s_bfe_u32 s{S_T+1}, s2, 0x30003")
    a(f"s_add_u32 s{S_RB}, s{S_T}, s{S_T+1}")
    a(f"s_and_b32 s{S_T}, s2, 4")
    a(f"s_lshr_b32 s{S_T+1}, s2, 6")
    a(f"s_add_u32 s{S_CB}, s{S_T}, s{S_T+1}")
    a(f"v_and_b32 v2, 15, v{L}")
    a(f"v_lshrrev_b32 v3, 4, v{L}")
    a(f"v_lshlrev_b32 v9, 4, v{L}")
    a(f"s_lshl_b32 s{S_T+2}, s{S_RB}, 2")
    a(f"s_add_u32 s{S_T+2}, s{S_T+2}, s{S_W4}")
    a(f"s_lshl_b32 s{S_T+6}, s{S_T+2}, 4")
    a(f"s_mul_i32 s{S_T+2}, s{S_T+2}, 20480")
    a(f"s_mul_i32 s{S_T+3}, s{S_CB}, {100*1024}")
    a(f"s_lshl_b32 s{S_T+4}, s{S_W4}, 10")
    a(f"s_add_u32 s{S_T+3}, s{S_T+3}, s{S_T+4}")
    a(f"s_mul_i32 s{S_T+4}, s{S_W4}, 5120")
    a(f"v_add_u32 v11, s{S_T+6}, v2")
    a(f"v_mul_u32_u24 v10, 1280, v11")
    a(f"s_mul_i32 s{S_T+5}, s{S_CB}, 160")
    a(f"v_lshl_add_u32 v10, v3, 3, v10")
    a(f"v_add_u32 v10, s{S_T+5}, v10")
    a(f"s_movk_i32 s{S_T+12}, 512")
    a(f"v_sub_u32 v4, 2048, v11")
    a(f"v_min_u32 v4, v4, v11")
    a(f"v_cmp_lt_u32 vcc, 1024, v11")
    a(f"v_sub_u32 v5, 1024, v4")
    a(f"v_min_u32 v5, v5, v4")
    a(f"v_lshrrev_b32 v6, 4, v5")
    a(f"v_mul_u32_u24 v6, 40960, v6")
    a(f"v_and_b32 v5, 15, v5")
    a(f"v_lshl_add_u32 v5, v3, 4, v5")
    a(f"v_lshl_add_u32 v7, v5, 4, v6")
    a(f"s_mul_i32 s{S_T+9}, s{S_CB}, 5120")
    a(f"v_add_u32 v7, s{S_T+9}, v7")
    a(f"v_add_u32 v6, {YHALF}, v7")
    a(f"v_cmp_lt_u32 s[{S_T+10}:{S_T+11}], s{S_T+12}, v4")
    a("s_nop 1")
    a(f"v_cndmask_b32 v7, v7, v6, s[{S_T+10}:{S_T+11}]")
    a(f"v_cndmask_b32 v{YR+11}, -1.0, 1.0, vcc")
    a(f"v_lshlrev_b32 v11, 2, v11")
    a(f"v_add_u32 v8, 61440, v9")
    a("s_waitcnt lgkmcnt(0)")
    make_srd(a, SRD_W, S_WS, S_WS + 1, WS_WOT, 800 * 1024)
    make_srd(a, SRD_O, S_WS, S_WS + 1, WS_O, S * D * 2)
    if STAMP: make_srd(a, 96, S_WS, S_WS + 1, 0x2100000, 0x100000)
    stamp(a, 1)
    if Cfg.MEGA:
        a(f"s_cmp_ge_u32 s{S_WAVE}, 8")
        a("s_cbranch_scc0 L_k3_work")
        sync(a)
        a("s_barrier")
        a("s_endpgm")
        a.label("L_k3_work")
    a(f"s_cmp_ge_u32 s{S_WAVE}, 4")
    a("s_cbranch_scc0 L_k3_comp")
    for gq in range(5):
        for ct in range(5):
            a(f"s_add_u32 m0, s{S_T+4}, {gq*20480 + ct*1024}")
            a(f"s_add_u32 s{S_T+7}, s{S_T+3}, {ct*20*1024 + gq*4096}")
            a(f"buffer_load_dwordx4 v9, {sr(SRD_W,4)}, s{S_T+7} offen{Cfg.LDF} lds")
        if gq >= 1 and not Cfg.MEGA:
            a("s_waitcnt vmcnt(5)")
            a("s_barrier")
    a("s_waitcnt vmcnt(0)")
    a("s_barrier")
    a("s_endpgm")
    a.label("L_k3_comp")
    ops = []
    def oload(gq):
        a(f"s_add_u32 s{S_T+7}, s{S_T+2}, {gq*4096}")
        for q in range(4):
            a(f"buffer_load_dwordx4 {vr(OB+4*(4*gq+q),4)}, v9, {sr(SRD_O,4)}, s{S_T+7} offen offset:{q*1024}{Cfg.LDF}")
            ops.append(gq)
    def yload():
        a(f"s_mov_b32 s{S_T+9}, 0")
        for ct in range(5):
            a(f"buffer_load_dwordx4 {vr(YR2+4*ct,4)}, v7, {sr(SRD_Y,4)}, s{S_T+9} offen offset:{1024*(ct%4)}{Cfg.LDF}"); ops.append(9)
            if ct == 3: a(f"s_movk_i32 s{S_T+9}, 4096")
        a(f"buffer_load_dword v{YR+10}, v11, {sr(SRD_G,4)}, 0 offen{Cfg.LDF}"); ops.append(9)
    if Cfg.MEGA:
        make_srd(a, SRD_Y, S_WS, S_WS + 1, WS_Y, WS_O - WS_Y)
        make_srd(a, SRD_G, S_WS, S_WS + 1, WS_G, S * 4)
        make_srd(a, SRD_OUT, S_OUT, S_OUT + 1, 0, S * D * 2)
        a("s_barrier")
    oload(0)
    make_srd(a, SRD_Y, S_WS, S_WS + 1, WS_Y, WS_O - WS_Y)
    make_srd(a, SRD_G, S_WS, S_WS + 1, WS_G, S * 4)
    make_srd(a, SRD_OUT, S_OUT, S_OUT + 1, 0, S * D * 2)
    oload(1)
    stamp(a, 2)
    def rd(ks):
        r = []
        for ct in range(5):
            off = (ks * 5 + ct) * 1024
            base = 9 if off < 61440 else 8
            r.append(f"ds_read_b128 {vr(WB+20*(ks%2)+4*ct,4)}, v{base} offset:{off if off < 61440 else off - 61440}")
        return r
    def mm(ks):
        return [f"v_mfma_f32_16x16x32_bf16 {vr(ACC+4*ct,4)}, {vr(WB+20*(ks%2)+4*ct,4)}, {vr(OB+4*ks,4)}, {'0' if ks == 0 else vr(ACC+4*ct,4)}" for ct in range(5)]
    for gq in range(5):
        last = max(i for i, t in enumerate(ops) if t == gq)
        a(f"s_waitcnt vmcnt({len(ops)-1-last})")
        if not Cfg.MEGA: a("s_barrier")
        if gq == 0: stamp(a, 3)
        if gq + 2 < 5: oload(gq + 2)
        if gq == 2: yload()
        for q in range(4):
            ks = 4 * gq + q
            for r_ in rd(ks): a(r_)
            if ks >= 1:
                a("s_waitcnt lgkmcnt(5)")
                for m in mm(ks - 1): a(m)
    a("s_waitcnt lgkmcnt(0)")
    for m in mm(19): a(m)
    stamp(a, 4)
    a("s_waitcnt vmcnt(0)")
    for ct in range(5):
        y0, y1 = YR2 + 4 * ct, YR2 + 4 * ct + 1
        t = 36 + 4 * ct
        a(f"v_lshlrev_b32 v{t}, 16, v{y0}")
        a(f"v_and_b32 v{t+1}, 0xffff0000, v{y0}")
        a(f"v_lshlrev_b32 v{t+2}, 16, v{y1}")
        a(f"v_and_b32 v{t+3}, 0xffff0000, v{y1}")
        q0, q1 = YR2 + 4 * ct + 2, YR2 + 4 * ct + 3
        u = 80 + 4 * ct
        a(f"v_lshlrev_b32 v{u}, 16, v{q0}")
        a(f"v_and_b32 v{u+1}, 0xffff0000, v{q0}")
        a(f"v_lshlrev_b32 v{u+2}, 16, v{q1}")
        a(f"v_and_b32 v{u+3}, 0xffff0000, v{q1}")
        for r in range(4):
            a(f"v_fma_f32 v{t+r}, v{u+r}, v{YR+11}, v{t+r}")
    stamp(a, 5)
    for ct in range(5):
        t = 36 + 4 * ct
        for r in range(4):
            d = ACC + ct * 4 + r
            a(f"v_sub_f32 v{d}, v{d}, v{t+r}")
            a(f"v_fma_f32 v{d}, v{d}, v{YR+10}, v{t+r}")
        d = ACC + ct * 4
        a(f"v_cvt_pk_bf16_f32 v{60+2*ct}, v{d}, v{d+1}")
        a(f"v_cvt_pk_bf16_f32 v{61+2*ct}, v{d+2}, v{d+3}")
        a(f"buffer_store_dwordx2 {vr(60+2*ct,2)}, v10, {sr(SRD_OUT,4)}, 0 offen offset:{32*ct}")
    stamp(a, 6)
    stamp_store(a)
    a.label("L_k3_exit")
    a("s_endpgm")
```

```python
from common import *
import math, struct

STAGE = 36864; WOFF = 16384; NSLOT = 4; NST = 10
S_X = 24; S_W = 26; S_DRE = 28; S_DIM = 30; S_WS = 32
SRD_X = 8; SRD_W = 12; SRD_SQ = 16; SRD_WS = 20
S_WAVE = 36; S_B = 37; S_CG = 38; S_I = 39; S_J = 40; S_WSTR = 41; S_WCOL = 42
S_T = 44
S_SX = 61; S_SW = 62; S_WSTEP = 63; S_DELTA = 64; S_CNT = 65; S_SLOT = 66
V_LANE = 1
QSCALE = math.log2(math.e) / math.sqrt(20.0)
def f32bits(x): return struct.unpack("<I", struct.pack("<f", x))[0]
OOB = 0x40000000
STAMP = False
def stamp(a, idx):
    if STAMP: a(f"s_memtime s[{70+2*idx}:{71+2*idx}]")
def stamp_store(a, n=12):
    if not STAMP: return
    a("s_waitcnt vmcnt(0)")
    stamp(a, n - 1)
    a("s_waitcnt lgkmcnt(0)")
    a("s_mov_b64 exec, -1")
    a(f"s_lshl_b32 s{S_T}, s2, 4")
    a(f"s_add_u32 s{S_T}, s{S_T}, s{S_WAVE}")
    a(f"s_lshl_b32 s{S_T}, s{S_T}, 6")
    a(f"v_mov_b32 v2, 0")
    for i in range(n):
        a(f"v_mov_b32 v3, s{70+2*i}")
        a(f"buffer_store_dword v3, v2, s[96:99], s{S_T} offen offset:{4*i}")

STF = ' sc1'
ROT = 1
CPF = 0
PACK0 = 3
XMAP = 0
S_KST = 69
NDMA = 9
def loader(a):
    VX, VW = 20, 24
    L = V_LANE
    a(f"s_sub_u32 s{S_J}, s{S_WAVE}, 4")
    if ROT == 0: a(f"s_mov_b32 s{S_KST}, 0")
    else:
        if ROT == 1: a(f"s_mov_b32 s{S_KST}, s{S_CG}")
        elif ROT == 2: a(f"s_add_u32 s{S_KST}, s{S_CG}, s{S_B}")
        elif ROT == 3: a(f"s_mul_i32 s{S_KST}, s{S_CG}, 3")
        elif ROT == 4: a(f"s_mov_b32 s{S_KST}, s{S_B}")
        a(f"s_mul_i32 s{S_T}, s{S_KST}, 205")
        a(f"s_lshr_b32 s{S_T}, s{S_T}, 11")
        a(f"s_mul_i32 s{S_T}, s{S_T}, 10")
        a(f"s_sub_u32 s{S_KST}, s{S_KST}, s{S_T}")
    a(f"v_lshrrev_b32 v2, 3, v{L}")
    a(f"v_and_b32 v3, 7, v{L}")
    a(f"v_lshrrev_b32 v4, 4, v{L}")
    a(f"v_xor_b32 v3, v3, v4")
    a(f"s_lshl_b32 s{S_T}, s{S_B}, 6")
    a(f"s_and_b32 s{S_T+1}, s{S_J}, 1")
    a(f"s_lshl_b32 s{S_T+1}, s{S_T+1}, 5")
    a(f"s_add_u32 s{S_T}, s{S_T}, s{S_T+1}")
    a(f"v_add_u32 v5, s{S_T}, v2")
    a(f"s_cmp_ge_u32 s{S_J}, 2")
    a(f"s_movk_i32 s{S_T+2}, 1280")
    a(f"s_cselect_b32 s{S_T+2}, {(-1280) & 0xffffffff}, s{S_T+2}")
    a(f"s_cselect_b32 s{S_T+3}, {2048*1280}, 0")
    a(f"v_mul_lo_u32 v6, v5, s{S_T+2}")
    a(f"v_add_u32 v6, s{S_T+3}, v6")
    a(f"s_lshl_b32 s{S_T+2}, s{S_T+2}, 3")
    a(f"v_lshl_add_u32 v{VX}, v3, 4, v6")
    a(f"v_xor_b32 v3, 4, v3")
    a(f"v_add_u32 v6, s{S_T+2}, v6")
    a(f"v_lshl_add_u32 v{VX+1}, v3, 4, v6")
    a(f"s_lshl_b32 s{S_T+2}, s{S_T+2}, 1")
    a(f"v_add_u32 v{VX+2}, s{S_T+2}, v{VX}")
    a(f"v_add_u32 v{VX+3}, s{S_T+2}, v{VX+1}")
    a(f"v_subrev_u32 v7, {1024*1280}, v{VX}")
    a(f"v_cmp_le_u32 vcc, {2048*1280}, v{VX}")
    a(f"s_lshl_b32 s{S_T+4}, s{S_J}, 12")
    a(f"s_mul_i32 s{S_T+5}, s{S_J}, 5120")
    a(f"v_cndmask_b32 v{VX}, v{VX}, v7, vcc")
    a(f"s_add_u32 s{S_T+5}, s{S_T+5}, {WOFF}")
    def issue_x(stage):
        slot = (stage % NSLOT) * STAGE
        a(f"s_lshl_b32 s{S_SX}, s{S_KST}, 7")
        for t in range(4):
            a(f"s_add_u32 m0, s{S_T+4}, {slot + t*1024}")
            a("s_nop 0")
            a(f"buffer_load_dwordx4 v{VX+t}, {sr(SRD_X,4)}, s{S_SX} offen lds")
    def issue_w(stage):
        slot = (stage % NSLOT) * STAGE
        a(f"s_mul_i32 s{S_SW}, s{S_WSTEP}, s{S_KST}")
        for t in range(5):
            a(f"s_add_u32 m0, s{S_T+5}, {slot + t*1024}")
            a("s_nop 0")
            a(f"buffer_load_dwordx4 v{VW+t}, {sr(SRD_W,4)}, s{S_SW} offen lds")
        a(f"s_add_u32 s{S_KST}, s{S_KST}, 1")
        a(f"s_cmp_eq_u32 s{S_KST}, {NST}")
        a(f"s_cselect_b32 s{S_KST}, 0, s{S_KST}")
    stamp(a, 1)
    issue_x(0)
    a(f"s_mul_i32 s{S_T+6}, s{S_J}, 320")
    a(f"s_movk_i32 s{S_T+7}, 3277")
    for t in range(5):
        a(f"v_add_u32 v2, s{S_T+6}, v{L}")
        if t: a(f"v_add_u32 v2, {64*t}, v2")
        a(f"v_mul_u32_u24 v3, s{S_T+7}, v2")
        a(f"v_lshrrev_b32 v3, 16, v3")
        a(f"v_mul_u32_u24 v4, 20, v3")
        a(f"v_sub_u32 v4, v2, v4")
        a(f"v_bfe_u32 v5, v3, 3, 1")
        a(f"v_lshlrev_b32 v5, 1, v5")
        a(f"v_xor_b32 v4, v4, v5")
        a(f"v_mul_lo_u32 v6, v3, s{S_WSTR}")
        a(f"v_lshl_add_u32 v6, v4, 4, v6")
        a(f"v_add_u32 v{VW+t}, s{S_WCOL}, v6")
    issue_w(0)
    issue_x(1); issue_w(1)
    a(f"v_and_b32 v2, 15, v{L}")
    a(f"s_lshl_b32 s{S_T+6}, s{S_J}, 4")
    a(f"v_add_u32 v4, s{S_T+6}, v2")
    a(f"v_bfe_u32 v5, v4, 3, 1")
    a(f"v_mul_u32_u24 v30, 320, v4")
    a(f"v_lshl_add_u32 v30, v5, 5, v30")
    a(f"v_add_u32 v30, {WOFF}, v30")
    a(f"v_and_b32 v6, 1, v4")
    a(f"v_lshlrev_b32 v6, 15, v6")
    a(f"v_or_b32 v31, 0x3f80, v6")
    def patch(stage):
        lab = a.newlabel("nopatch")
        a(f"s_cmp_lg_u32 s{S_CG}, 14")
        a(f"s_cbranch_scc1 {lab}")
        a("s_mov_b64 exec, 0xffff")
        slot = (stage % NSLOT) * STAGE
        a(f"v_add_u32 v2, {slot}, v30")
        a(f"ds_write_b16 v2, v31")
        a("s_mov_b64 exec, -1")
        a("s_waitcnt lgkmcnt(0)")
        a.label(lab)
    stamp(a, 2)
    issued = 2
    ops = [0] * NDMA + [1] * NDMA
    for n in range(NST):
        last = max(i for i, t in enumerate(ops) if t == n)
        a(f"s_waitcnt vmcnt({len(ops) - 1 - last})")
        patch(n)
        if n in (0, 1, 2, 5, 9): stamp(a, {0:3, 1:4, 2:5, 5:6, 9:7}[n])
        a("s_barrier")
        k = 2 if n == 0 else 1
        for _ in range(k):
            if issued < NST:
                issue_x(issued); issue_w(issued); ops += [issued] * NDMA; issued += 1
        if n == 1: copy_setup(a)
        if n == 8 and CPF and not Cfg.MEGA:
            lab = a.newlabel("nopf")
            a(f"s_lshr_b32 s{S_T+15}, s2, 5")
            a(f"s_cmp_lg_u32 s{S_T+15}, s{S_J}")
            a(f"s_cbranch_scc1 {lab}")
            code_prefetch(a, "attn_dft2_kernel", CPF, 4, 80, V_LANE)
            a("s_waitcnt vmcnt(0)")
            a.label(lab)
        if n == PACK0 - 1: pack_setup(a)
        if PACK0 <= n < PACK0 + 4:
            pack_frag(a, n - PACK0); ops.append(-1)
    copy_out(a)

ACC = 88
FS = [16, 52]
V_XA = [2, 3]
V_WA = [4, 5]
VE = 8

def acc(a_, ct): return ACC + (a_ * 5 + ct) * 4

def frag_reads(ks, fs):
    r = []
    xs = []
    for a_ in range(4):
        rt_rel = (a_ & 1) + 4 * (a_ >> 1)
        xs.append(f"ds_read_b128 {vr(fs+4*a_,4)}, v{V_XA[ks]} offset:{rt_rel*2048}")
    ws = []
    for ct in range(5):
        for h2 in range(2):
            krow = 4 * h2 + 32 * ks
            ws.append(f"ds_read_b64_tr_b16 {vr(fs+16+4*ct+2*h2,2)}, v{V_WA[ct%2]} offset:{krow*320 + ct*32}")
    return ws[:2] + xs + ws[2:]

def mfmas(tr, fs):
    r = []
    for ct in range(5):
        for a_ in range(4):
            X = vr(fs + 4 * a_, 4); W = vr(fs + 16 + 4 * ct, 4)
            A, B = (W, X) if tr else (X, W)
            r.append(f"v_mfma_f32_16x16x32_bf16 {vr(acc(a_,ct),4)}, {A}, {B}, {vr(acc(a_,ct),4)}")
    return r

RPM = 1
def interleave(a, ms, rs):
    k = 0
    for m in ms:
        a(m)
        for _ in range(RPM):
            if k < len(rs):
                a(rs[k]); k += 1
    while k < len(rs):
        a(rs[k]); k += 1

L2PF = 1
PFF = ''
def l2_prefetch(a):
    L = V_LANE
    a(f"v_mul_u32_u24 v8, 86, v{L}")
    a(f"v_lshrrev_b32 v8, 8, v8")
    a(f"v_mul_u32_u24 v9, 3, v8")
    a(f"v_sub_u32 v9, v{L}, v9")
    a(f"s_and_b32 s{S_T}, s{S_B}, 7")
    a(f"s_mul_i32 s{S_T}, s{S_T}, 80")
    a(f"s_mul_i32 s{S_T+1}, s{S_WAVE}, 20")
    a(f"s_add_u32 s{S_T}, s{S_T}, s{S_T+1}")
    a(f"v_min_u32 v8, 19, v8")
    a(f"v_add_u32 v8, s{S_T}, v8")
    a(f"v_mul_lo_u32 v8, v8, s{S_WSTR}")
    a(f"v_lshl_add_u32 v8, v9, 7, v8")
    a(f"buffer_load_dword v168, v8, {sr(SRD_W,4)}, s{S_WCOL} offen{PFF}")
    a(f"s_and_b32 s{S_T}, s{S_CG}, 3")
    a(f"s_lshl_b32 s{S_T}, s{S_T}, 4")
    a(f"s_lshl_b32 s{S_T+1}, s{S_WAVE}, 2")
    a(f"s_add_u32 s{S_T}, s{S_T}, s{S_T+1}")
    a(f"s_lshl_b32 s{S_T+1}, s{S_B}, 6")
    a(f"s_add_u32 s{S_T}, s{S_T}, s{S_T+1}")
    a(f"v_bfe_u32 v8, v{L}, 3, 2")
    a(f"v_add_u32 v8, s{S_T}, v8")
    a(f"v_sub_u32 v9, 2047, v8")
    a(f"v_cmp_gt_u32 vcc, 32, v{L}")
    a(f"v_and_b32 v11, 7, v{L}")
    a("s_nop 0")
    a(f"v_cndmask_b32 v8, v9, v8, vcc")
    a(f"v_mul_u32_u24 v8, 1280, v8")
    a(f"v_lshl_add_u32 v8, v11, 7, v8")
    a(f"buffer_load_dword v169, v8, {sr(SRD_X,4)}, 0 offen{PFF}")
    a(f"buffer_load_dword v170, v8, {sr(SRD_X,4)}, 0 offen offset:256{PFF}")

def compute_setup(a):
    L = V_LANE
    if L2PF == 1: l2_prefetch(a)
    t = VE
    a(f"v_and_b32 v{t}, 15, v{L}")
    a(f"v_lshrrev_b32 v{t+1}, 4, v{L}")
    a(f"v_lshrrev_b32 v{t+2}, 1, v{t}")
    a(f"v_xor_b32 v{t+3}, v{t+1}, v{t+2}")
    a(f"s_lshl_b32 s{S_T}, s{S_I}, 12")
    a(f"v_lshlrev_b32 v{t+4}, 7, v{t}")
    a(f"v_add_u32 v{t+4}, s{S_T}, v{t+4}")
    a(f"v_lshl_add_u32 v{V_XA[0]}, v{t+3}, 4, v{t+4}")
    a(f"v_xor_b32 v{V_XA[1]}, 64, v{V_XA[0]}")
    a(f"v_lshrrev_b32 v{t+2}, 2, v{t}")
    a(f"v_and_b32 v{t+3}, 3, v{t}")
    a(f"v_lshl_add_u32 v{t+4}, v{t+1}, 3, v{t+2}")
    a(f"v_mul_u32_u24 v{t+4}, 320, v{t+4}")
    a(f"v_lshl_add_u32 v{t+4}, v{t+3}, 3, v{t+4}")
    a(f"s_mul_i32 s{S_T}, s{S_J}, 160")
    a(f"s_add_u32 s{S_T}, s{S_T}, {WOFF}")
    a(f"v_add_u32 v{t+4}, s{S_T}, v{t+4}")
    a(f"v_and_b32 v{t+5}, 1, v{t+1}")
    a(f"v_lshlrev_b32 v{t+5}, 5, v{t+5}")
    a(f"v_add_u32 v{t+6}, v{t+4}, v{t+5}")
    a(f"v_sub_u32 v{t+7}, v{t+4}, v{t+5}")
    a(f"s_cmp_eq_u32 s{S_J}, 0")
    a(f"s_cselect_b64 vcc, -1, 0")
    a(f"v_cndmask_b32 v{V_WA[0]}, v{t+7}, v{t+6}, vcc")
    a(f"v_cndmask_b32 v{V_WA[1]}, v{t+6}, v{t+7}, vcc")
    for r in range(80):
        a(f"v_mov_b32 v{ACC+r}, 0")
    for r in range(12):
        a(f"v_mov_b32 v{EA+r}, 0")
    a(f"s_mov_b32 s{S_CNT}, 0")
    a(f"s_mov_b32 s{S_SLOT}, 0")

def pack_setup(a):
    L = V_LANE
    a(f"s_lshl_b32 s{S_T+8}, s2, 2")
    a(f"s_add_u32 s{S_T+8}, s{S_T+8}, s{S_J}")
    a(f"s_cmp_ge_u32 s{S_T+8}, 272")
    a(f"s_cselect_b32 s{S_T+12}, {f32bits(0.25)}, 0")
    a(f"s_cselect_b32 s{S_T+9}, 272, 0")
    a(f"s_sub_u32 s{S_T+9}, s{S_T+8}, s{S_T+9}")
    a(f"s_and_b32 s{S_T+10}, s{S_T+9}, 15")
    a(f"s_lshr_b32 s{S_T+9}, s{S_T+9}, 4")
    a(f"s_lshl_b32 s{S_T+9}, s{S_T+9}, 5")
    a(f"s_lshl_b32 s{S_T+10}, s{S_T+10}, 6")
    a(f"v_and_b32 v60, 31, v{L}")
    a(f"v_add_u32 v60, s{S_T+9}, v60")
    a(f"v_lshrrev_b32 v61, 5, v{L}")
    a(f"v_lshl_add_u32 v61, v61, 4, s{S_T+10}")
    a(f"v_mul_u32_u24 v62, v60, v61")
    a(f"v_and_b32 v62, 2047, v62")
    a(f"v_cvt_f32_u32 v62, v62")
    a(f"v_cvt_f32_u32 v63, v60")
    a(f"s_mov_b32 s{S_T+11}, {f32bits(1.0/2048)}")
    a(f"v_mul_f32 v62, s{S_T+11}, v62")
    a(f"v_mul_f32 v63, s{S_T+11}, v63")
    a(f"v_add_f32 v62, s{S_T+12}, v62")
    a(f"v_add_f32 v64, v63, v63")
    a(f"s_lshl_b32 s{S_T+14}, s{S_T+8}, 12")
    a(f"s_add_u32 s{S_T+14}, s{S_T+14}, {WS_CP}")
    a(f"s_cmp_lt_u32 s{S_T+8}, 544")
    a(f"s_cselect_b32 s{S_T+14}, s{S_T+14}, {OOB}")
    a(f"v_lshlrev_b32 v65, 4, v{L}")

def pack_frag(a, q):
    jj, p = q // 2, q % 2
    off = 32 * jj + p
    if off == 0: a("v_mov_b32 v74, v62")
    elif off == 1: a("v_add_f32 v74, v62, v63")
    else:
        a(f"v_mov_b32 v75, {f32bits(float(off))}")
        a("v_fma_f32 v74, v63, v75, v62")
    for m in range(8):
        a(f"v_fract_f32 v74, v74")
        a(f"v_cos_f32 v{66+m}, v74")
        a(f"v_add_f32 v74, v74, v64")
    for qq in range(4):
        a(f"v_cvt_pk_bf16_f32 v{40+4*q+qq}, v{66+2*qq}, v{67+2*qq}")
    a(f"buffer_store_dwordx4 {vr(40+4*q,4)}, v65, {sr(SRD_WS,4)}, s{S_T+14} offen offset:{q*1024}{STF}")

def compute_loop(a, tr):
    regs = V_XA + V_WA
    lab = f"L_k1_loop{int(tr)}"
    a(f"s_mul_i32 s{S_T}, s{S_WAVE}, 3072")
    a(f"s_add_u32 s{S_T}, s{S_T}, {NSLOT*STAGE}")
    a(f"v_lshl_add_u32 v6, v{V_LANE}, 2, s{S_T}")
    for r in range(12): a(f"ds_write_b32 v6, v{EA+r} offset:{256*r}")
    if L2PF == 2: l2_prefetch(a)
    a("s_waitcnt lgkmcnt(0)")
    stamp(a, 1)
    a("s_barrier")
    if L2PF == 3: l2_prefetch(a)
    stamp(a, 2)
    for r in frag_reads(0, FS[0]): a(r)
    a.label(lab)
    a("s_waitcnt lgkmcnt(0)")
    interleave(a, mfmas(tr, FS[0]), frag_reads(1, FS[1]))
    a(f"s_add_u32 s{S_CNT}, s{S_CNT}, 1")
    a(f"s_cmp_eq_u32 s{S_CNT}, {NST}")
    a(f"s_cbranch_scc1 {lab}_last")
    a(f"s_add_u32 s{S_SLOT}, s{S_SLOT}, 1")
    a(f"s_mov_b32 s{S_DELTA}, {STAGE}")
    a(f"s_cmp_eq_u32 s{S_SLOT}, {NSLOT}")
    a(f"s_cselect_b32 s{S_DELTA}, {(-(NSLOT-1)*STAGE) & 0xffffffff}, s{S_DELTA}")
    a(f"s_cselect_b32 s{S_SLOT}, 0, s{S_SLOT}")
    for r in regs:
        a(f"v_add_u32 v{r}, s{S_DELTA}, v{r}")
    a("s_waitcnt lgkmcnt(0)")
    a("s_barrier")
    interleave(a, mfmas(tr, FS[1]), frag_reads(0, FS[0]))
    a(f"s_branch {lab}")
    a.label(f"{lab}_last")
    a("s_waitcnt lgkmcnt(0)")
    ms = mfmas(tr, FS[1])
    for m in ms: a(m)
    for r in range(12): a(f"ds_read_b32 v{EA2+r}, v6 offset:{256*r}")
    a("s_waitcnt lgkmcnt(0)")
    stamp(a, 3)

IMG = 2 * STAGE
S_GB = 67
S_NP = 68
EA2 = 72
EA = 60

def pre_qk(a):
    L = V_LANE; t = 8
    a(f"v_and_b32 v{t}, 15, v{L}")
    a(f"v_lshrrev_b32 v{t+1}, 4, v{L}")
    a(f"s_lshl_b32 s{S_T+2}, s{S_I}, 10")
    a(f"s_lshl_b32 s{S_T+3}, s{S_I}, 3")
    a(f"s_add_u32 s{S_T+3}, s{S_T+3}, 4096")
    a(f"s_mul_i32 s{S_T+6}, s{S_J}, 20")
    a(f"v_lshlrev_b32 v{t+10}, 4, v{t}")
    a(f"v_add_u32 v{t+10}, {IMG}, v{t+10}")
    a(f"v_add_u32 v{t+1}, s{S_T+6}, v{t+1}")
    a(f"v_mov_b32 v{t+7}, s{S_T+3}")
    a(f"v_mov_b32 v{t+9}, 512")
    for ct in range(5):
        A0, A1 = EA + 2 * ct, EA + 2 * ct + 1
        if ct: a(f"v_add_u32 v{t+1}, 4, v{t+1}")
        a(f"v_mul_u32_u24 v{t+3}, 205, v{t+1}")
        a(f"v_lshrrev_b32 v{t+3}, 10, v{t+3}")
        a(f"v_mul_u32_u24 v{t+4}, 5, v{t+3}")
        a(f"v_sub_u32 v{t+6}, v{t+1}, v{t+4}")
        a(f"v_mul_u32_u24 v{t+3}, 5120, v{t+3}")
        a(f"v_add_u32 v{t+3}, v{t+3}, v{t+10}")
        a(f"v_lshrrev_b32 v{t+4}, 1, v{t+6}")
        a(f"v_lshlrev_b32 v{t+4}, 9, v{t+4}")
        a(f"v_and_b32 v{t+5}, 1, v{t+6}")
        a(f"v_lshl_add_u32 v{t+4}, v{t+5}, 3, v{t+4}")
        a(f"v_cmp_eq_u32 vcc, 4, v{t+6}")
        a(f"v_add_u32 v{t+4}, s{S_T+2}, v{t+4}")
        a(f"v_mov_b32 v{t+8}, 2048")
        a(f"v_cndmask_b32 v{t+4}, v{t+4}, v{t+7}, vcc")
        a(f"v_cndmask_b32 v{t+8}, v{t+8}, v{t+9}, vcc")
        a(f"v_add_u32 v{A0}, v{t+3}, v{t+4}")
        a(f"v_add_u32 v{A1}, v{A0}, v{t+8}")

def pre_v(a):
    L = V_LANE; t = 8
    a(f"v_and_b32 v{t}, 15, v{L}")
    a(f"v_lshrrev_b32 v{t+1}, 4, v{L}")
    a(f"s_mul_i32 s{S_T+1}, s{S_I}, 1280")
    a(f"s_add_u32 s{S_T+1}, s{S_T+1}, {IMG}")
    a(f"v_and_b32 v{t+2}, 1, v{t+1}")
    a(f"v_mul_u32_u24 v{t+2}, 320, v{t+2}")
    a(f"v_lshrrev_b32 v{t+3}, 1, v{t+1}")
    a(f"v_lshl_add_u32 v{t+2}, v{t+3}, 3, v{t+2}")
    a(f"v_add_u32 v{t+2}, s{S_T+1}, v{t+2}")
    a(f"s_mul_i32 s{S_T+6}, s{S_J}, 80")
    a(f"v_add_u32 v{t}, s{S_T+6}, v{t}")
    a(f"s_movk_i32 s{S_T+7}, 3277")
    for ct in range(5):
        if ct: a(f"v_add_u32 v{t}, 16, v{t}")
        a(f"v_mul_u32_u24 v{t+3}, s{S_T+7}, v{t}")
        a(f"v_lshrrev_b32 v{t+3}, 16, v{t+3}")
        a(f"v_mul_u32_u24 v{t+4}, 20, v{t+3}")
        a(f"v_sub_u32 v{t+4}, v{t}, v{t+4}")
        a(f"v_mul_u32_u24 v{t+3}, 5120, v{t+3}")
        a(f"v_lshl_add_u32 v{t+4}, v{t+4}, 4, v{t+2}")
        a(f"v_add_u32 v{EA+ct}, v{t+4}, v{t+3}")

def pre_d(a):
    L = V_LANE; t = 8
    a(f"v_and_b32 v{t}, 15, v{L}")
    a(f"v_lshrrev_b32 v{t+1}, 4, v{L}")
    a(f"s_lshl_b32 s{S_T+1}, s{S_I}, 11")
    a(f"s_add_u32 s{S_T+1}, s{S_T+1}, {IMG}")
    a(f"v_lshl_add_u32 v{t+2}, v{t+1}, 2, s{S_T+1}")
    a(f"s_mul_i32 s{S_T+6}, s{S_J}, 80")
    a(f"v_add_u32 v{t}, s{S_T+6}, v{t}")
    a(f"s_cmp_lt_u32 s{S_CG}, 14")
    a(f"s_mov_b32 s{S_T+3}, {WS_BOT}")
    a(f"s_cselect_b32 s{S_T+3}, {WS_AET}, s{S_T+3}")
    a(f"s_cselect_b32 s{S_T+5}, 1.0, -1.0")
    a(f"s_and_b32 s{S_T+2}, s{S_CG}, 1")
    a(f"s_mul_i32 s{S_T+2}, s{S_T+2}, {5*AEP_ET}")
    a(f"s_add_u32 s{S_T+3}, s{S_T+3}, s{S_T+2}")
    a(f"s_add_u32 s{S_T+3}, s{S_T+3}, {64*1024}")
    a(f"s_mov_b32 s{S_T+4}, {AEP_ET}")
    for ct in range(5):
        if ct: a(f"v_add_u32 v{t}, 16, v{t}")
        a(f"v_lshrrev_b32 v{t+3}, 5, v{t}")
        a(f"v_and_b32 v{t+4}, 31, v{t}")
        a(f"v_lshlrev_b32 v{t+4}, 4, v{t+4}")
        a(f"v_lshl_add_u32 v{t+5}, v{t+3}, 12, v{t+4}")
        a(f"v_add_u32 v{EA+ct}, v{t+5}, v{t+2}")
        a(f"v_mul_lo_u32 v{t+5}, v{t+3}, s{S_T+4}")
        a(f"v_add3_u32 v{EA+5+ct}, v{t+5}, v{t+4}, s{S_T+3}")
    a(f"v_mov_b32 v{EA+10}, s{S_T+5}")
    a(f"v_mov_b32 v{EA+11}, s{S_T+5}")

def copy_setup(a):
    lab_d = a.newlabel("cpd"); lab_e = a.newlabel("cpe")
    a(f"s_cmp_ge_u32 s{S_CG}, 12")
    a(f"s_cbranch_scc1 {lab_d}")
    a(f"s_and_b32 s{S_T}, s{S_CG}, 3")
    a(f"s_lshl_b32 s{S_T}, s{S_T}, 3")
    a(f"s_add_u32 s{S_T}, s{S_T}, s{S_WAVE}")
    a(f"s_mul_i32 s{S_T}, s{S_T}, {Q_HEAD_BYTES}")
    a(f"s_mul_i32 s{S_T+1}, s{S_B}, 5120")
    a(f"s_add_u32 s{S_GB}, s{S_T}, s{S_T+1}")
    a(f"s_mov_b32 s{S_NP}, 5")
    a(f"s_cmp_lt_u32 s{S_CG}, 4")
    a(f"s_cbranch_scc1 {lab_e}")
    a(f"s_lshl_b32 s{S_GB}, s{S_GB}, 1")
    a(f"s_add_u32 s{S_GB}, s{S_GB}, {WS_KV}")
    a(f"s_cmp_lt_u32 s{S_CG}, 8")
    a(f"s_cbranch_scc1 {lab_e}")
    a(f"s_add_u32 s{S_GB}, s{S_GB}, 5120")
    a(f"s_branch {lab_e}")
    a.label(lab_d)
    a(f"s_cmp_lt_u32 s{S_CG}, 14")
    a(f"s_mov_b32 s{S_T+3}, {WS_BOT}")
    a(f"s_cselect_b32 s{S_T+3}, {WS_AET}, s{S_T+3}")
    a(f"s_and_b32 s{S_T}, s{S_CG}, 1")
    a(f"s_mul_i32 s{S_T}, s{S_T}, 5")
    a(f"s_add_u32 s{S_T}, s{S_T}, s{S_WAVE}")
    a(f"s_mul_i32 s{S_T}, s{S_T}, {AEP_ET}")
    a(f"s_lshl_b32 s{S_T+1}, s{S_B}, 12")
    a(f"s_add_u32 s{S_GB}, s{S_T}, s{S_T+1}")
    a(f"s_add_u32 s{S_GB}, s{S_GB}, s{S_T+3}")
    a(f"s_cmp_lt_u32 s{S_WAVE}, 5")
    a(f"s_cselect_b32 s{S_NP}, 4, 0")
    a.label(lab_e)

def copy_out(a):
    a.label("L_k1_copy")
    a("s_waitcnt lgkmcnt(0)")
    a("s_barrier")
    a(f"s_cmp_eq_u32 s{S_NP}, 0")
    a("s_cbranch_scc1 L_k1_done")
    a(f"s_mul_i32 s{S_T}, s{S_WAVE}, s{S_NP}")
    a(f"s_lshl_b32 s{S_T}, s{S_T}, 10")
    a(f"s_add_u32 s{S_T}, s{S_T}, {IMG}")
    a(f"v_lshlrev_b32 v2, 4, v{V_LANE}")
    a(f"v_add_u32 v3, s{S_T}, v2")
    for p in range(5):
        a(f"ds_read_b128 {vr(4+4*p,4)}, v3 offset:{p*1024}")
    for p in range(4):
        a(f"s_waitcnt lgkmcnt({4-p})")
        a(f"buffer_store_dwordx4 {vr(4+4*p,4)}, v2, {sr(SRD_WS,4)}, s{S_GB} offen offset:{p*1024}{STF}")
    a(f"s_cmp_eq_u32 s{S_NP}, 4")
    a("s_cbranch_scc1 L_k1_done")
    a(f"s_add_u32 s{S_GB}, s{S_GB}, 4096")
    a("s_waitcnt lgkmcnt(0)")
    a(f"buffer_store_dwordx4 {vr(20,4)}, v2, {sr(SRD_WS,4)}, s{S_GB} offen{STF}")
    a.label("L_k1_done")
    stamp(a, 4)
    stamp_store(a)
    endp(a, "L_A_done")

def epilogue_qk(a):
    lab = a.newlabel("noscale")
    a(f"s_cmp_ge_u32 s{S_CG}, 4")
    a(f"s_mov_b32 s{S_T+4}, {f32bits(QSCALE)}")
    a("s_nop 5")
    a(f"s_cbranch_scc1 {lab}")
    for r in range(80): a(f"v_mul_f32 v{ACC+r}, s{S_T+4}, v{ACC+r}")
    a.label(lab)
    pk = 20
    for ct in range(5):
        for a_ in range(4):
            c = acc(a_, ct)
            p = pk + 2 * (ct * 4 + a_)
            a(f"v_cvt_pk_bf16_f32 v{p}, v{c}, v{c+1}")
            a(f"v_cvt_pk_bf16_f32 v{p+1}, v{c+2}, v{c+3}")
            a(f"ds_write_b64 v{EA2+2*ct+(a_>>1)}, {vr(p,2)} offset:{(a_&1)*256}")
    a("s_branch L_k1_copy")

def epilogue_v(a):
    a("s_nop 7")
    pk = 20
    for ct in range(5):
        for a_ in range(4):
            c = acc(a_, ct)
            p = pk + 2 * (ct * 4 + a_)
            a(f"v_cvt_pk_bf16_f32 v{p}, v{c}, v{c+1}")
            a(f"v_cvt_pk_bf16_f32 v{p+1}, v{c+2}, v{c+3}")
            a(f"ds_write_b64 v{EA2+ct}, {vr(p,2)} offset:{(a_>>1)*2560 + (a_&1)*640}")
    a("s_branch L_k1_copy")

def epilogue_d(a):
    spec = a.newlabel("spec"); nospec = a.newlabel("nospec")
    a(f"s_lshl_b32 s{S_T+6}, s{S_J}, 4")
    a(f"s_add_u32 s{S_T+6}, s{S_T+6}, s{S_CG}")
    a(f"v_and_b32 v2, 15, v{V_LANE}")
    a(f"s_cmp_lg_u32 s{S_T+6}, 14")
    a(f"s_cbranch_scc1 {nospec}")
    a(f"v_cmp_eq_u32 vcc, 0, v2")
    a(f"v_mov_b32 v3, {WS_AET + 10*AEP_ET + 64*1024}")
    a("s_nop 0")
    a(f"v_cndmask_b32 v{EA2+5}, v{EA2+5}, v3, vcc")
    a(f"v_cndmask_b32 v{EA2+10}, v{EA2+10}, 1.0, vcc")
    a.label(nospec)
    lab = a.newlabel("nos0")
    a(f"s_or_b32 s{S_T+7}, s{S_B}, s{S_I}")
    a(f"s_cmp_lg_u32 s{S_T+7}, 0")
    a("s_nop 3")
    a(f"s_cbranch_scc1 {lab}")
    a("s_mov_b64 exec, 0xffff")
    for k in range(1, 4): a(f"v_mov_b32 v{8+k}, 0")
    for k in range(4): a(f"v_mov_b32 v{12+k}, 0")
    for ct in range(5):
        cm = acc(2, ct)
        a(f"v_cvt_pk_bf16_f32 v8, v{cm}, 0")
        a(f"v_mov_b32 v{cm}, 0")
        a(f"buffer_store_dwordx4 v[8:11], v{EA2+5+ct}, {sr(SRD_WS,4)}, 0 offen{STF}")
        a(f"buffer_store_dwordx4 v[12:15], v{EA2+5+ct}, {sr(SRD_WS,4)}, 0 offen offset:512{STF}")
        a("s_nop 1")
    a("s_mov_b64 exec, -1")
    a.label(lab)
    pk = 20
    for ct in range(5):
        for a_ in range(2):
            cs, cm = acc(a_, ct), acc(a_ + 2, ct)
            for r in range(4):
                a(f"v_fma_f32 v{cs+r}, v{cm+r}, v{EA2+10 if ct == 0 else EA2+11}, v{cs+r}")
            p = pk + 2 * (ct * 2 + a_)
            a(f"v_cvt_pk_bf16_f32 v{p}, v{cs}, v{cs+2}")
            a(f"v_cvt_pk_bf16_f32 v{p+1}, v{cs+1}, v{cs+3}")
            a(f"ds_write_b32 v{EA2+ct}, v{p} offset:{a_*512}")
            a(f"ds_write_b32 v{EA2+ct}, v{p+1} offset:{a_*512+1024}")
    a(f"s_cmp_lg_u32 s{S_T+6}, 14")
    a("s_cbranch_scc1 L_k1_copy")
    a(f"v_lshrrev_b32 v3, 4, v{V_LANE}")
    a(f"v_lshlrev_b32 v4, 2, v3")
    a(f"s_lshl_b32 s{S_T}, s{S_B}, 12")
    a(f"s_lshl_b32 s{S_T+1}, s{S_I}, 11")
    a(f"s_add_u32 s{S_T}, s{S_T}, s{S_T+1}")
    a(f"s_add_u32 s{S_T}, s{S_T}, {WS_AET + 10*AEP_ET}")
    a(f"v_cmp_eq_u32 vcc, 0, v2")
    a("s_and_saveexec_b64 s[58:59], vcc")
    for a_ in range(2):
        a(f"buffer_store_dword v{pk+2*a_}, v4, {sr(SRD_WS,4)}, s{S_T} offen offset:{a_*512}{STF}")
        a(f"buffer_store_dword v{pk+2*a_+1}, v4, {sr(SRD_WS,4)}, s{S_T} offen offset:{a_*512+1024}{STF}")
    a("s_mov_b64 exec, -1")
    a("s_branch L_k1_copy")

def gen_k1(a, name, side=None):
    kernel_header(a, name)
    a("s_cmp_ge_u32 s2, 256")
    a("s_cbranch_scc1 L_k1_exit")
    a(f"s_load_dwordx4 {sr(S_X,4)}, s[0:1], 0")
    a(f"s_load_dwordx4 {sr(S_DRE,4)}, s[0:1], 48")
    a(f"s_load_dwordx2 {sr(S_WS,2)}, s[0:1], 88")
    a(f"s_load_dwordx4 s[4:7], s[0:1], 32")
    stamp(a, 0)
    a(f"v_and_b32 v{V_LANE}, 63, v0")
    a(f"v_lshrrev_b32 v2, 6, v0")
    a("s_nop 0")
    a(f"v_readfirstlane_b32 s{S_WAVE}, v2")
    if XMAP == 0:
        a(f"s_and_b32 s{S_T}, s2, 1")
        a(f"s_lshl_b32 s{S_T}, s{S_T}, 3")
        a(f"s_bfe_u32 s{S_T+1}, s2, 0x30003")
        a(f"s_add_u32 s{S_B}, s{S_T}, s{S_T+1}")
        a(f"s_bfe_u32 s{S_T}, s2, 0x20001")
        a(f"s_lshl_b32 s{S_T}, s{S_T}, 2")
        a(f"s_lshr_b32 s{S_T+1}, s2, 6")
        a(f"s_add_u32 s{S_CG}, s{S_T}, s{S_T+1}")
    elif XMAP == 1:
        a(f"s_and_b32 s{S_T}, s2, 7")
        a(f"s_lshl_b32 s{S_T}, s{S_T}, 1")
        a(f"s_bfe_u32 s{S_T+1}, s2, 0x10003")
        a(f"s_add_u32 s{S_B}, s{S_T}, s{S_T+1}")
        a(f"s_lshr_b32 s{S_CG}, s2, 4")
    elif XMAP == 2:
        a(f"s_and_b32 s{S_T}, s2, 7")
        a(f"s_lshl_b32 s{S_T}, s{S_T}, 1")
        a(f"s_bfe_u32 s{S_T+1}, s2, 0x10003")
        a(f"s_add_u32 s{S_CG}, s{S_T}, s{S_T+1}")
        a(f"s_lshr_b32 s{S_B}, s2, 4")
    elif XMAP == 3:
        a(f"s_and_b32 s{S_T}, s2, 3")
        a(f"s_lshl_b32 s{S_T}, s{S_T}, 2")
        a(f"s_bfe_u32 s{S_T+1}, s2, 0x20003")
        a(f"s_add_u32 s{S_B}, s{S_T}, s{S_T+1}")
        a(f"s_bfe_u32 s{S_T}, s2, 0x10002")
        a(f"s_lshl_b32 s{S_T}, s{S_T}, 3")
        a(f"s_lshr_b32 s{S_T+1}, s2, 5")
        a(f"s_add_u32 s{S_CG}, s{S_T}, s{S_T+1}")
    a(f"s_bfe_u32 s{S_I}, s{S_WAVE}, 0x10001")
    a(f"s_and_b32 s{S_J}, s{S_WAVE}, 1")
    a(f"s_and_b32 s{S_T}, s{S_CG}, 1")
    a(f"s_cmp_lt_u32 s{S_CG}, 12")
    a(f"s_cselect_b32 s{S_T}, s{S_CG}, s{S_T}")
    a(f"s_cselect_b32 s{S_WSTR}, 3840, 64")
    a(f"s_mul_i32 s{S_WCOL}, s{S_T}, 320")
    a(f"s_cselect_b32 s{S_T+1}, 0, 1216")
    a(f"s_add_u32 s{S_WSTR}, s{S_WSTR}, s{S_T+1}")
    a(f"s_lshl_b32 s{S_WSTEP}, s{S_WSTR}, 6")
    a(f"s_mul_i32 s{S_T+2}, s{S_WSTR}, 640")
    a("s_waitcnt lgkmcnt(0)")
    make_srd(a, SRD_X, S_X, S_X + 1, 0, S * D * 2)
    a(f"s_cmp_lt_u32 s{S_CG}, 14")
    a(f"s_cselect_b32 s{SRD_W}, s{S_DRE}, s{S_DIM}")
    a(f"s_cselect_b32 s{SRD_W+1}, s{S_DRE+1}, s{S_DIM+1}")
    a(f"s_cmp_lt_u32 s{S_CG}, 12")
    a(f"s_cselect_b32 s{SRD_W}, s{S_W}, s{SRD_W}")
    a(f"s_cselect_b32 s{SRD_W+1}, s{S_W+1}, s{SRD_W+1}")
    a(f"s_mov_b32 s{SRD_W+2}, s{S_T+2}")
    a(f"s_mov_b32 s{SRD_W+3}, 0x00020000")
    make_srd(a, SRD_WS, S_WS, S_WS + 1, 0, WS_END)
    a(f"s_cmp_lt_u32 s2, 128")
    a(f"s_cselect_b32 s{SRD_SQ}, s4, s6")
    a(f"s_cselect_b32 s{SRD_SQ+1}, s5, s7")
    a(f"s_mov_b32 s{SRD_SQ+2}, {S*S*2}")
    a(f"s_mov_b32 s{SRD_SQ+3}, 0x00020000")
    if STAMP: make_srd(a, 96, S_WS, S_WS + 1, 0x2000000, 0x100000)
    if side:
        a(f"s_cmp_ge_u32 s{S_WAVE}, 8")
        a("s_cbranch_scc1 L_k1_side")
    a(f"s_cmp_ge_u32 s{S_WAVE}, 4")
    a("s_cbranch_scc1 L_k1_loader")
    compute_setup(a)
    copy_setup(a)
    a(f"s_cmp_ge_u32 s{S_CG}, 8")
    a("s_cbranch_scc1 L_k1_c1")
    pre_qk(a)
    compute_loop(a, True)
    epilogue_qk(a)
    a.label("L_k1_c1")
    a(f"s_cmp_ge_u32 s{S_CG}, 12")
    a("s_cbranch_scc1 L_k1_c1d")
    pre_v(a)
    a("s_branch L_k1_c1go")
    a.label("L_k1_c1d")
    pre_d(a)
    a.label("L_k1_c1go")
    compute_loop(a, False)
    a(f"s_cmp_ge_u32 s{S_CG}, 12")
    a("s_cbranch_scc1 L_k1_c2")
    epilogue_v(a)
    a.label("L_k1_c2")
    epilogue_d(a)
    a.label("L_k1_loader")
    loader(a)
    a.label("L_k1_exit")
    a("s_endpgm")
    if side:
        a.label("L_k1_side")
        side(a)
```

```python
from common import *
S_WS = 4; S_OUT = 6
SRD_O = 8; SRD_W = 12; SRD_Y = 16; SRD_G = 20; SRD_OUT = 24
S_WAVE = 36; S_W4 = 39; S_RB = 37; S_CB = 38; S_T = 44
V_LANE = 1
ACC = 16
OB = 36
OB = 32
WB = 112
YR = 152
YR2 = 164
NVGPR = 188
ACC = 12
STAMP = False
K3PF = 0
def stamp(a, idx):
    if STAMP: a(f"s_memtime s[{70+2*idx}:{71+2*idx}]")
def stamp_store(a, n=8):
    if not STAMP: return
    a("s_waitcnt vmcnt(0)")
    stamp(a, n - 1)
    a("s_waitcnt lgkmcnt(0)")
    a(f"s_lshl_b32 s{S_T}, s2, 4")
    a(f"s_add_u32 s{S_T}, s{S_T}, s{S_WAVE}")
    a(f"s_lshl_b32 s{S_T}, s{S_T}, 6")
    a(f"v_mov_b32 v2, 0")
    for i in range(n):
        a(f"v_mov_b32 v3, s{70+2*i}")
        a(f"buffer_store_dword v3, v2, s[96:99], s{S_T} offen offset:{4*i}")

def gen_k3(a, name, sync=None):
    L = V_LANE
    if not Cfg.MEGA:
        kernel_header(a, name)
        a("s_cmp_ge_u32 s2, 256")
        a("s_cbranch_scc1 L_k3_exit")
    a(f"s_load_dwordx2 {sr(S_WS,2)}, s[0:1], 88")
    a(f"s_load_dwordx2 {sr(S_OUT,2)}, s[0:1], 72")
    stamp(a, 0)
    a(f"v_and_b32 v{L}, 63, v0")
    a(f"v_lshrrev_b32 v2, 6, v0")
    a("s_nop 0")
    a(f"v_readfirstlane_b32 s{S_WAVE}, v2")
    a(f"s_and_b32 s{S_W4}, s{S_WAVE}, 3")
    a(f"s_and_b32 s{S_T}, s2, 3")
    a(f"s_lshl_b32 s{S_T}, s{S_T}, 3")
    a(f"s_bfe_u32 s{S_T+1}, s2, 0x30003")
    a(f"s_add_u32 s{S_RB}, s{S_T}, s{S_T+1}")
    a(f"s_and_b32 s{S_T}, s2, 4")
    a(f"s_lshr_b32 s{S_T+1}, s2, 6")
    a(f"s_add_u32 s{S_CB}, s{S_T}, s{S_T+1}")
    a(f"v_and_b32 v2, 15, v{L}")
    a(f"v_lshrrev_b32 v3, 4, v{L}")
    a(f"v_lshlrev_b32 v9, 4, v{L}")
    a(f"s_lshl_b32 s{S_T+2}, s{S_RB}, 2")
    a(f"s_add_u32 s{S_T+2}, s{S_T+2}, s{S_W4}")
    a(f"s_lshl_b32 s{S_T+6}, s{S_T+2}, 4")
    a(f"s_mul_i32 s{S_T+2}, s{S_T+2}, 20480")
    a(f"s_mul_i32 s{S_T+3}, s{S_CB}, {100*1024}")
    a(f"s_lshl_b32 s{S_T+4}, s{S_W4}, 10")
    a(f"s_add_u32 s{S_T+3}, s{S_T+3}, s{S_T+4}")
    a(f"s_mul_i32 s{S_T+4}, s{S_W4}, 5120")
    a(f"v_add_u32 v11, s{S_T+6}, v2")
    a(f"v_mul_u32_u24 v10, 1280, v11")
    a(f"s_mul_i32 s{S_T+5}, s{S_CB}, 160")
    a(f"v_lshl_add_u32 v10, v3, 3, v10")
    a(f"v_add_u32 v10, s{S_T+5}, v10")
    a(f"s_movk_i32 s{S_T+12}, 512")
    a(f"v_sub_u32 v4, 2048, v11")
    a(f"v_min_u32 v4, v4, v11")
    a(f"v_cmp_lt_u32 vcc, 1024, v11")
    a(f"v_sub_u32 v5, 1024, v4")
    a(f"v_min_u32 v5, v5, v4")
    a(f"v_lshrrev_b32 v6, 4, v5")
    a(f"v_mul_u32_u24 v6, 40960, v6")
    a(f"v_and_b32 v5, 15, v5")
    a(f"v_lshl_add_u32 v5, v3, 4, v5")
    a(f"v_lshl_add_u32 v7, v5, 4, v6")
    a(f"s_mul_i32 s{S_T+9}, s{S_CB}, 5120")
    a(f"v_add_u32 v7, s{S_T+9}, v7")
    a(f"v_add_u32 v6, {YHALF}, v7")
    a(f"v_cmp_lt_u32 s[{S_T+10}:{S_T+11}], s{S_T+12}, v4")
    a("s_nop 1")
    a(f"v_cndmask_b32 v7, v7, v6, s[{S_T+10}:{S_T+11}]")
    a(f"v_cndmask_b32 v{YR+11}, -1.0, 1.0, vcc")
    a(f"v_lshlrev_b32 v11, 2, v11")
    a(f"v_add_u32 v8, 61440, v9")
    a("s_waitcnt lgkmcnt(0)")
    make_srd(a, SRD_W, S_WS, S_WS + 1, WS_WOT, 800 * 1024)
    make_srd(a, SRD_O, S_WS, S_WS + 1, WS_O, S * D * 2)
    if STAMP: make_srd(a, 96, S_WS, S_WS + 1, 0x2100000, 0x100000)
    stamp(a, 1)
    if Cfg.MEGA:
        a(f"s_cmp_ge_u32 s{S_WAVE}, 8")
        a("s_cbranch_scc0 L_k3_work")
        sync(a)
        a("s_barrier")
        a("s_endpgm")
        a.label("L_k3_work")
    a(f"s_cmp_ge_u32 s{S_WAVE}, 4")
    a("s_cbranch_scc0 L_k3_comp")
    for gq in range(5):
        for ct in range(5):
            a(f"s_add_u32 m0, s{S_T+4}, {gq*20480 + ct*1024}")
            a(f"s_add_u32 s{S_T+7}, s{S_T+3}, {ct*20*1024 + gq*4096}")
            a(f"buffer_load_dwordx4 v9, {sr(SRD_W,4)}, s{S_T+7} offen{Cfg.LDF} lds")
        if gq >= 1 and not Cfg.MEGA:
            a("s_waitcnt vmcnt(5)")
            a("s_barrier")
    a("s_waitcnt vmcnt(0)")
    a("s_barrier")
    a("s_endpgm")
    a.label("L_k3_comp")
    ops = []
    def oload(gq):
        a(f"s_add_u32 s{S_T+7}, s{S_T+2}, {gq*4096}")
        for q in range(4):
            a(f"buffer_load_dwordx4 {vr(OB+4*(4*gq+q),4)}, v9, {sr(SRD_O,4)}, s{S_T+7} offen offset:{q*1024}{Cfg.LDF}")
            ops.append(gq)
    def yload():
        a(f"s_mov_b32 s{S_T+9}, 0")
        for ct in range(5):
            a(f"buffer_load_dwordx4 {vr(YR2+4*ct,4)}, v7, {sr(SRD_Y,4)}, s{S_T+9} offen offset:{1024*(ct%4)}{Cfg.LDF}"); ops.append(9)
            if ct == 3: a(f"s_movk_i32 s{S_T+9}, 4096")
        a(f"buffer_load_dword v{YR+10}, v11, {sr(SRD_G,4)}, 0 offen{Cfg.LDF}"); ops.append(9)
    if Cfg.MEGA:
        make_srd(a, SRD_Y, S_WS, S_WS + 1, WS_Y, WS_O - WS_Y)
        make_srd(a, SRD_G, S_WS, S_WS + 1, WS_G, S * 4)
        make_srd(a, SRD_OUT, S_OUT, S_OUT + 1, 0, S * D * 2)
        a("s_barrier")
    oload(0)
    make_srd(a, SRD_Y, S_WS, S_WS + 1, WS_Y, WS_O - WS_Y)
    make_srd(a, SRD_G, S_WS, S_WS + 1, WS_G, S * 4)
    make_srd(a, SRD_OUT, S_OUT, S_OUT + 1, 0, S * D * 2)
    oload(1)
    if K3PF:
        a(f"v_lshlrev_b32 v5, 7, v{L}")
        a(f"s_and_b32 s{S_T+10}, s{S_RB}, 7")
        a(f"s_lshl_b32 s{S_T+10}, s{S_T+10}, 2")
        a(f"s_add_u32 s{S_T+10}, s{S_T+10}, s{S_W4}")
        a(f"s_mul_i32 s{S_T+10}, s{S_T+10}, 3200")
        a(f"s_mul_i32 s{S_T+11}, s{S_CB}, {100*1024}")
        a(f"s_add_u32 s{S_T+10}, s{S_T+10}, s{S_T+11}")
        a("s_mov_b64 exec, 0x1ffffff")
        a(f"buffer_load_dword v{NVGPR-1}, v5, {sr(SRD_W,4)}, s{S_T+10} offen sc1")
        a("s_mov_b64 exec, -1")
        a(f"s_and_b32 s{S_T+10}, s{S_CB}, 3")
        a(f"s_mul_i32 s{S_T+10}, s{S_T+10}, 3072")
        a(f"s_add_u32 s{S_T+10}, s{S_T+10}, s{S_T+2}")
        a(f"s_add_u32 s{S_T+10}, s{S_T+10}, 8192")
        a("s_mov_b64 exec, 0xffffff")
        a(f"buffer_load_dword v{NVGPR-1}, v5, {sr(SRD_O,4)}, s{S_T+10} offen sc1")
        a("s_mov_b64 exec, -1")
        ops.append(8); ops.append(8)
    stamp(a, 2)
    def rd(ks):
        r = []
        for ct in range(5):
            off = (ks * 5 + ct) * 1024
            base = 9 if off < 61440 else 8
            r.append(f"ds_read_b128 {vr(WB+20*(ks%2)+4*ct,4)}, v{base} offset:{off if off < 61440 else off - 61440}")
        return r
    def mm(ks):
        return [f"v_mfma_f32_16x16x32_bf16 {vr(ACC+4*ct,4)}, {vr(WB+20*(ks%2)+4*ct,4)}, {vr(OB+4*ks,4)}, {'0' if ks == 0 else vr(ACC+4*ct,4)}" for ct in range(5)]
    for gq in range(5):
        last = max(i for i, t in enumerate(ops) if t == gq)
        a(f"s_waitcnt vmcnt({len(ops)-1-last})")
        if not Cfg.MEGA: a("s_barrier")
        if gq == 0: stamp(a, 3)
        if gq + 2 < 5: oload(gq + 2)
        if gq == 2: yload()
        for q in range(4):
            ks = 4 * gq + q
            for r_ in rd(ks): a(r_)
            if ks >= 1:
                a("s_waitcnt lgkmcnt(5)")
                for m in mm(ks - 1): a(m)
    a("s_waitcnt lgkmcnt(0)")
    for m in mm(19): a(m)
    stamp(a, 4)
    a("s_waitcnt vmcnt(0)")
    for ct in range(5):
        y0, y1 = YR2 + 4 * ct, YR2 + 4 * ct + 1
        t = 36 + 4 * ct
        a(f"v_lshlrev_b32 v{t}, 16, v{y0}")
        a(f"v_and_b32 v{t+1}, 0xffff0000, v{y0}")
        a(f"v_lshlrev_b32 v{t+2}, 16, v{y1}")
        a(f"v_and_b32 v{t+3}, 0xffff0000, v{y1}")
        q0, q1 = YR2 + 4 * ct + 2, YR2 + 4 * ct + 3
        u = 80 + 4 * ct
        a(f"v_lshlrev_b32 v{u}, 16, v{q0}")
        a(f"v_and_b32 v{u+1}, 0xffff0000, v{q0}")
        a(f"v_lshlrev_b32 v{u+2}, 16, v{q1}")
        a(f"v_and_b32 v{u+3}, 0xffff0000, v{q1}")
        for r in range(4):
            a(f"v_fma_f32 v{t+r}, v{u+r}, v{YR+11}, v{t+r}")
    stamp(a, 5)
    for ct in range(5):
        t = 36 + 4 * ct
        for r in range(4):
            d = ACC + ct * 4 + r
            a(f"v_sub_f32 v{d}, v{d}, v{t+r}")
            a(f"v_fma_f32 v{d}, v{d}, v{YR+10}, v{t+r}")
        d = ACC + ct * 4
        a(f"v_cvt_pk_bf16_f32 v{60+2*ct}, v{d}, v{d+1}")
        a(f"v_cvt_pk_bf16_f32 v{61+2*ct}, v{d+2}, v{d+3}")
        a(f"buffer_store_dwordx2 {vr(60+2*ct,2)}, v10, {sr(SRD_OUT,4)}, 0 offen offset:{32*ct}")
    stamp(a, 6)
    stamp_store(a)
    a.label("L_k3_exit")
    a("s_endpgm")
```

```python
from common import *
import math, struct

STAGE = 36864; WOFF = 16384; NSLOT = 4; NST = 10
S_X = 24; S_W = 26; S_DRE = 28; S_DIM = 30; S_WS = 32
SRD_X = 8; SRD_W = 12; SRD_SQ = 16; SRD_WS = 20
S_WAVE = 36; S_B = 37; S_CG = 38; S_I = 39; S_J = 40; S_WSTR = 41; S_WCOL = 42
S_T = 44
S_SX = 61; S_SW = 62; S_WSTEP = 63; S_DELTA = 64; S_CNT = 65; S_SLOT = 66
V_LANE = 1
QSCALE = math.log2(math.e) / math.sqrt(20.0)
def f32bits(x): return struct.unpack("<I", struct.pack("<f", x))[0]
OOB = 0x40000000
STAMP = False
def stamp(a, idx):
    if STAMP: a(f"s_memtime s[{70+2*idx}:{71+2*idx}]")
def stamp_store(a, n=12):
    if not STAMP: return
    a("s_waitcnt vmcnt(0)")
    stamp(a, n - 1)
    a("s_waitcnt lgkmcnt(0)")
    a("s_mov_b64 exec, -1")
    a(f"s_lshl_b32 s{S_T}, s2, 4")
    a(f"s_add_u32 s{S_T}, s{S_T}, s{S_WAVE}")
    a(f"s_lshl_b32 s{S_T}, s{S_T}, 6")
    a(f"v_mov_b32 v2, 0")
    for i in range(n):
        a(f"v_mov_b32 v3, s{70+2*i}")
        a(f"buffer_store_dword v3, v2, s[96:99], s{S_T} offen offset:{4*i}")

STF = ' sc1'
ROT = 1
CPF = 0
PACK0 = 3
XMAP = 0
S_KST = 69
NDMA = 9
def loader(a):
    VX, VW = 20, 24
    L = V_LANE
    a(f"s_sub_u32 s{S_J}, s{S_WAVE}, 4")
    if ROT == 0: a(f"s_mov_b32 s{S_KST}, 0")
    else:
        if ROT == 1: a(f"s_mov_b32 s{S_KST}, s{S_CG}")
        elif ROT == 2: a(f"s_add_u32 s{S_KST}, s{S_CG}, s{S_B}")
        elif ROT == 3: a(f"s_mul_i32 s{S_KST}, s{S_CG}, 3")
        elif ROT == 4: a(f"s_mov_b32 s{S_KST}, s{S_B}")
        a(f"s_mul_i32 s{S_T}, s{S_KST}, 205")
        a(f"s_lshr_b32 s{S_T}, s{S_T}, 11")
        a(f"s_mul_i32 s{S_T}, s{S_T}, 10")
        a(f"s_sub_u32 s{S_KST}, s{S_KST}, s{S_T}")
    a(f"v_lshrrev_b32 v2, 3, v{L}")
    a(f"v_and_b32 v3, 7, v{L}")
    a(f"v_lshrrev_b32 v4, 4, v{L}")
    a(f"v_xor_b32 v3, v3, v4")
    a(f"s_lshl_b32 s{S_T}, s{S_B}, 6")
    a(f"s_and_b32 s{S_T+1}, s{S_J}, 1")
    a(f"s_lshl_b32 s{S_T+1}, s{S_T+1}, 5")
    a(f"s_add_u32 s{S_T}, s{S_T}, s{S_T+1}")
    a(f"v_add_u32 v5, s{S_T}, v2")
    a(f"s_cmp_ge_u32 s{S_J}, 2")
    a(f"s_movk_i32 s{S_T+2}, 1280")
    a(f"s_cselect_b32 s{S_T+2}, {(-1280) & 0xffffffff}, s{S_T+2}")
    a(f"s_cselect_b32 s{S_T+3}, {2048*1280}, 0")
    a(f"v_mul_lo_u32 v6, v5, s{S_T+2}")
    a(f"v_add_u32 v6, s{S_T+3}, v6")
    a(f"s_lshl_b32 s{S_T+2}, s{S_T+2}, 3")
    a(f"v_lshl_add_u32 v{VX}, v3, 4, v6")
    a(f"v_xor_b32 v3, 4, v3")
    a(f"v_add_u32 v6, s{S_T+2}, v6")
    a(f"v_lshl_add_u32 v{VX+1}, v3, 4, v6")
    a(f"s_lshl_b32 s{S_T+2}, s{S_T+2}, 1")
    a(f"v_add_u32 v{VX+2}, s{S_T+2}, v{VX}")
    a(f"v_add_u32 v{VX+3}, s{S_T+2}, v{VX+1}")
    a(f"v_subrev_u32 v7, {1024*1280}, v{VX}")
    a(f"v_cmp_le_u32 vcc, {2048*1280}, v{VX}")
    a(f"s_lshl_b32 s{S_T+4}, s{S_J}, 12")
    a(f"s_mul_i32 s{S_T+5}, s{S_J}, 5120")
    a(f"v_cndmask_b32 v{VX}, v{VX}, v7, vcc")
    a(f"s_add_u32 s{S_T+5}, s{S_T+5}, {WOFF}")
    def issue_x(stage):
        slot = (stage % NSLOT) * STAGE
        a(f"s_lshl_b32 s{S_SX}, s{S_KST}, 7")
        for t in range(4):
            a(f"s_add_u32 m0, s{S_T+4}, {slot + t*1024}")
            a("s_nop 0")
            a(f"buffer_load_dwordx4 v{VX+t}, {sr(SRD_X,4)}, s{S_SX} offen lds")
    def issue_w(stage):
        slot = (stage % NSLOT) * STAGE
        a(f"s_mul_i32 s{S_SW}, s{S_WSTEP}, s{S_KST}")
        for t in range(5):
            a(f"s_add_u32 m0, s{S_T+5}, {slot + t*1024}")
            a("s_nop 0")
            a(f"buffer_load_dwordx4 v{VW+t}, {sr(SRD_W,4)}, s{S_SW} offen lds")
        a(f"s_add_u32 s{S_KST}, s{S_KST}, 1")
        a(f"s_cmp_eq_u32 s{S_KST}, {NST}")
        a(f"s_cselect_b32 s{S_KST}, 0, s{S_KST}")
    stamp(a, 1)
    issue_x(0)
    a(f"s_mul_i32 s{S_T+6}, s{S_J}, 320")
    a(f"s_movk_i32 s{S_T+7}, 3277")
    for t in range(5):
        a(f"v_add_u32 v2, s{S_T+6}, v{L}")
        if t: a(f"v_add_u32 v2, {64*t}, v2")
        a(f"v_mul_u32_u24 v3, s{S_T+7}, v2")
        a(f"v_lshrrev_b32 v3, 16, v3")
        a(f"v_mul_u32_u24 v4, 20, v3")
        a(f"v_sub_u32 v4, v2, v4")
        a(f"v_bfe_u32 v5, v3, 3, 1")
        a(f"v_lshlrev_b32 v5, 1, v5")
        a(f"v_xor_b32 v4, v4, v5")
        a(f"v_mul_lo_u32 v6, v3, s{S_WSTR}")
        a(f"v_lshl_add_u32 v6, v4, 4, v6")
        a(f"v_add_u32 v{VW+t}, s{S_WCOL}, v6")
    issue_w(0)
    issue_x(1); issue_w(1)
    a(f"v_and_b32 v2, 15, v{L}")
    a(f"s_lshl_b32 s{S_T+6}, s{S_J}, 4")
    a(f"v_add_u32 v4, s{S_T+6}, v2")
    a(f"v_bfe_u32 v5, v4, 3, 1")
    a(f"v_mul_u32_u24 v30, 320, v4")
    a(f"v_lshl_add_u32 v30, v5, 5, v30")
    a(f"v_add_u32 v30, {WOFF}, v30")
    a(f"v_and_b32 v6, 1, v4")
    a(f"v_lshlrev_b32 v6, 15, v6")
    a(f"v_or_b32 v31, 0x3f80, v6")
    def patch(stage):
        lab = a.newlabel("nopatch")
        a(f"s_cmp_lg_u32 s{S_CG}, 14")
        a(f"s_cbranch_scc1 {lab}")
        a("s_mov_b64 exec, 0xffff")
        slot = (stage % NSLOT) * STAGE
        a(f"v_add_u32 v2, {slot}, v30")
        a(f"ds_write_b16 v2, v31")
        a("s_mov_b64 exec, -1")
        a("s_waitcnt lgkmcnt(0)")
        a.label(lab)
    stamp(a, 2)
    issued = 2
    ops = [0] * NDMA + [1] * NDMA
    for n in range(NST):
        last = max(i for i, t in enumerate(ops) if t == n)
        a(f"s_waitcnt vmcnt({len(ops) - 1 - last})")
        patch(n)
        if n in (0, 1, 2, 5, 9): stamp(a, {0:3, 1:4, 2:5, 5:6, 9:7}[n])
        a("s_barrier")
        k = 2 if n == 0 else 1
        for _ in range(k):
            if issued < NST:
                issue_x(issued); issue_w(issued); ops += [issued] * NDMA; issued += 1
        if n == 1: copy_setup(a)
        if n == 8 and CPF and not Cfg.MEGA:
            lab = a.newlabel("nopf")
            a(f"s_lshr_b32 s{S_T+15}, s2, 5")
            a(f"s_cmp_lg_u32 s{S_T+15}, s{S_J}")
            a(f"s_cbranch_scc1 {lab}")
            code_prefetch(a, "attn_dft2_kernel", CPF, 4, 80, V_LANE)
            a("s_waitcnt vmcnt(0)")
            a.label(lab)
        if n == PACK0 - 1: pack_setup(a)
        if PACK0 <= n < PACK0 + 4:
            pack_frag(a, n - PACK0); ops.append(-1)
    copy_out(a)

ACC = 88
FS = [16, 52]
V_XA = [2, 3]
V_WA = [4, 5]
VE = 8

def acc(a_, ct): return ACC + (a_ * 5 + ct) * 4

def frag_reads(ks, fs):
    r = []
    xs = []
    for a_ in range(4):
        rt_rel = (a_ & 1) + 4 * (a_ >> 1)
        xs.append(f"ds_read_b128 {vr(fs+4*a_,4)}, v{V_XA[ks]} offset:{rt_rel*2048}")
    ws = []
    for ct in range(5):
        for h2 in range(2):
            krow = 4 * h2 + 32 * ks
            ws.append(f"ds_read_b64_tr_b16 {vr(fs+16+4*ct+2*h2,2)}, v{V_WA[ct%2]} offset:{krow*320 + ct*32}")
    return ws[:2] + xs + ws[2:]

def mfmas(tr, fs):
    r = []
    for ct in range(5):
        for a_ in range(4):
            X = vr(fs + 4 * a_, 4); W = vr(fs + 16 + 4 * ct, 4)
            A, B = (W, X) if tr else (X, W)
            r.append(f"v_mfma_f32_16x16x32_bf16 {vr(acc(a_,ct),4)}, {A}, {B}, {vr(acc(a_,ct),4)}")
    return r

RPM = 1
def interleave(a, ms, rs):
    k = 0
    for m in ms:
        a(m)
        for _ in range(RPM):
            if k < len(rs):
                a(rs[k]); k += 1
    while k < len(rs):
        a(rs[k]); k += 1

L2PF = 1
PFM = 1
PFF = ''
def l2_prefetch(a):
    L = V_LANE
    a(f"v_mul_u32_u24 v8, 86, v{L}")
    a(f"v_lshrrev_b32 v8, 8, v8")
    a(f"v_mul_u32_u24 v9, 3, v8")
    a(f"v_sub_u32 v9, v{L}, v9")
    a(f"s_and_b32 s{S_T}, s{S_B}, 7")
    a(f"s_mul_i32 s{S_T}, s{S_T}, 80")
    a(f"s_mul_i32 s{S_T+1}, s{S_WAVE}, 20")
    a(f"s_add_u32 s{S_T}, s{S_T}, s{S_T+1}")
    a(f"v_min_u32 v8, 19, v8")
    a(f"v_add_u32 v8, s{S_T}, v8")
    a(f"v_mul_lo_u32 v8, v8, s{S_WSTR}")
    a(f"v_lshl_add_u32 v8, v9, 7, v8")
    if PFM & 1: a(f"buffer_load_dword v168, v8, {sr(SRD_W,4)}, s{S_WCOL} offen{PFF}")
    a(f"s_and_b32 s{S_T}, s{S_CG}, 3")
    a(f"s_lshl_b32 s{S_T}, s{S_T}, 4")
    a(f"s_lshl_b32 s{S_T+1}, s{S_WAVE}, 2")
    a(f"s_add_u32 s{S_T}, s{S_T}, s{S_T+1}")
    a(f"s_lshl_b32 s{S_T+1}, s{S_B}, 6")
    a(f"s_add_u32 s{S_T}, s{S_T}, s{S_T+1}")
    a(f"v_bfe_u32 v8, v{L}, 3, 2")
    a(f"v_add_u32 v8, s{S_T}, v8")
    a(f"v_sub_u32 v9, 2047, v8")
    a(f"v_cmp_gt_u32 vcc, 32, v{L}")
    a(f"v_and_b32 v11, 7, v{L}")
    a("s_nop 0")
    a(f"v_cndmask_b32 v8, v9, v8, vcc")
    a(f"v_mul_u32_u24 v8, 1280, v8")
    a(f"v_lshl_add_u32 v8, v11, 7, v8")
    if PFM & 2: a(f"buffer_load_dword v169, v8, {sr(SRD_X,4)}, 0 offen{PFF}")
    if PFM & 4: a(f"buffer_load_dword v170, v8, {sr(SRD_X,4)}, 0 offen offset:256{PFF}")

def compute_setup(a):
    L = V_LANE
    if L2PF == 1: l2_prefetch(a)
    t = VE
    a(f"v_and_b32 v{t}, 15, v{L}")
    a(f"v_lshrrev_b32 v{t+1}, 4, v{L}")
    a(f"v_lshrrev_b32 v{t+2}, 1, v{t}")
    a(f"v_xor_b32 v{t+3}, v{t+1}, v{t+2}")
    a(f"s_lshl_b32 s{S_T}, s{S_I}, 12")
    a(f"v_lshlrev_b32 v{t+4}, 7, v{t}")
    a(f"v_add_u32 v{t+4}, s{S_T}, v{t+4}")
    a(f"v_lshl_add_u32 v{V_XA[0]}, v{t+3}, 4, v{t+4}")
    a(f"v_xor_b32 v{V_XA[1]}, 64, v{V_XA[0]}")
    a(f"v_lshrrev_b32 v{t+2}, 2, v{t}")
    a(f"v_and_b32 v{t+3}, 3, v{t}")
    a(f"v_lshl_add_u32 v{t+4}, v{t+1}, 3, v{t+2}")
    a(f"v_mul_u32_u24 v{t+4}, 320, v{t+4}")
    a(f"v_lshl_add_u32 v{t+4}, v{t+3}, 3, v{t+4}")
    a(f"s_mul_i32 s{S_T}, s{S_J}, 160")
    a(f"s_add_u32 s{S_T}, s{S_T}, {WOFF}")
    a(f"v_add_u32 v{t+4}, s{S_T}, v{t+4}")
    a(f"v_and_b32 v{t+5}, 1, v{t+1}")
    a(f"v_lshlrev_b32 v{t+5}, 5, v{t+5}")
    a(f"v_add_u32 v{t+6}, v{t+4}, v{t+5}")
    a(f"v_sub_u32 v{t+7}, v{t+4}, v{t+5}")
    a(f"s_cmp_eq_u32 s{S_J}, 0")
    a(f"s_cselect_b64 vcc, -1, 0")
    a(f"v_cndmask_b32 v{V_WA[0]}, v{t+7}, v{t+6}, vcc")
    a(f"v_cndmask_b32 v{V_WA[1]}, v{t+6}, v{t+7}, vcc")
    for r in range(80):
        a(f"v_mov_b32 v{ACC+r}, 0")
    for r in range(12):
        a(f"v_mov_b32 v{EA+r}, 0")
    a(f"s_mov_b32 s{S_CNT}, 0")
    a(f"s_mov_b32 s{S_SLOT}, 0")

def pack_setup(a):
    L = V_LANE
    a(f"s_lshl_b32 s{S_T+8}, s2, 2")
    a(f"s_add_u32 s{S_T+8}, s{S_T+8}, s{S_J}")
    a(f"s_cmp_ge_u32 s{S_T+8}, 272")
    a(f"s_cselect_b32 s{S_T+12}, {f32bits(0.25)}, 0")
    a(f"s_cselect_b32 s{S_T+9}, 272, 0")
    a(f"s_sub_u32 s{S_T+9}, s{S_T+8}, s{S_T+9}")
    a(f"s_and_b32 s{S_T+10}, s{S_T+9}, 15")
    a(f"s_lshr_b32 s{S_T+9}, s{S_T+9}, 4")
    a(f"s_lshl_b32 s{S_T+9}, s{S_T+9}, 5")
    a(f"s_lshl_b32 s{S_T+10}, s{S_T+10}, 6")
    a(f"v_and_b32 v60, 31, v{L}")
    a(f"v_add_u32 v60, s{S_T+9}, v60")
    a(f"v_lshrrev_b32 v61, 5, v{L}")
    a(f"v_lshl_add_u32 v61, v61, 4, s{S_T+10}")
    a(f"v_mul_u32_u24 v62, v60, v61")
    a(f"v_and_b32 v62, 2047, v62")
    a(f"v_cvt_f32_u32 v62, v62")
    a(f"v_cvt_f32_u32 v63, v60")
    a(f"s_mov_b32 s{S_T+11}, {f32bits(1.0/2048)}")
    a(f"v_mul_f32 v62, s{S_T+11}, v62")
    a(f"v_mul_f32 v63, s{S_T+11}, v63")
    a(f"v_add_f32 v62, s{S_T+12}, v62")
    a(f"v_add_f32 v64, v63, v63")
    a(f"s_lshl_b32 s{S_T+14}, s{S_T+8}, 12")
    a(f"s_add_u32 s{S_T+14}, s{S_T+14}, {WS_CP}")
    a(f"s_cmp_lt_u32 s{S_T+8}, 544")
    a(f"s_cselect_b32 s{S_T+14}, s{S_T+14}, {OOB}")
    a(f"v_lshlrev_b32 v65, 4, v{L}")

def pack_frag(a, q):
    jj, p = q // 2, q % 2
    off = 32 * jj + p
    if off == 0: a("v_mov_b32 v74, v62")
    elif off == 1: a("v_add_f32 v74, v62, v63")
    else:
        a(f"v_mov_b32 v75, {f32bits(float(off))}")
        a("v_fma_f32 v74, v63, v75, v62")
    for m in range(8):
        a(f"v_fract_f32 v74, v74")
        a(f"v_cos_f32 v{66+m}, v74")
        a(f"v_add_f32 v74, v74, v64")
    for qq in range(4):
        a(f"v_cvt_pk_bf16_f32 v{40+4*q+qq}, v{66+2*qq}, v{67+2*qq}")
    a(f"buffer_store_dwordx4 {vr(40+4*q,4)}, v65, {sr(SRD_WS,4)}, s{S_T+14} offen offset:{q*1024}{STF}")

def compute_loop(a, tr):
    regs = V_XA + V_WA
    lab = f"L_k1_loop{int(tr)}"
    a(f"s_mul_i32 s{S_T}, s{S_WAVE}, 3072")
    a(f"s_add_u32 s{S_T}, s{S_T}, {NSLOT*STAGE}")
    a(f"v_lshl_add_u32 v6, v{V_LANE}, 2, s{S_T}")
    for r in range(12): a(f"ds_write_b32 v6, v{EA+r} offset:{256*r}")
    if L2PF == 2: l2_prefetch(a)
    a("s_waitcnt lgkmcnt(0)")
    stamp(a, 1)
    a("s_barrier")
    if L2PF == 3: l2_prefetch(a)
    stamp(a, 2)
    for r in frag_reads(0, FS[0]): a(r)
    a.label(lab)
    a("s_waitcnt lgkmcnt(0)")
    interleave(a, mfmas(tr, FS[0]), frag_reads(1, FS[1]))
    a(f"s_add_u32 s{S_CNT}, s{S_CNT}, 1")
    a(f"s_cmp_eq_u32 s{S_CNT}, {NST}")
    a(f"s_cbranch_scc1 {lab}_last")
    a(f"s_add_u32 s{S_SLOT}, s{S_SLOT}, 1")
    a(f"s_mov_b32 s{S_DELTA}, {STAGE}")
    a(f"s_cmp_eq_u32 s{S_SLOT}, {NSLOT}")
    a(f"s_cselect_b32 s{S_DELTA}, {(-(NSLOT-1)*STAGE) & 0xffffffff}, s{S_DELTA}")
    a(f"s_cselect_b32 s{S_SLOT}, 0, s{S_SLOT}")
    for r in regs:
        a(f"v_add_u32 v{r}, s{S_DELTA}, v{r}")
    a("s_waitcnt lgkmcnt(0)")
    a("s_barrier")
    interleave(a, mfmas(tr, FS[1]), frag_reads(0, FS[0]))
    a(f"s_branch {lab}")
    a.label(f"{lab}_last")
    a("s_waitcnt lgkmcnt(0)")
    ms = mfmas(tr, FS[1])
    for m in ms: a(m)
    for r in range(12): a(f"ds_read_b32 v{EA2+r}, v6 offset:{256*r}")
    a("s_waitcnt lgkmcnt(0)")
    stamp(a, 3)

IMG = 2 * STAGE
S_GB = 67
S_NP = 68
EA2 = 72
EA = 60

def pre_qk(a):
    L = V_LANE; t = 8
    a(f"v_and_b32 v{t}, 15, v{L}")
    a(f"v_lshrrev_b32 v{t+1}, 4, v{L}")
    a(f"s_lshl_b32 s{S_T+2}, s{S_I}, 10")
    a(f"s_lshl_b32 s{S_T+3}, s{S_I}, 3")
    a(f"s_add_u32 s{S_T+3}, s{S_T+3}, 4096")
    a(f"s_mul_i32 s{S_T+6}, s{S_J}, 20")
    a(f"v_lshlrev_b32 v{t+10}, 4, v{t}")
    a(f"v_add_u32 v{t+10}, {IMG}, v{t+10}")
    a(f"v_add_u32 v{t+1}, s{S_T+6}, v{t+1}")
    a(f"v_mov_b32 v{t+7}, s{S_T+3}")
    a(f"v_mov_b32 v{t+9}, 512")
    for ct in range(5):
        A0, A1 = EA + 2 * ct, EA + 2 * ct + 1
        if ct: a(f"v_add_u32 v{t+1}, 4, v{t+1}")
        a(f"v_mul_u32_u24 v{t+3}, 205, v{t+1}")
        a(f"v_lshrrev_b32 v{t+3}, 10, v{t+3}")
        a(f"v_mul_u32_u24 v{t+4}, 5, v{t+3}")
        a(f"v_sub_u32 v{t+6}, v{t+1}, v{t+4}")
        a(f"v_mul_u32_u24 v{t+3}, 5120, v{t+3}")
        a(f"v_add_u32 v{t+3}, v{t+3}, v{t+10}")
        a(f"v_lshrrev_b32 v{t+4}, 1, v{t+6}")
        a(f"v_lshlrev_b32 v{t+4}, 9, v{t+4}")
        a(f"v_and_b32 v{t+5}, 1, v{t+6}")
        a(f"v_lshl_add_u32 v{t+4}, v{t+5}, 3, v{t+4}")
        a(f"v_cmp_eq_u32 vcc, 4, v{t+6}")
        a(f"v_add_u32 v{t+4}, s{S_T+2}, v{t+4}")
        a(f"v_mov_b32 v{t+8}, 2048")
        a(f"v_cndmask_b32 v{t+4}, v{t+4}, v{t+7}, vcc")
        a(f"v_cndmask_b32 v{t+8}, v{t+8}, v{t+9}, vcc")
        a(f"v_add_u32 v{A0}, v{t+3}, v{t+4}")
        a(f"v_add_u32 v{A1}, v{A0}, v{t+8}")

def pre_v(a):
    L = V_LANE; t = 8
    a(f"v_and_b32 v{t}, 15, v{L}")
    a(f"v_lshrrev_b32 v{t+1}, 4, v{L}")
    a(f"s_mul_i32 s{S_T+1}, s{S_I}, 1280")
    a(f"s_add_u32 s{S_T+1}, s{S_T+1}, {IMG}")
    a(f"v_and_b32 v{t+2}, 1, v{t+1}")
    a(f"v_mul_u32_u24 v{t+2}, 320, v{t+2}")
    a(f"v_lshrrev_b32 v{t+3}, 1, v{t+1}")
    a(f"v_lshl_add_u32 v{t+2}, v{t+3}, 3, v{t+2}")
    a(f"v_add_u32 v{t+2}, s{S_T+1}, v{t+2}")
    a(f"s_mul_i32 s{S_T+6}, s{S_J}, 80")
    a(f"v_add_u32 v{t}, s{S_T+6}, v{t}")
    a(f"s_movk_i32 s{S_T+7}, 3277")
    for ct in range(5):
        if ct: a(f"v_add_u32 v{t}, 16, v{t}")
        a(f"v_mul_u32_u24 v{t+3}, s{S_T+7}, v{t}")
        a(f"v_lshrrev_b32 v{t+3}, 16, v{t+3}")
        a(f"v_mul_u32_u24 v{t+4}, 20, v{t+3}")
        a(f"v_sub_u32 v{t+4}, v{t}, v{t+4}")
        a(f"v_mul_u32_u24 v{t+3}, 5120, v{t+3}")
        a(f"v_lshl_add_u32 v{t+4}, v{t+4}, 4, v{t+2}")
        a(f"v_add_u32 v{EA+ct}, v{t+4}, v{t+3}")

def pre_d(a):
    L = V_LANE; t = 8
    a(f"v_and_b32 v{t}, 15, v{L}")
    a(f"v_lshrrev_b32 v{t+1}, 4, v{L}")
    a(f"s_lshl_b32 s{S_T+1}, s{S_I}, 11")
    a(f"s_add_u32 s{S_T+1}, s{S_T+1}, {IMG}")
    a(f"v_lshl_add_u32 v{t+2}, v{t+1}, 2, s{S_T+1}")
    a(f"s_mul_i32 s{S_T+6}, s{S_J}, 80")
    a(f"v_add_u32 v{t}, s{S_T+6}, v{t}")
    a(f"s_cmp_lt_u32 s{S_CG}, 14")
    a(f"s_mov_b32 s{S_T+3}, {WS_BOT}")
    a(f"s_cselect_b32 s{S_T+3}, {WS_AET}, s{S_T+3}")
    a(f"s_cselect_b32 s{S_T+5}, 1.0, -1.0")
    a(f"s_and_b32 s{S_T+2}, s{S_CG}, 1")
    a(f"s_mul_i32 s{S_T+2}, s{S_T+2}, {5*AEP_ET}")
    a(f"s_add_u32 s{S_T+3}, s{S_T+3}, s{S_T+2}")
    a(f"s_add_u32 s{S_T+3}, s{S_T+3}, {64*1024}")
    a(f"s_mov_b32 s{S_T+4}, {AEP_ET}")
    for ct in range(5):
        if ct: a(f"v_add_u32 v{t}, 16, v{t}")
        a(f"v_lshrrev_b32 v{t+3}, 5, v{t}")
        a(f"v_and_b32 v{t+4}, 31, v{t}")
        a(f"v_lshlrev_b32 v{t+4}, 4, v{t+4}")
        a(f"v_lshl_add_u32 v{t+5}, v{t+3}, 12, v{t+4}")
        a(f"v_add_u32 v{EA+ct}, v{t+5}, v{t+2}")
        a(f"v_mul_lo_u32 v{t+5}, v{t+3}, s{S_T+4}")
        a(f"v_add3_u32 v{EA+5+ct}, v{t+5}, v{t+4}, s{S_T+3}")
    a(f"v_mov_b32 v{EA+10}, s{S_T+5}")
    a(f"v_mov_b32 v{EA+11}, s{S_T+5}")

def copy_setup(a):
    lab_d = a.newlabel("cpd"); lab_e = a.newlabel("cpe")
    a(f"s_cmp_ge_u32 s{S_CG}, 12")
    a(f"s_cbranch_scc1 {lab_d}")
    a(f"s_and_b32 s{S_T}, s{S_CG}, 3")
    a(f"s_lshl_b32 s{S_T}, s{S_T}, 3")
    a(f"s_add_u32 s{S_T}, s{S_T}, s{S_WAVE}")
    a(f"s_mul_i32 s{S_T}, s{S_T}, {Q_HEAD_BYTES}")
    a(f"s_mul_i32 s{S_T+1}, s{S_B}, 5120")
    a(f"s_add_u32 s{S_GB}, s{S_T}, s{S_T+1}")
    a(f"s_mov_b32 s{S_NP}, 5")
    a(f"s_cmp_lt_u32 s{S_CG}, 4")
    a(f"s_cbranch_scc1 {lab_e}")
    a(f"s_lshl_b32 s{S_GB}, s{S_GB}, 1")
    a(f"s_add_u32 s{S_GB}, s{S_GB}, {WS_KV}")
    a(f"s_cmp_lt_u32 s{S_CG}, 8")
    a(f"s_cbranch_scc1 {lab_e}")
    a(f"s_add_u32 s{S_GB}, s{S_GB}, 5120")
    a(f"s_branch {lab_e}")
    a.label(lab_d)
    a(f"s_cmp_lt_u32 s{S_CG}, 14")
    a(f"s_mov_b32 s{S_T+3}, {WS_BOT}")
    a(f"s_cselect_b32 s{S_T+3}, {WS_AET}, s{S_T+3}")
    a(f"s_and_b32 s{S_T}, s{S_CG}, 1")
    a(f"s_mul_i32 s{S_T}, s{S_T}, 5")
    a(f"s_add_u32 s{S_T}, s{S_T}, s{S_WAVE}")
    a(f"s_mul_i32 s{S_T}, s{S_T}, {AEP_ET}")
    a(f"s_lshl_b32 s{S_T+1}, s{S_B}, 12")
    a(f"s_add_u32 s{S_GB}, s{S_T}, s{S_T+1}")
    a(f"s_add_u32 s{S_GB}, s{S_GB}, s{S_T+3}")
    a(f"s_cmp_lt_u32 s{S_WAVE}, 5")
    a(f"s_cselect_b32 s{S_NP}, 4, 0")
    a.label(lab_e)

def copy_out(a):
    a.label("L_k1_copy")
    a("s_waitcnt lgkmcnt(0)")
    a("s_barrier")
    a(f"s_cmp_eq_u32 s{S_NP}, 0")
    a("s_cbranch_scc1 L_k1_done")
    a(f"s_mul_i32 s{S_T}, s{S_WAVE}, s{S_NP}")
    a(f"s_lshl_b32 s{S_T}, s{S_T}, 10")
    a(f"s_add_u32 s{S_T}, s{S_T}, {IMG}")
    a(f"v_lshlrev_b32 v2, 4, v{V_LANE}")
    a(f"v_add_u32 v3, s{S_T}, v2")
    for p in range(5):
        a(f"ds_read_b128 {vr(4+4*p,4)}, v3 offset:{p*1024}")
    for p in range(4):
        a(f"s_waitcnt lgkmcnt({4-p})")
        a(f"buffer_store_dwordx4 {vr(4+4*p,4)}, v2, {sr(SRD_WS,4)}, s{S_GB} offen offset:{p*1024}{STF}")
    a(f"s_cmp_eq_u32 s{S_NP}, 4")
    a("s_cbranch_scc1 L_k1_done")
    a(f"s_add_u32 s{S_GB}, s{S_GB}, 4096")
    a("s_waitcnt lgkmcnt(0)")
    a(f"buffer_store_dwordx4 {vr(20,4)}, v2, {sr(SRD_WS,4)}, s{S_GB} offen{STF}")
    a.label("L_k1_done")
    stamp(a, 4)
    stamp_store(a)
    endp(a, "L_A_done")

def epilogue_qk(a):
    lab = a.newlabel("noscale")
    a(f"s_cmp_ge_u32 s{S_CG}, 4")
    a(f"s_mov_b32 s{S_T+4}, {f32bits(QSCALE)}")
    a("s_nop 5")
    a(f"s_cbranch_scc1 {lab}")
    for r in range(80): a(f"v_mul_f32 v{ACC+r}, s{S_T+4}, v{ACC+r}")
    a.label(lab)
    pk = 20
    for ct in range(5):
        for a_ in range(4):
            c = acc(a_, ct)
            p = pk + 2 * (ct * 4 + a_)
            a(f"v_cvt_pk_bf16_f32 v{p}, v{c}, v{c+1}")
            a(f"v_cvt_pk_bf16_f32 v{p+1}, v{c+2}, v{c+3}")
            a(f"ds_write_b64 v{EA2+2*ct+(a_>>1)}, {vr(p,2)} offset:{(a_&1)*256}")
    a("s_branch L_k1_copy")

def epilogue_v(a):
    a("s_nop 7")
    pk = 20
    for ct in range(5):
        for a_ in range(4):
            c = acc(a_, ct)
            p = pk + 2 * (ct * 4 + a_)
            a(f"v_cvt_pk_bf16_f32 v{p}, v{c}, v{c+1}")
            a(f"v_cvt_pk_bf16_f32 v{p+1}, v{c+2}, v{c+3}")
            a(f"ds_write_b64 v{EA2+ct}, {vr(p,2)} offset:{(a_>>1)*2560 + (a_&1)*640}")
    a("s_branch L_k1_copy")

def epilogue_d(a):
    spec = a.newlabel("spec"); nospec = a.newlabel("nospec")
    a(f"s_lshl_b32 s{S_T+6}, s{S_J}, 4")
    a(f"s_add_u32 s{S_T+6}, s{S_T+6}, s{S_CG}")
    a(f"v_and_b32 v2, 15, v{V_LANE}")
    a(f"s_cmp_lg_u32 s{S_T+6}, 14")
    a(f"s_cbranch_scc1 {nospec}")
    a(f"v_cmp_eq_u32 vcc, 0, v2")
    a(f"v_mov_b32 v3, {WS_AET + 10*AEP_ET + 64*1024}")
    a("s_nop 0")
    a(f"v_cndmask_b32 v{EA2+5}, v{EA2+5}, v3, vcc")
    a(f"v_cndmask_b32 v{EA2+10}, v{EA2+10}, 1.0, vcc")
    a.label(nospec)
    lab = a.newlabel("nos0")
    a(f"s_or_b32 s{S_T+7}, s{S_B}, s{S_I}")
    a(f"s_cmp_lg_u32 s{S_T+7}, 0")
    a("s_nop 3")
    a(f"s_cbranch_scc1 {lab}")
    a("s_mov_b64 exec, 0xffff")
    for k in range(1, 4): a(f"v_mov_b32 v{8+k}, 0")
    for k in range(4): a(f"v_mov_b32 v{12+k}, 0")
    for ct in range(5):
        cm = acc(2, ct)
        a(f"v_cvt_pk_bf16_f32 v8, v{cm}, 0")
        a(f"v_mov_b32 v{cm}, 0")
        a(f"buffer_store_dwordx4 v[8:11], v{EA2+5+ct}, {sr(SRD_WS,4)}, 0 offen{STF}")
        a(f"buffer_store_dwordx4 v[12:15], v{EA2+5+ct}, {sr(SRD_WS,4)}, 0 offen offset:512{STF}")
        a("s_nop 1")
    a("s_mov_b64 exec, -1")
    a.label(lab)
    pk = 20
    for ct in range(5):
        for a_ in range(2):
            cs, cm = acc(a_, ct), acc(a_ + 2, ct)
            for r in range(4):
                a(f"v_fma_f32 v{cs+r}, v{cm+r}, v{EA2+10 if ct == 0 else EA2+11}, v{cs+r}")
            p = pk + 2 * (ct * 2 + a_)
            a(f"v_cvt_pk_bf16_f32 v{p}, v{cs}, v{cs+2}")
            a(f"v_cvt_pk_bf16_f32 v{p+1}, v{cs+1}, v{cs+3}")
            a(f"ds_write_b32 v{EA2+ct}, v{p} offset:{a_*512}")
            a(f"ds_write_b32 v{EA2+ct}, v{p+1} offset:{a_*512+1024}")
    a(f"s_cmp_lg_u32 s{S_T+6}, 14")
    a("s_cbranch_scc1 L_k1_copy")
    a(f"v_lshrrev_b32 v3, 4, v{V_LANE}")
    a(f"v_lshlrev_b32 v4, 2, v3")
    a(f"s_lshl_b32 s{S_T}, s{S_B}, 12")
    a(f"s_lshl_b32 s{S_T+1}, s{S_I}, 11")
    a(f"s_add_u32 s{S_T}, s{S_T}, s{S_T+1}")
    a(f"s_add_u32 s{S_T}, s{S_T}, {WS_AET + 10*AEP_ET}")
    a(f"v_cmp_eq_u32 vcc, 0, v2")
    a("s_and_saveexec_b64 s[58:59], vcc")
    for a_ in range(2):
        a(f"buffer_store_dword v{pk+2*a_}, v4, {sr(SRD_WS,4)}, s{S_T} offen offset:{a_*512}{STF}")
        a(f"buffer_store_dword v{pk+2*a_+1}, v4, {sr(SRD_WS,4)}, s{S_T} offen offset:{a_*512+1024}{STF}")
    a("s_mov_b64 exec, -1")
    a("s_branch L_k1_copy")

def gen_k1(a, name, side=None):
    kernel_header(a, name)
    a("s_cmp_ge_u32 s2, 256")
    a("s_cbranch_scc1 L_k1_exit")
    a(f"s_load_dwordx4 {sr(S_X,4)}, s[0:1], 0")
    a(f"s_load_dwordx4 {sr(S_DRE,4)}, s[0:1], 48")
    a(f"s_load_dwordx2 {sr(S_WS,2)}, s[0:1], 88")
    a(f"s_load_dwordx4 s[4:7], s[0:1], 32")
    stamp(a, 0)
    a(f"v_and_b32 v{V_LANE}, 63, v0")
    a(f"v_lshrrev_b32 v2, 6, v0")
    a("s_nop 0")
    a(f"v_readfirstlane_b32 s{S_WAVE}, v2")
    if XMAP == 0:
        a(f"s_and_b32 s{S_T}, s2, 1")
        a(f"s_lshl_b32 s{S_T}, s{S_T}, 3")
        a(f"s_bfe_u32 s{S_T+1}, s2, 0x30003")
        a(f"s_add_u32 s{S_B}, s{S_T}, s{S_T+1}")
        a(f"s_bfe_u32 s{S_T}, s2, 0x20001")
        a(f"s_lshl_b32 s{S_T}, s{S_T}, 2")
        a(f"s_lshr_b32 s{S_T+1}, s2, 6")
        a(f"s_add_u32 s{S_CG}, s{S_T}, s{S_T+1}")
    elif XMAP == 1:
        a(f"s_and_b32 s{S_T}, s2, 7")
        a(f"s_lshl_b32 s{S_T}, s{S_T}, 1")
        a(f"s_bfe_u32 s{S_T+1}, s2, 0x10003")
        a(f"s_add_u32 s{S_B}, s{S_T}, s{S_T+1}")
        a(f"s_lshr_b32 s{S_CG}, s2, 4")
    elif XMAP == 2:
        a(f"s_and_b32 s{S_T}, s2, 7")
        a(f"s_lshl_b32 s{S_T}, s{S_T}, 1")
        a(f"s_bfe_u32 s{S_T+1}, s2, 0x10003")
        a(f"s_add_u32 s{S_CG}, s{S_T}, s{S_T+1}")
        a(f"s_lshr_b32 s{S_B}, s2, 4")
    elif XMAP == 3:
        a(f"s_and_b32 s{S_T}, s2, 3")
        a(f"s_lshl_b32 s{S_T}, s{S_T}, 2")
        a(f"s_bfe_u32 s{S_T+1}, s2, 0x20003")
        a(f"s_add_u32 s{S_B}, s{S_T}, s{S_T+1}")
        a(f"s_bfe_u32 s{S_T}, s2, 0x10002")
        a(f"s_lshl_b32 s{S_T}, s{S_T}, 3")
        a(f"s_lshr_b32 s{S_T+1}, s2, 5")
        a(f"s_add_u32 s{S_CG}, s{S_T}, s{S_T+1}")
    a(f"s_bfe_u32 s{S_I}, s{S_WAVE}, 0x10001")
    a(f"s_and_b32 s{S_J}, s{S_WAVE}, 1")
    a(f"s_and_b32 s{S_T}, s{S_CG}, 1")
    a(f"s_cmp_lt_u32 s{S_CG}, 12")
    a(f"s_cselect_b32 s{S_T}, s{S_CG}, s{S_T}")
    a(f"s_cselect_b32 s{S_WSTR}, 3840, 64")
    a(f"s_mul_i32 s{S_WCOL}, s{S_T}, 320")
    a(f"s_cselect_b32 s{S_T+1}, 0, 1216")
    a(f"s_add_u32 s{S_WSTR}, s{S_WSTR}, s{S_T+1}")
    a(f"s_lshl_b32 s{S_WSTEP}, s{S_WSTR}, 6")
    a(f"s_mul_i32 s{S_T+2}, s{S_WSTR}, 640")
    a("s_waitcnt lgkmcnt(0)")
    make_srd(a, SRD_X, S_X, S_X + 1, 0, S * D * 2)
    a(f"s_cmp_lt_u32 s{S_CG}, 14")
    a(f"s_cselect_b32 s{SRD_W}, s{S_DRE}, s{S_DIM}")
    a(f"s_cselect_b32 s{SRD_W+1}, s{S_DRE+1}, s{S_DIM+1}")
    a(f"s_cmp_lt_u32 s{S_CG}, 12")
    a(f"s_cselect_b32 s{SRD_W}, s{S_W}, s{SRD_W}")
    a(f"s_cselect_b32 s{SRD_W+1}, s{S_W+1}, s{SRD_W+1}")
    a(f"s_mov_b32 s{SRD_W+2}, s{S_T+2}")
    a(f"s_mov_b32 s{SRD_W+3}, 0x00020000")
    make_srd(a, SRD_WS, S_WS, S_WS + 1, 0, WS_END)
    a(f"s_cmp_lt_u32 s2, 128")
    a(f"s_cselect_b32 s{SRD_SQ}, s4, s6")
    a(f"s_cselect_b32 s{SRD_SQ+1}, s5, s7")
    a(f"s_mov_b32 s{SRD_SQ+2}, {S*S*2}")
    a(f"s_mov_b32 s{SRD_SQ+3}, 0x00020000")
    if STAMP: make_srd(a, 96, S_WS, S_WS + 1, 0x2000000, 0x100000)
    if side:
        a(f"s_cmp_ge_u32 s{S_WAVE}, 8")
        a("s_cbranch_scc1 L_k1_side")
    a(f"s_cmp_ge_u32 s{S_WAVE}, 4")
    a("s_cbranch_scc1 L_k1_loader")
    compute_setup(a)
    copy_setup(a)
    a(f"s_cmp_ge_u32 s{S_CG}, 8")
    a("s_cbranch_scc1 L_k1_c1")
    pre_qk(a)
    compute_loop(a, True)
    epilogue_qk(a)
    a.label("L_k1_c1")
    a(f"s_cmp_ge_u32 s{S_CG}, 12")
    a("s_cbranch_scc1 L_k1_c1d")
    pre_v(a)
    a("s_branch L_k1_c1go")
    a.label("L_k1_c1d")
    pre_d(a)
    a.label("L_k1_c1go")
    compute_loop(a, False)
    a(f"s_cmp_ge_u32 s{S_CG}, 12")
    a("s_cbranch_scc1 L_k1_c2")
    epilogue_v(a)
    a.label("L_k1_c2")
    epilogue_d(a)
    a.label("L_k1_loader")
    loader(a)
    a.label("L_k1_exit")
    a("s_endpgm")
    if side:
        a.label("L_k1_side")
        side(a)
```
